```python
import torch

def _softmax(x, axis=-1):
    return torch.softmax(x, dim=axis)
def _gelu(x):
    return torch.nn.functional.gelu(x, approximate="tanh")
def _silu(x):
    return torch.nn.functional.silu(x)
def _sigmoid(x):
    return torch.sigmoid(x)
def _layernorm(x, axis=-1, eps=1e-5):
    m = x.mean(dim=axis, keepdim=True)
    v = x.var(dim=axis, keepdim=True, unbiased=False)
    return (x - m) / torch.sqrt(v + eps)
def _scatter_add(tgt, idx, src, axis=0):
    return tgt.clone().index_add_(axis, idx, src)
def _segment_sum(src, seg, n):
    out = torch.zeros((n,) + src.shape[1:], dtype=src.dtype)
    return out.index_add_(0, seg, src)
def _pad(x, pw):
    flat = tuple(v for pair in reversed(pw) for v in pair)
    return torch.nn.functional.pad(x, flat)

kernel_name = 'gated_mix__gqa_block_cached__glu_gated_bilinear__decode'

def setup_inputs():

    _w = (lambda a: (lambda t: t.to(torch.bfloat16) if t.is_floating_point() else t)(torch.as_tensor(a)))
    def _A_setup():
        B, Sq, D = 1, 1, 640
        Hq, Hkv, Sk, Dh = 32, 32, 8192, 192
        assert Hq % Hkv == 0, (Hq, Hkv)
        return {
            "x": _w((lambda *s: torch.randn(*s, dtype=torch.bfloat16) * 0.05)(B, Sq, D)),
            "k_cache": _w((lambda *s: torch.randn(*s, dtype=torch.bfloat16) * 3.2)(B, Hkv, Sk, Dh)),
            "v_cache": _w((lambda *s: torch.randn(*s, dtype=torch.bfloat16) * 0.05)(B, Hkv, Sk, Dh)),
            "wq": _w((lambda *s: torch.randn(*s, dtype=torch.bfloat16) * 3.2)(D, Hq * Dh) * (D ** -0.5)),
            "wo": _w((lambda *s: torch.randn(*s, dtype=torch.bfloat16) * 0.05)(Hq * Dh, D) * ((Hq * Dh) ** -0.5)),
        }
    _A_in = _A_setup()

    def _B_setup():
        B, S, D, F = 1, 1, 640, 1536
        return {
            "x": _w((lambda *s: torch.randn(*s, dtype=torch.bfloat16) * 0.05)(B, S, D)),
            "w_gate": _w((lambda *s: torch.randn(*s, dtype=torch.bfloat16) * 0.2)(D, F) * (D ** -0.5)),
            "w_up": _w((lambda *s: torch.randn(*s, dtype=torch.bfloat16) * 0.2)(D, F) * (D ** -0.5)),
            "w_down": _w((lambda *s: torch.randn(*s, dtype=torch.bfloat16) * 0.2)(F, D) * (F ** -0.5)),
        }
    _B_in = _B_setup()

    return {
        "A_x": _A_in["x"],
        "A_k_cache": _A_in["k_cache"],
        "A_v_cache": _A_in["v_cache"],
        "A_wq": _A_in["wq"],
        "A_wo": _A_in["wo"],
        "B_x": _B_in["x"],
        "B_w_gate": _B_in["w_gate"],
        "B_w_up": _B_in["w_up"],
        "B_w_down": _B_in["w_down"],
        "gate_w": _w((lambda *s: torch.randn(*s, dtype=torch.bfloat16) * 0.05)(640) * 16.0),
    }

def reference(A_x, A_k_cache, A_v_cache, A_wq, A_wo, B_x, B_w_gate, B_w_up, B_w_down, gate_w):
    def _A_ref(x, k_cache, v_cache, wq, wo):
        B, Sq, D = x.shape
        Hq, Dh = 32, 192
        Hkv = k_cache.shape[1]
        rep = Hq // Hkv
        q = (lambda x, *d: x.permute(*d))((x @ wq).reshape(B, Sq, Hq, Dh), 0, 2, 1, 3)
        k = (lambda x, n, axis: torch.repeat_interleave(x, n, dim=axis))(k_cache, rep, axis=1)
        v = (lambda x, n, axis: torch.repeat_interleave(x, n, dim=axis))(v_cache, rep, axis=1)
        scores = torch.einsum("bhqd,bhkd->bhqk", q, k) * (Dh ** -0.5)
        p = _softmax(scores, axis=-1)
        o = torch.einsum("bhqk,bhkd->bhqd", p, v)
        return (lambda x, *d: x.permute(*d))(o, 0, 2, 1, 3).reshape(B, Sq, Hq * Dh) @ wo

    def _B_ref(x, w_gate, w_up, w_down):
        g = torch.einsum("bsd,df->bsf", x, w_gate)
        u = torch.einsum("bsd,df->bsf", x, w_up)
        h = g * u
        return torch.einsum("bsf,fd->bsd", h, w_down)

    x = A_x
    g = _sigmoid((x * gate_w).sum(-1, keepdims=True))
    a = _A_ref(x, A_k_cache, A_v_cache, A_wq, A_wo)
    b = _B_ref(x, B_w_gate, B_w_up, B_w_down)
    return g * a + (1 - g) * b
```

```python
import sys

NAME = "gated_mix__gqa_block_cached__glu_gated_bilinear__decode"
HEADER = open("cdna_kernels/%s.s.ref" % NAME).read().split("; Override launch geometry")[0]

out = []
def e(s=""):
    out.append(s)
def I(s):
    out.append("    " + s)

NT = " nt" if "--nt" in sys.argv else ""
STAMP = "--stamp" in sys.argv
OUTFILE = "cdna_kernels/%s.s" % NAME
for a in sys.argv[1:]:
    if a.startswith("--out="):
        OUTFILE = a[6:]

KV_BYTES = 100663296
WQ_BYTES = 640 * 6144 * 2
WO_BYTES = 6144 * 640 * 2
WD_BYTES = 1536 * 640 * 2
WS_BYTES = 402653184
OOB = 0x7f000000
GU_OFF, OP_OFF, AP_OFF = 0, 384, 1280
L_QR = 0
L_GR = 15360
L_PART = 0
L_QB = 34816
L_OPR = 35328
L_GUR = 41600
L_OF = 44672
L_GATE = 45632
L_RED = 0
L_FR = 46080
LDS_BYTES = 51200

S_WG = 2
S_H, S_S, S_W = 3, 62, 63
SRD_K, SRD_V, SRD_WQ, SRD_WO, SRD_WD, SRD_WS, SRD_X, SRD_DBG = 4, 8, 12, 16, 20, 24, 28, 32
KA0 = 36
S_MHI = 64
S_T0, S_T1, S_T2, S_T3 = 66, 67, 68, 69
S_EX = 70
S_BASE = 72
S_NA, S_NB = 73, 74
S_IT = 75
S_SCALE, S_LOG2E = 76, 77
S_WSB = 78
S_M480 = 80
S_C1 = 82
SRD_GW, SRD_OUT = 84, 88
S_WGP, S_WUP = 92, 94
S_ST = 96

V_T, V_LANE, V_G, V_I, V_OK, V_OV1, V_OV2 = 0, 1, 2, 3, 4, 5, 6
A = [7, 8, 9, 10, 11, 12, 13, 14, 15]
KA, VA, KB, VB = 16, 40, 64, 88
STG = 64
XR = 192
GU = 208
XG = 216
AQ = 220
AG = 228
V_SL, V_C, V_SL2, V_C2 = 236, 237, 238, 239
V_NEG = 240
QF = 112
ACC = 136
WR = 152
D = 172
P = 176
VM, VL = 180, 181
T2 = 182
V_OW = 200
BIG = 16


def srd(dst, lo, hi, nbytes):
    I(f"s_mov_b32 s{dst}, s{lo}")
    I(f"s_and_b32 s{dst+1}, s{hi}, 0xffff")
    I(f"s_mov_b32 s{dst+2}, {nbytes}")
    I(f"s_mov_b32 s{dst+3}, 0x00020000")


def divmod_const(vq, vr, vsrc, d, magic):
    I(f"v_mul_u32_u24 v{vq}, {magic}, v{vsrc}")
    I(f"v_lshrrev_b32 v{vq}, 16, v{vq}")
    I(f"v_mul_u32_u24 v{vr}, {d}, v{vq}")
    I(f"v_sub_u32 v{vr}, v{vsrc}, v{vr}")


stamp_n = [0]
def stamp(tag):
    if not STAMP:
        return
    n = stamp_n[0]; stamp_n[0] += 1
    lab = f"L_stamp{n}"
    I(f"s_cmp_lg_u32 s{S_W}, 0")
    I(f"s_cbranch_scc1 {lab}")
    I(f"s_memrealtime s[{S_ST}:{S_ST+1}]")
    I("s_waitcnt lgkmcnt(0)")
    I(f"v_mov_b32 v250, s{S_ST}")
    I(f"v_mov_b32 v251, s{S_ST+1}")
    I(f"s_lshl_b32 s{S_ST}, s{S_WG}, 8")
    I(f"s_add_u32 s{S_ST}, s{S_ST}, {0x1000000 + n*8}")
    I(f"v_mov_b32 v252, s{S_ST}")
    I(f"v_cmp_eq_u32 s[{S_ST+2}:{S_ST+3}], 0, v{V_LANE}")
    I(f"s_and_saveexec_b64 s[{S_ST}:{S_ST+1}], s[{S_ST+2}:{S_ST+3}]")
    I(f"buffer_store_dwordx2 v[250:251], v252, s[{SRD_WS}:{SRD_WS+3}], 0 offen")
    I(f"s_mov_b64 exec, s[{S_ST}:{S_ST+1}]")
    e(f"{lab}:")


def fma_chunk(acc, data, scal, tmp, first=False):
    for j in range(4):
        I(f"v_lshlrev_b32 v{tmp}, 16, v{data+j}")
        I(f"v_and_b32 v{tmp+1}, 0xffff0000, v{data+j}")
        op = "v_mul_f32" if first else "v_fmac_f32"
        I(f"{op} v{acc+2*j}, v{scal}, v{tmp}")
        I(f"{op} v{acc+2*j+1}, v{scal}, v{tmp+1}")


def canon(v, tmp):
    I(f"v_cmp_eq_u32 vcc, -1, v{v}")
    I(f"v_mov_b32 v{tmp}, 0x7fc00000")
    I("s_nop 1")
    I(f"v_cndmask_b32 v{v}, v{v}, v{tmp}, vcc")


def rbf(v, tmp):
    I(f"v_cvt_pk_bf16_f32 v{tmp}, v{v}, v{v}")
    I(f"v_lshlrev_b32 v{v}, 16, v{tmp}")


def load_k(slot, soff):
    for j in range(6):
        I(f"buffer_load_dwordx4 v[{slot+4*j}:{slot+4*j+3}], v{V_OK}, s[{SRD_K}:{SRD_K+3}], s{soff} offen offset:{j*64}{NT}")


def load_v(slot, soff):
    for r in range(4):
        I(f"buffer_load_dwordx4 v[{slot+4*r}:{slot+4*r+3}], v{V_OV1}, s[{SRD_V}:{SRD_V+3}], s{soff} offen offset:{r*384}{NT}")
    for r in range(2):
        I(f"buffer_load_dwordx4 v[{slot+16+4*r}:{slot+16+4*r+3}], v{V_OV2}, s[{SRD_V}:{SRD_V+3}], s{soff} offen offset:{r*768}{NT}")


def poll_check(regs, lab_retry, lab_done, tmp):
    cur = regs[0]
    rest = list(regs[1:])
    while rest:
        if len(rest) >= 2:
            I(f"v_max3_u32 v{tmp}, v{cur}, v{rest[0]}, v{rest[1]}")
            rest = rest[2:]
        else:
            I(f"v_max_u32 v{tmp}, v{cur}, v{rest[0]}")
            rest = rest[1:]
        cur = tmp
    I(f"v_cmp_eq_u32 vcc, -1, v{cur}")
    I("s_nop 4")
    I(f"s_cbranch_vccz {lab_done}")
    I("s_sleep 2")
    I(f"s_branch {lab_retry}")


def mask_lt(n, save=S_EX):
    I(f"v_cmp_gt_u32 vcc, {n}, v{V_T}")
    I(f"s_and_saveexec_b64 s[{save}:{save+1}], vcc")


def unmask(save=S_EX):
    I(f"s_mov_b64 exec, s[{save}:{save+1}]")


e(HEADER.rstrip("\n"))
e("; Override launch geometry by editing the next line (default: block=256,")
e(f"; @launch grid=(256,1,1) block=(512,1,1) lds={LDS_BYTES}")
e('.amdgcn_target "amdgcn-amd-amdhsa--gfx950"')
e(".text")
e(f".globl {NAME}_kernel")
e(".p2align 8")
e(f".type {NAME}_kernel,@function")
e(f"{NAME}_kernel:")
I(f"s_cmp_ge_u32 s{S_WG}, 256")
I("s_cbranch_scc1 L_end")
I(f"s_load_dwordx16 s[{KA0}:{KA0+15}], s[0:1], 0")
I(f"s_load_dwordx8 s[{KA0+16}:{KA0+23}], s[0:1], 64")
I(f"s_load_dwordx2 s[{KA0+24}:{KA0+25}], s[0:1], 96")
a0, a1, a2, a3, a4, a5, a6, a7, a8 = A
I(f"v_and_b32 v{V_LANE}, 63, v{V_T}")
I(f"v_lshrrev_b32 v{a0}, 6, v{V_T}")
I(f"v_lshrrev_b32 v{V_G}, 4, v{V_LANE}")
I(f"v_and_b32 v{V_I}, 15, v{V_LANE}")
I(f"v_readfirstlane_b32 s{S_W}, v{a0}")
I(f"s_and_b32 s{S_H}, s{S_WG}, 31")
I(f"s_lshr_b32 s{S_S}, s{S_WG}, 5")
I(f"s_lshl_b32 s{S_WSB}, s{S_WG}, 11")
I(f"v_mul_u32_u24 v{V_OK}, 384, v{V_I}")
I(f"v_lshl_add_u32 v{V_OK}, v{V_G}, 4, v{V_OK}")
I(f"v_mul_u32_u24 v{a1}, 1536, v{V_G}")
I(f"v_lshl_add_u32 v{V_OV1}, v{V_I}, 4, v{a1}")
I(f"v_lshrrev_b32 v{a2}, 3, v{V_I}")
I(f"v_mul_u32_u24 v{a2}, 384, v{a2}")
I(f"v_and_b32 v{a3}, 7, v{V_I}")
I(f"v_lshlrev_b32 v{a3}, 4, v{a3}")
I(f"v_add3_u32 v{V_OV2}, v{a1}, v{a2}, v{a3}")
I(f"v_add_u32 v{V_OV2}, 256, v{V_OV2}")
I(f"v_cmp_lt_u32 s[{S_MHI}:{S_MHI+1}], 7, v{V_I}")
I(f"v_cmp_gt_u32 vcc, 480, v{V_T}")
I(f"s_mov_b64 s[{S_M480}:{S_M480+1}], vcc")
I(f"s_mov_b32 s{S_SCALE}, 0x3d93cd3a")
I(f"s_mov_b32 s{S_LOG2E}, 0x3fb8aa3b")
divmod_const(V_SL, V_C, V_T, 24, 2731)
divmod_const(V_SL2, V_C2, V_T, 12, 5462)
for k in range(4):
    I(f"v_mov_b32 v{V_NEG+k}, -1")
I("s_waitcnt lgkmcnt(0)")
kp = lambda n: (KA0 + 2 * n, KA0 + 2 * n + 1)
srd(SRD_WS, *kp(12), WS_BYTES)
srd(SRD_X, *kp(0), 1280)
srd(SRD_WQ, *kp(3), WQ_BYTES)
srd(SRD_K, *kp(1), KV_BYTES)
srd(SRD_V, *kp(2), KV_BYTES)
srd(SRD_WO, *kp(4), WO_BYTES)
srd(SRD_WD, *kp(8), WD_BYTES)
srd(SRD_GW, *kp(9), 1280)
srd(SRD_OUT, *kp(10), 1280)
srd(SRD_DBG, *kp(11), 256)
I(f"s_mov_b64 s[{S_WGP}:{S_WGP+1}], s[{kp(6)[0]}:{kp(6)[1]}]")
I(f"s_mov_b64 s[{S_WUP}:{S_WUP+1}], s[{kp(7)[0]}:{kp(7)[1]}]")
stamp("start")
I(f"s_mul_i32 s{S_BASE}, s{S_H}, 3145728")
I(f"s_mul_i32 s{S_T0}, s{S_S}, 393216")
I(f"s_add_u32 s{S_BASE}, s{S_BASE}, s{S_T0}")
I(f"s_mul_i32 s{S_T0}, s{S_W}, 49152")
I(f"s_add_u32 s{S_BASE}, s{S_BASE}, s{S_T0}")

I(f"v_mov_b32 v{a8}, {OOB}")
I(f"v_lshl_add_u32 v{a0}, v{V_T}, 4, s{S_WSB}")
I(f"v_cmp_gt_u32 vcc, 128, v{V_T}")
I("s_nop 1")
I(f"v_cndmask_b32 v{a0}, v{a8}, v{a0}, vcc")
I(f"buffer_store_dwordx4 v[{V_NEG}:{V_NEG+3}], v{a0}, s[{SRD_WS}:{SRD_WS+3}], 0 offen sc1")
I(f"v_lshlrev_b32 v{a1}, 6, v{V_SL}")
I(f"v_cndmask_b32 v{a1}, v{a8}, v{a1}, s[{S_M480}:{S_M480+1}]")
for k in range(4):
    I(f"buffer_load_dwordx4 v[{XR+4*k}:{XR+4*k+3}], v{a1}, s[{SRD_X}:{SRD_X+3}], 0 offen offset:{16*k}")
I(f"s_mul_i32 s{S_T0}, s{S_S}, 160")
I(f"v_lshlrev_b32 v{a2}, 2, v{V_SL2}")
I(f"v_cndmask_b32 v{a2}, v{a8}, v{a2}, s[{S_M480}:{S_M480+1}]")
I(f"buffer_load_dword v{XG}, v{a2}, s[{SRD_X}:{SRD_X+3}], s{S_T0} offen")
I(f"v_min_u32 v{a3}, 39, v{V_SL2}")
I(f"v_cmp_gt_u32 vcc, 6, v{V_C2}")
I(f"v_subrev_u32 v{a4}, 6, v{V_C2}")
I(f"v_mov_b32 v{a5}, s{S_WUP}")
I(f"v_mov_b32 v{a6}, s{S_WUP+1}")
I(f"v_cndmask_b32 v{a4}, v{a4}, v{V_C2}, vcc")
I(f"v_mov_b32 v{a0}, s{S_WGP}")
I(f"v_mov_b32 v{a1}, s{S_WGP+1}")
I(f"v_cndmask_b32 v{a5}, v{a5}, v{a0}, vcc")
I(f"v_cndmask_b32 v{a6}, v{a6}, v{a1}, vcc")
I(f"s_mul_i32 s{S_T0}, s{S_S}, {80*3072}")
I(f"s_mul_i32 s{S_T1}, s{S_H}, 96")
I(f"s_add_u32 s{S_T0}, s{S_T0}, s{S_T1}")
I(f"v_mul_u32_u24 v{a3}, 6144, v{a3}")
I(f"v_lshl_add_u32 v{a3}, v{a4}, 4, v{a3}")
I(f"v_add_u32 v{a3}, s{S_T0}, v{a3}")
I(f"v_add_co_u32 v{a4}, vcc, v{a5}, v{a3}")
I("s_nop 1")
I(f"v_addc_co_u32 v{a5}, vcc, 0, v{a6}, vcc")
assert a4 % 2 == 1 or True
I(f"v_mov_b32 v244, v{a4}")
I(f"v_mov_b32 v245, v{a5}")
I(f"global_load_dwordx4 v[{GU}:{GU+3}], v[244:245], off")
I(f"global_load_dwordx4 v[{GU+4}:{GU+7}], v[244:245], off offset:3072")
I(f"v_mul_u32_u24 v{a0}, {32*12288 // 16}, v{V_SL}")
I(f"v_add_u32 v{a0}, v{a0}, v{V_C}")
I(f"v_lshlrev_b32 v{a0}, 4, v{a0}")
I(f"v_cndmask_b32 v{a0}, v{a8}, v{a0}, s[{S_M480}:{S_M480+1}]")
I(f"s_mul_i32 s{S_T0}, s{S_H}, 384")
issued = []
issued += ["clr", "x0", "x1", "x2", "x3", "xg", "gu0", "gu1"]
for k in range(32):
    I(f"buffer_load_dwordx4 v[{STG+4*k}:{STG+4*k+3}], v{a0}, s[{SRD_WQ}:{SRD_WQ+3}], s{S_T0} offen")
    issued.append(f"wq{k}")
    if k != 31:
        I(f"s_add_u32 s{S_T0}, s{S_T0}, 12288")
    if k == 9:
        load_k(KA, S_BASE); issued += [f"k0{j}" for j in range(6)]
    if k == 19:
        load_v(VA, S_BASE); issued += [f"v0{j}" for j in range(6)]
def wait_for(name):
    n = len(issued) - 1 - issued.index(name)
    I(f"s_waitcnt vmcnt({n})")
for k in range(32):
    if k % 2 == 0:
        wait_for(f"wq{k+1}")
    xs = XR + k // 2
    if k % 2 == 0:
        I(f"v_lshlrev_b32 v{a1}, 16, v{xs}")
    else:
        I(f"v_and_b32 v{a1}, 0xffff0000, v{xs}")
    fma_chunk(AQ, STG + 4 * k, a1, a2, first=(k == 0))
I(f"v_lshlrev_b32 v{a1}, 16, v{XG}")
fma_chunk(AG, GU, a1, a2, first=True)
I(f"v_and_b32 v{a1}, 0xffff0000, v{XG}")
fma_chunk(AG, GU + 4, a1, a2)
divmod_const(V_OW + 1, a3, V_T, 10, 6554)
I(f"v_mul_u32_u24 v{V_OW}, 1280, v{V_OW+1}")
I(f"v_lshl_add_u32 v{V_OW}, v{a3}, 4, v{V_OW}")
I(f"v_cndmask_b32 v{V_OW}, v{a8}, v{V_OW}, s[{S_M480}:{S_M480+1}]")
I(f"s_mul_i32 s{S_T0}, s{S_H}, {192*1280}")
I(f"s_mul_i32 s{S_T1}, s{S_S}, 160")
I(f"s_add_u32 s{S_T0}, s{S_T0}, s{S_T1}")
for i in range(4):
    I(f"buffer_load_dwordx4 v[{WR+4*i}:{WR+4*i+3}], v{V_OW}, s[{SRD_WO}:{SRD_WO+3}], s{S_T0} offen")
    if i != 3:
        I(f"s_add_u32 s{S_T0}, s{S_T0}, {48*1280}")
I(f"s_mul_i32 s{S_T0}, s{S_H}, {48*1280}")
I(f"s_add_u32 s{S_T0}, s{S_T0}, s{S_T1}")
I(f"buffer_load_dwordx4 v[{WR+16}:{WR+19}], v{V_OW}, s[{SRD_WD}:{SRD_WD+3}], s{S_T0} offen")
I(f"s_add_u32 s{S_NA}, s{S_BASE}, 6144")
load_k(KB, S_NA)
load_v(VB, S_NA)
I(f"v_mul_u32_u24 v{a1}, 768, v{V_SL}")
I(f"v_lshl_add_u32 v{a1}, v{V_C}, 5, v{a1}")
I(f"v_mul_u32_u24 v{a2}, 384, v{V_SL2}")
I(f"v_lshl_add_u32 v{a2}, v{V_C2}, 5, v{a2}")
I(f"s_mov_b64 s[{S_EX}:{S_EX+1}], exec")
I(f"s_mov_b64 exec, s[{S_M480}:{S_M480+1}]")
I(f"ds_write_b128 v{a1}, v[{AQ}:{AQ+3}] offset:{L_QR}")
I(f"ds_write_b128 v{a1}, v[{AQ+4}:{AQ+7}] offset:{L_QR+16}")
I(f"ds_write_b128 v{a2}, v[{AG}:{AG+3}] offset:{L_GR}")
I(f"ds_write_b128 v{a2}, v[{AG+4}:{AG+7}] offset:{L_GR+16}")
unmask()
I("s_waitcnt lgkmcnt(0)")
I("s_barrier")
stamp("b1")
I(f"v_lshlrev_b32 v{a1}, 2, v{V_T}")
I(f"s_cmp_ge_u32 s{S_W}, 3")
I("s_cbranch_scc1 L_a_notq")
for sl in range(20):
    I(f"ds_read_b32 v{T2+sl-0 if sl < 18 else 244+sl-18}, v{a1} offset:{L_QR + sl*768}")
I("s_waitcnt lgkmcnt(0)")
qregs = [T2 + sl if sl < 18 else 244 + sl - 18 for sl in range(20)]
I(f"v_add_f32 v{a2}, v{qregs[0]}, v{qregs[1]}")
for r in qregs[2:]:
    I(f"v_add_f32 v{a2}, v{a2}, v{r}")
I(f"v_cvt_pk_bf16_f32 v{a2}, v{a2}, v{a2}")
I(f"v_lshlrev_b32 v{a3}, 1, v{V_T}")
I(f"ds_write_b16 v{a3}, v{a2} offset:{L_QB}")
I("s_branch L_a_done")
e("L_a_notq:")
I(f"s_cmp_ge_u32 s{S_W}, 5")
I("s_cbranch_scc1 L_a_notgu")
I(f"v_subrev_u32 v{a1}, 768, v{a1}")
I(f"v_min_u32 v{a3}, 380, v{a1}")
for half in range(2):
    for sl in range(20):
        I(f"ds_read_b32 v{qregs[sl]}, v{a3} offset:{L_GR + (half*20+sl)*384}")
    I("s_waitcnt lgkmcnt(0)")
    if half == 0:
        I(f"v_add_f32 v{a2}, v{qregs[0]}, v{qregs[1]}")
        rest = qregs[2:]
    else:
        rest = qregs
    for r in rest:
        I(f"v_add_f32 v{a2}, v{a2}, v{r}")
canon(a2, a4)
I(f"v_add_u32 v{a1}, s{S_WSB}, v{a1}")
I(f"v_cmp_gt_u32 vcc, 288, v{V_T}")
I("s_nop 1")
I(f"v_cndmask_b32 v{a1}, v{a8}, v{a1}, vcc")
I(f"buffer_store_dword v{a2}, v{a1}, s[{SRD_WS}:{SRD_WS+3}], 0 offen offset:{GU_OFF} sc1")
I("s_branch L_a_done")
e("L_a_notgu:")
I(f"s_cmp_lg_u32 s{S_W}, 7")
I("s_cbranch_scc1 L_a_done")
I(f"s_lshl_b32 s{S_T0}, s{S_H}, 2")
I(f"v_mov_b32 v{a1}, s{S_T0}")
I(f"v_mov_b32 v{a2}, 1")
I(f"v_cmp_eq_u32 vcc, 0, v{V_LANE}")
I(f"s_and_saveexec_b64 s[{S_EX}:{S_EX+1}], vcc")
I(f"buffer_atomic_add v{a2}, v{a1}, s[{SRD_DBG}:{SRD_DBG+3}], 0 offen sc1")
unmask()
e("L_a_done:")
I("s_waitcnt lgkmcnt(0)")
I("s_barrier")
stamp("b2")
I(f"v_lshlrev_b32 v{a1}, 4, v{V_G}")
for j in range(6):
    I(f"ds_read_b128 v[{QF+4*j}:{QF+4*j+3}], v{a1} offset:{L_QB + 64*j}")
for k in range(16):
    I(f"v_mov_b32 v{ACC+k}, 0")
I(f"v_mov_b32 v{VM}, 0xff7fffff")
I(f"v_mov_b32 v{VL}, 0")
I(f"s_mov_b32 s{S_IT}, 0")
I(f"s_add_u32 s{S_NA}, s{S_BASE}, 12288")
I(f"s_add_u32 s{S_NB}, s{S_BASE}, 18432")
I("s_waitcnt lgkmcnt(0)")

def tile(KX, VX, soff):
    I("s_waitcnt vmcnt(18)")
    for j in range(6):
        c = "0" if j == 0 else f"v[{D}:{D+3}]"
        I(f"v_mfma_f32_16x16x32_bf16 v[{D}:{D+3}], v[{KX+4*j}:{KX+4*j+3}], v[{QF+4*j}:{QF+4*j+3}], {c}")
    load_k(KX, soff)
    I("s_nop 2")
    t0, t1 = T2, T2 + 1
    s = [T2 + 2, T2 + 3, T2 + 4, T2 + 5]
    I(f"v_cvt_pk_bf16_f32 v{t0}, v{D}, v{D+1}")
    I(f"v_cvt_pk_bf16_f32 v{t1}, v{D+2}, v{D+3}")
    I(f"v_lshlrev_b32 v{s[0]}, 16, v{t0}")
    I(f"v_and_b32 v{s[1]}, 0xffff0000, v{t0}")
    I(f"v_lshlrev_b32 v{s[2]}, 16, v{t1}")
    I(f"v_and_b32 v{s[3]}, 0xffff0000, v{t1}")
    for r in range(4):
        I(f"v_mul_f32 v{s[r]}, s{S_SCALE}, v{s[r]}")
    I(f"v_cvt_pk_bf16_f32 v{t0}, v{s[0]}, v{s[1]}")
    I(f"v_cvt_pk_bf16_f32 v{t1}, v{s[2]}, v{s[3]}")
    I(f"v_lshlrev_b32 v{s[0]}, 16, v{t0}")
    I(f"v_and_b32 v{s[1]}, 0xffff0000, v{t0}")
    I(f"v_lshlrev_b32 v{s[2]}, 16, v{t1}")
    I(f"v_and_b32 v{s[3]}, 0xffff0000, v{t1}")
    for r in range(4):
        I(f"v_mul_f32 v{s[r]}, s{S_LOG2E}, v{s[r]}")
    mn, al = T2 + 6, T2 + 7
    I(f"v_max3_f32 v{mn}, v{s[0]}, v{s[1]}, v{s[2]}")
    I(f"v_max3_f32 v{mn}, v{mn}, v{s[3]}, v{VM}")
    I(f"v_sub_f32 v{al}, v{VM}, v{mn}")
    for r in range(4):
        I(f"v_sub_f32 v{P+r}, v{s[r]}, v{mn}")
    I(f"v_exp_f32 v{al}, v{al}")
    for r in range(4):
        I(f"v_exp_f32 v{P+r}, v{P+r}")
    I(f"v_mov_b32 v{VM}, v{mn}")
    for k in range(16):
        I(f"v_mul_f32 v{ACC+k}, v{al}, v{ACC+k}")
    I(f"v_add_f32 v{t0}, v{P}, v{P+1}")
    I(f"v_add_f32 v{t1}, v{P+2}, v{P+3}")
    I(f"v_add_f32 v{t0}, v{t0}, v{t1}")
    I(f"v_fma_f32 v{VL}, v{VL}, v{al}, v{t0}")
    pa, pb = T2 + 8, T2 + 9
    I(f"v_cndmask_b32 v{pa}, v{P}, v{P+1}, s[{S_MHI}:{S_MHI+1}]")
    I(f"v_cndmask_b32 v{pb}, v{P+2}, v{P+3}, s[{S_MHI}:{S_MHI+1}]")
    I("s_waitcnt vmcnt(18)")
    for r in range(4):
        fma_chunk(ACC, VX + 4 * r, P + r, T2 + 10)
    fma_chunk(ACC + 8, VX + 16, pa, T2 + 10)
    fma_chunk(ACC + 8, VX + 20, pb, T2 + 10)
    load_v(VX, soff)

e("L_loop:")
I(f"s_cmp_lt_u32 s{S_IT}, 3")
I(f"s_cselect_b32 s{S_T0}, s{S_NA}, {OOB}")
I(f"s_cselect_b32 s{S_T1}, s{S_NB}, {OOB}")
tile(KA, VA, S_T0)
tile(KB, VB, S_T1)
I(f"s_add_u32 s{S_NA}, s{S_NA}, 12288")
I(f"s_add_u32 s{S_NB}, s{S_NB}, 12288")
I(f"s_add_u32 s{S_IT}, s{S_IT}, 1")
I(f"s_cmp_lt_u32 s{S_IT}, 4")
I("s_cbranch_scc1 L_loop")
stamp("loop_end")

I(f"s_lshl_b32 s{S_T0}, s{S_W}, 2")
I(f"v_add_u32 v{a1}, s{S_T0}, v{V_G}")
I(f"v_mul_u32_u24 v{a1}, 1040, v{a1}")
I(f"v_lshl_add_u32 v{a2}, v{V_I}, 5, v{a1}")
I(f"ds_write_b128 v{a2}, v[{ACC}:{ACC+3}] offset:{L_PART}")
I(f"ds_write_b128 v{a2}, v[{ACC+4}:{ACC+7}] offset:{L_PART+16}")
I(f"ds_write_b128 v{a2}, v[{ACC+8}:{ACC+11}] offset:{L_PART+512}")
I(f"ds_write_b128 v{a2}, v[{ACC+12}:{ACC+15}] offset:{L_PART+528}")
I(f"v_cmp_eq_u32 vcc, 0, v{V_I}")
I(f"s_and_saveexec_b64 s[{S_EX}:{S_EX+1}], vcc")
I(f"ds_write_b64 v{a1}, v[{VM}:{VM+1}] offset:{L_PART+1024}")
unmask()
I("s_waitcnt vmcnt(0) lgkmcnt(0)")
I("s_barrier")
I(f"s_cmp_ge_u32 s{S_W}, 3")
I("s_cbranch_scc1 L_t_gu")
I(f"v_mov_b32 v{a1}, 0")
for p in range(32):
    I(f"ds_read_b64 v[{BIG+2*p}:{BIG+2*p+1}], v{a1} offset:{L_PART + p*1040 + 1024}")
I("s_waitcnt lgkmcnt(0)")
I(f"v_max3_f32 v{a2}, v{BIG}, v{BIG+2}, v{BIG+4}")
for p in range(3, 31, 2):
    I(f"v_max3_f32 v{a2}, v{a2}, v{BIG+2*p}, v{BIG+2*p+2}")
I(f"v_max_f32 v{a2}, v{a2}, v{BIG+62}")
for p in range(32):
    I(f"v_sub_f32 v{BIG+2*p}, v{BIG+2*p}, v{a2}")
for p in range(32):
    I(f"v_exp_f32 v{BIG+2*p}, v{BIG+2*p}")
I("s_nop 0")
I(f"v_mul_f32 v{a3}, v{BIG}, v{BIG+1}")
for p in range(1, 32):
    I(f"v_fmac_f32 v{a3}, v{BIG+2*p}, v{BIG+2*p+1}")
I(f"v_lshlrev_b32 v{a1}, 2, v{V_T}")
I(f"s_cmp_eq_u32 s{S_W}, 2")
I("s_cbranch_scc1 L_t2_hi")
for p in range(32):
    I(f"ds_read_b32 v{BIG+2*p+1}, v{a1} offset:{L_PART + p*1040}")
I("s_waitcnt lgkmcnt(0)")
I(f"v_mul_f32 v{a4}, v{BIG}, v{BIG+1}")
for p in range(1, 32):
    I(f"v_fmac_f32 v{a4}, v{BIG+2*p}, v{BIG+2*p+1}")
I("s_branch L_t2_pub")
e("L_t2_hi:")
for p in range(32):
    I(f"ds_read_b32 v{BIG+2*p+1}, v{a1} offset:{L_PART + p*1040}")
for p in range(32):
    I(f"ds_read_b32 v{BIG+64+p}, v{a1} offset:{L_PART + p*1040 + 256}")
I("s_waitcnt lgkmcnt(0)")
for p in range(32):
    I(f"v_add_f32 v{BIG+2*p+1}, v{BIG+2*p+1}, v{BIG+64+p}")
I(f"v_mul_f32 v{a4}, v{BIG}, v{BIG+1}")
for p in range(1, 32):
    I(f"v_fmac_f32 v{a4}, v{BIG+2*p}, v{BIG+2*p+1}")
e("L_t2_pub:")
canon(a4, a5)
I(f"v_add_u32 v{a1}, s{S_WSB}, v{a1}")
I(f"buffer_store_dword v{a4}, v{a1}, s[{SRD_WS}:{SRD_WS+3}], 0 offen offset:{OP_OFF} sc1")
canon(a2, a5)
canon(a3, a5)
I(f"v_cmp_eq_u32 vcc, 0, v{V_T}")
I(f"v_mov_b32 v{a5}, 0")
I("s_nop 0")
I(f"v_cndmask_b32 v{a5}, v{a5}, v{a2}, vcc")
I(f"v_cmp_eq_u32 vcc, 1, v{V_T}")
I("s_nop 1")
I(f"v_cndmask_b32 v{a5}, v{a5}, v{a3}, vcc")
I(f"v_cmp_gt_u32 vcc, 4, v{V_T}")
I(f"v_mov_b32 v{a6}, {OOB}")
I("s_nop 0")
I(f"v_cndmask_b32 v{a1}, v{a6}, v{a1}, vcc")
I(f"buffer_store_dword v{a5}, v{a1}, s[{SRD_WS}:{SRD_WS+3}], 0 offen offset:{OP_OFF+768} sc1")
e("L_t_gu:")
I(f"v_lshlrev_b32 v{a1}, 2, v{V_LANE}")
I(f"v_mov_b32 v{a6}, {OOB}")
e("L_t3_poll:")
I(f"buffer_load_dword v{a2}, v{a1}, s[{SRD_DBG}:{SRD_DBG+3}], 0 offen sc1")
I("s_waitcnt vmcnt(0)")
I(f"v_cmp_gt_u32 vcc, 8, v{a2}")
I(f"v_cmp_gt_u32 s[{S_C1}:{S_C1+1}], 32, v{V_LANE}")
I("s_nop 4")
I(f"s_and_b64 s[{S_C1}:{S_C1+1}], s[{S_C1}:{S_C1+1}], vcc")
I("s_cbranch_scc0 L_t3_done")
I("s_sleep 4")
I("s_branch L_t3_poll")
e("L_t3_done:")
I(f"s_cmp_lt_u32 s{S_W}, 3")
I("s_cbranch_scc1 L_t4")
I(f"s_cmp_ge_u32 s{S_W}, 6")
I("s_cbranch_scc1 L_t4")
I(f"v_subrev_u32 v{a1}, 192, v{V_T}")
divmod_const(a2, a3, a1, 24, 2731)
I(f"v_lshlrev_b32 v{a2}, 16, v{a2}")
I(f"v_lshl_add_u32 v{a2}, v{a3}, 4, v{a2}")
I(f"s_lshl_b32 s{S_T0}, s{S_H}, 11")
e("L_gu_poll:")
I(f"buffer_load_dwordx4 v[{BIG}:{BIG+3}], v{a2}, s[{SRD_WS}:{SRD_WS+3}], s{S_T0} offen offset:{GU_OFF} sc1")
I("s_waitcnt vmcnt(0)")
poll_check([BIG, BIG + 1, BIG + 2, BIG + 3], "L_gu_poll", "L_gu_done", a4)
e("L_gu_done:")
I(f"v_lshlrev_b32 v{a1}, 4, v{a1}")
I(f"ds_write_b128 v{a1}, v[{BIG}:{BIG+3}] offset:{L_GUR}")
e("L_t4:")
divmod_const(a2, a3, V_T, 49, 1338)
I(f"v_lshlrev_b32 v{a2}, 16, v{a2}")
I(f"v_lshl_add_u32 v{a2}, v{a3}, 4, v{a2}")
I(f"v_cmp_gt_u32 vcc, 392, v{V_T}")
I(f"s_lshl_b32 s{S_T0}, s{S_H}, 11")
I("s_nop 0")
I(f"v_cndmask_b32 v{a2}, v{a6}, v{a2}, vcc")
I(f"s_cmp_eq_u32 s{S_W}, 7")
I("s_cbranch_scc1 L_op_skip")
e("L_op_poll:")
I(f"buffer_load_dwordx4 v[{BIG}:{BIG+3}], v{a2}, s[{SRD_WS}:{SRD_WS+3}], s{S_T0} offen offset:{OP_OFF} sc1")
I("s_waitcnt vmcnt(0)")
poll_check([BIG, BIG + 1, BIG + 2, BIG + 3], "L_op_poll", "L_op_done", a4)
e("L_op_done:")
I(f"v_lshlrev_b32 v{a1}, 4, v{V_T}")
mask_lt(392)
I(f"ds_write_b128 v{a1}, v[{BIG}:{BIG+3}] offset:{L_OPR}")
unmask()
e("L_op_skip:")
I("s_waitcnt lgkmcnt(0)")
I("s_barrier")
stamp("b4")
I(f"s_cmp_gt_u32 s{S_W}, 3")
I("s_cbranch_scc1 L_t5b")
I(f"s_cmp_eq_u32 s{S_W}, 3")
I("s_cbranch_scc1 L_t5h")
I(f"v_mov_b32 v{a1}, 0")
I(f"v_lshlrev_b32 v{a5}, 2, v{V_T}")
for p in range(8):
    I(f"ds_read_b64 v[{BIG+2*p}:{BIG+2*p+1}], v{a1} offset:{L_OPR + p*784 + 768}")
for p in range(8):
    I(f"ds_read_b32 v{BIG+16+p}, v{a5} offset:{L_OPR + p*784}")
I("s_waitcnt lgkmcnt(0)")
I(f"v_max3_f32 v{a2}, v{BIG}, v{BIG+2}, v{BIG+4}")
I(f"v_max3_f32 v{a2}, v{a2}, v{BIG+6}, v{BIG+8}")
I(f"v_max3_f32 v{a2}, v{a2}, v{BIG+10}, v{BIG+12}")
I(f"v_max_f32 v{a2}, v{a2}, v{BIG+14}")
for p in range(8):
    I(f"v_sub_f32 v{BIG+2*p}, v{BIG+2*p}, v{a2}")
for p in range(8):
    I(f"v_exp_f32 v{BIG+2*p}, v{BIG+2*p}")
I("s_nop 0")
I(f"v_mul_f32 v{a3}, v{BIG}, v{BIG+1}")
I(f"v_mul_f32 v{a4}, v{BIG}, v{BIG+16}")
for p in range(1, 8):
    I(f"v_fmac_f32 v{a3}, v{BIG+2*p}, v{BIG+2*p+1}")
    I(f"v_fmac_f32 v{a4}, v{BIG+2*p}, v{BIG+16+p}")
I(f"v_rcp_f32 v{a3}, v{a3}")
I("s_nop 0")
I(f"v_mul_f32 v{a4}, v{a4}, v{a3}")
rbf(a4, a6)
I(f"ds_write_b32 v{a5}, v{a4} offset:{L_OF}")
I("s_branch L_t5b")
e("L_t5h:")
I(f"v_lshlrev_b32 v{a5}, 2, v{V_LANE}")
I(f"v_min_u32 v{a5}, 188, v{a5}")
for p in range(8):
    I(f"ds_read_b32 v{BIG+p}, v{a5} offset:{L_GUR + p*384}")
    I(f"ds_read_b32 v{BIG+8+p}, v{a5} offset:{L_GUR + p*384 + 192}")
I("s_waitcnt lgkmcnt(0)")
I(f"v_add_f32 v{a2}, v{BIG}, v{BIG+1}")
I(f"v_add_f32 v{a3}, v{BIG+8}, v{BIG+9}")
for p in range(2, 8):
    I(f"v_add_f32 v{a2}, v{a2}, v{BIG+p}")
    I(f"v_add_f32 v{a3}, v{a3}, v{BIG+8+p}")
rbf(a2, a6)
rbf(a3, a6)
I(f"v_mul_f32 v{a2}, v{a2}, v{a3}")
rbf(a2, a6)
I(f"v_cmp_gt_u32 vcc, 48, v{V_LANE}")
I(f"s_and_saveexec_b64 s[{S_EX}:{S_EX+1}], vcc")
I(f"ds_write_b32 v{a5}, v{a2} offset:{L_OF+768}")
unmask()
e("L_t5b:")
I("s_waitcnt lgkmcnt(0)")
I("s_barrier")
I(f"v_min_u32 v{a1}, 47, v{V_OW+1}")
I(f"v_lshlrev_b32 v{a1}, 2, v{a1}")
for i in range(4):
    I(f"ds_read_b32 v{BIG+i}, v{a1} offset:{L_OF + 192*i}")
I(f"ds_read_b32 v{BIG+4}, v{a1} offset:{L_OF + 768}")
I("s_waitcnt lgkmcnt(0)")
for i in range(4):
    fma_chunk(BIG + 8, WR + 4 * i, BIG + i, a2, first=(i == 0))
fma_chunk(BIG + 16, WR + 16, BIG + 4, a2, first=True)
I(f"v_lshlrev_b32 v{a1}, 6, v{V_T}")
I(f"s_mov_b64 s[{S_EX}:{S_EX+1}], exec")
I(f"s_mov_b64 exec, s[{S_M480}:{S_M480+1}]")
for k in range(4):
    I(f"ds_write_b128 v{a1}, v[{BIG+8+4*k}:{BIG+11+4*k}] offset:{L_RED + 16*k}")
unmask()
I("s_waitcnt lgkmcnt(0)")
I("s_barrier")
I(f"s_cmp_ge_u32 s{S_W}, 3")
I("s_cbranch_scc1 L_t6")
I(f"v_min_u32 v{a1}, 159, v{V_T}")
I(f"v_cmp_lt_u32 vcc, 79, v{a1}")
I(f"v_subrev_u32 v{a2}, 80, v{a1}")
I("s_nop 0")
I(f"v_cndmask_b32 v{a2}, v{a1}, v{a2}, vcc")
I(f"v_cndmask_b32 v{a3}, 0, 32, vcc")
I(f"v_lshrrev_b32 v{a4}, 3, v{a2}")
I(f"v_and_b32 v{a2}, 7, v{a2}")
I(f"v_lshl_add_u32 v{a3}, v{a4}, 6, v{a3}")
I(f"v_lshl_add_u32 v{a3}, v{a2}, 2, v{a3}")
for sl in range(48):
    I(f"ds_read_b32 v{BIG+sl}, v{a3} offset:{L_RED + sl*640}")
I("s_waitcnt lgkmcnt(0)")
for k in range(0, 48, 4):
    I(f"v_add_f32 v{BIG+k}, v{BIG+k}, v{BIG+k+1}")
    I(f"v_add_f32 v{BIG+k+2}, v{BIG+k+2}, v{BIG+k+3}")
    I(f"v_add_f32 v{BIG+k}, v{BIG+k}, v{BIG+k+2}")
for k in range(4, 48, 4):
    I(f"v_add_f32 v{BIG}, v{BIG}, v{BIG+k}")
canon(BIG, a5)
I(f"v_lshl_add_u32 v{a1}, v{V_T}, 2, s{S_WSB}")
I(f"v_cmp_gt_u32 vcc, 160, v{V_T}")
I(f"v_mov_b32 v{a6}, {OOB}")
I("s_nop 0")
I(f"v_cndmask_b32 v{a1}, v{a6}, v{a1}, vcc")
I(f"buffer_store_dword v{BIG}, v{a1}, s[{SRD_WS}:{SRD_WS+3}], 0 offen offset:{AP_OFF} sc1")
e("L_t6:")
stamp("t6")
I(f"s_cmp_lg_u32 s{S_H}, 0")
I("s_cbranch_scc1 L_end")
I(f"s_cmp_eq_u32 s{S_W}, 7")
I("s_cbranch_scc1 L_gate")
I(f"s_cmp_ge_u32 s{S_W}, 5")
I("s_cbranch_scc1 L_fin_bar")
divmod_const(a2, a3, V_T, 40, 1639)
I(f"v_lshlrev_b32 v{a2}, 13, v{a2}")
I(f"v_lshl_add_u32 v{a2}, v{a3}, 4, v{a2}")
I(f"s_lshl_b32 s{S_T0}, s{S_S}, 16")
I(f"s_add_u32 s{S_T1}, s{S_T0}, 4096")
e("L_ap_poll:")
I(f"buffer_load_dwordx4 v[{BIG}:{BIG+3}], v{a2}, s[{SRD_WS}:{SRD_WS+3}], s{S_T0} offen offset:{AP_OFF} sc1")
I(f"buffer_load_dwordx4 v[{BIG+4}:{BIG+7}], v{a2}, s[{SRD_WS}:{SRD_WS+3}], s{S_T0} offen offset:{AP_OFF+2048} sc1")
I(f"buffer_load_dwordx4 v[{BIG+8}:{BIG+11}], v{a2}, s[{SRD_WS}:{SRD_WS+3}], s{S_T1} offen offset:{AP_OFF} sc1")
I(f"buffer_load_dwordx4 v[{BIG+12}:{BIG+15}], v{a2}, s[{SRD_WS}:{SRD_WS+3}], s{S_T1} offen offset:{AP_OFF+2048} sc1")
I("s_waitcnt vmcnt(0)")
poll_check(list(range(BIG, BIG + 16)), "L_ap_poll", "L_ap_done", a4)
e("L_ap_done:")
for k in range(4):
    I(f"v_add_f32 v{BIG+k}, v{BIG+k}, v{BIG+4+k}")
    I(f"v_add_f32 v{BIG+8+k}, v{BIG+8+k}, v{BIG+12+k}")
for k in range(4):
    I(f"v_add_f32 v{BIG+k}, v{BIG+k}, v{BIG+8+k}")
I(f"v_lshlrev_b32 v{a1}, 4, v{V_T}")
I(f"ds_write_b128 v{a1}, v[{BIG}:{BIG+3}] offset:{L_FR}")
I("s_branch L_fin_bar")
e("L_gate:")
I(f"v_lshlrev_b32 v{a1}, 5, v{V_LANE}")
I(f"buffer_load_dwordx4 v[{BIG}:{BIG+3}], v{a1}, s[{SRD_X}:{SRD_X+3}], 0 offen")
I(f"buffer_load_dwordx4 v[{BIG+4}:{BIG+7}], v{a1}, s[{SRD_X}:{SRD_X+3}], 0 offen offset:16")
I(f"buffer_load_dwordx4 v[{BIG+8}:{BIG+11}], v{a1}, s[{SRD_GW}:{SRD_GW+3}], 0 offen")
I(f"buffer_load_dwordx4 v[{BIG+12}:{BIG+15}], v{a1}, s[{SRD_GW}:{SRD_GW+3}], 0 offen offset:16")
I(f"v_mov_b32 v{a2}, 0")
I("s_waitcnt vmcnt(0)")
for k in range(8):
    I(f"v_lshlrev_b32 v{a3}, 16, v{BIG+k}")
    I(f"v_lshlrev_b32 v{a4}, 16, v{BIG+8+k}")
    I(f"v_and_b32 v{a5}, 0xffff0000, v{BIG+k}")
    I(f"v_and_b32 v{a6}, 0xffff0000, v{BIG+8+k}")
    I(f"v_mul_f32 v{a3}, v{a3}, v{a4}")
    I(f"v_mul_f32 v{a5}, v{a5}, v{a6}")
    I(f"v_cvt_pk_bf16_f32 v{a3}, v{a3}, v{a5}")
    I(f"v_lshlrev_b32 v{a4}, 16, v{a3}")
    I(f"v_and_b32 v{a5}, 0xffff0000, v{a3}")
    I(f"v_add_f32 v{a2}, v{a2}, v{a4}")
    I(f"v_add_f32 v{a2}, v{a2}, v{a5}")
I(f"v_lshlrev_b32 v{a1}, 2, v{V_LANE}")
for m in (1, 2, 4, 8, 16, 32):
    I(f"v_xor_b32 v{a3}, {4*m}, v{a1}")
    I(f"ds_bpermute_b32 v{a4}, v{a3}, v{a2}")
    I("s_waitcnt lgkmcnt(0)")
    I(f"v_add_f32 v{a2}, v{a2}, v{a4}")
rbf(a2, a6)
I(f"v_mul_f32 v{a2}, s{S_LOG2E}, v{a2}")
I(f"v_sub_f32 v{a2}, 0, v{a2}")
I(f"v_exp_f32 v{a2}, v{a2}")
I("s_nop 0")
I(f"v_add_f32 v{a2}, 1.0, v{a2}")
I(f"v_rcp_f32 v{a2}, v{a2}")
I("s_nop 0")
rbf(a2, a6)
I(f"v_mov_b32 v{a1}, 0")
I(f"ds_write_b32 v{a1}, v{a2} offset:{L_GATE}")
e("L_fin_bar:")
I("s_waitcnt lgkmcnt(0)")
I("s_barrier")
I(f"s_cmp_ge_u32 s{S_W}, 2")
I("s_cbranch_scc1 L_end")
I(f"v_min_u32 v{a1}, 79, v{V_T}")
I(f"v_lshlrev_b32 v{a1}, 2, v{a1}")
I(f"v_mov_b32 v{a5}, 0")
for hg in range(8):
    I(f"ds_read_b32 v{BIG+hg}, v{a1} offset:{L_FR + hg*640}")
    I(f"ds_read_b32 v{BIG+8+hg}, v{a1} offset:{L_FR + hg*640 + 320}")
I(f"ds_read_b32 v{a7}, v{a5} offset:{L_GATE}")
I("s_waitcnt lgkmcnt(0)")
I(f"v_add_f32 v{a2}, v{BIG}, v{BIG+1}")
I(f"v_add_f32 v{a3}, v{BIG+8}, v{BIG+9}")
for p in range(2, 8):
    I(f"v_add_f32 v{a2}, v{a2}, v{BIG+p}")
    I(f"v_add_f32 v{a3}, v{a3}, v{BIG+8+p}")
rbf(a2, a6)
rbf(a3, a6)
I(f"v_sub_f32 v{a4}, 1.0, v{a7}")
rbf(a4, a6)
I(f"v_mul_f32 v{a2}, v{a7}, v{a2}")
I(f"v_mul_f32 v{a3}, v{a4}, v{a3}")
rbf(a2, a6)
rbf(a3, a6)
I(f"v_add_f32 v{a2}, v{a2}, v{a3}")
I(f"v_cvt_pk_bf16_f32 v{a2}, v{a2}, v{a2}")
I(f"s_mul_i32 s{S_T0}, s{S_S}, 160")
I(f"v_lshlrev_b32 v{a1}, 1, v{V_T}")
I(f"v_cmp_gt_u32 vcc, 80, v{V_T}")
I(f"v_mov_b32 v{a6}, {OOB}")
I("s_nop 0")
I(f"v_cndmask_b32 v{a1}, v{a6}, v{a1}, vcc")
I(f"buffer_store_short v{a2}, v{a1}, s[{SRD_OUT}:{SRD_OUT+3}], s{S_T0} offen")
e("L_end:")
I("s_endpgm")
e('.section .rodata,"a"')
e(".p2align 6")
e(f".amdhsa_kernel {NAME}_kernel")
e("  .amdhsa_next_free_vgpr 256")
e("  .amdhsa_next_free_sgpr 102")
e("  .amdhsa_accum_offset 256")
e("  .amdhsa_group_segment_fixed_size 0")
e("  .amdhsa_kernarg_size 104")
e("  .amdhsa_user_sgpr_count 2")
e("  .amdhsa_user_sgpr_kernarg_segment_ptr 1")
e("  .amdhsa_system_sgpr_workgroup_id_x 1")
e(".end_amdhsa_kernel")

open(OUTFILE, "w").write("\n".join(out) + "\n")
print("wrote", OUTFILE, len(out), "lines")
```

```python
import sys

NAME = "gated_mix__gqa_block_cached__glu_gated_bilinear__decode"
HEADER = open("cdna_kernels/%s.s.ref" % NAME).read().split("; Override launch geometry")[0]

out = []
def e(s=""):
    out.append(s)
def I(s):
    out.append("    " + s)

NT = " nt" if "--nt" in sys.argv else ""
STAMP = "--stamp" in sys.argv
OUTFILE = "cdna_kernels/%s.s" % NAME
for a in sys.argv[1:]:
    if a.startswith("--out="):
        OUTFILE = a[6:]

KV_BYTES = 100663296
WQ_BYTES = 640 * 6144 * 2
WO_BYTES = 6144 * 640 * 2
WD_BYTES = 1536 * 640 * 2
WS_BYTES = 402653184
OOB = 0x7f000000
QP_OFF, OP_OFF, AP_OFF = 0, 1152, 2048
L_FLAG = 51200
L_QR = 0
L_GR = 15360
L_PART = 0
L_QB = 34816
L_OPR = 35328
L_GUR = 41600
L_OF = 44672
L_GATE = 45632
L_RED = 0
L_FR = 46080
LDS_BYTES = 51456

S_WG = 2
S_H, S_S, S_W = 3, 62, 63
SRD_K, SRD_V, SRD_WQ, SRD_WO, SRD_WD, SRD_WS, SRD_X, SRD_DBG = 4, 8, 12, 16, 20, 24, 28, 32
KA0 = 36
S_MHI = 64
S_T0, S_T1, S_T2, S_T3 = 66, 67, 68, 69
S_EX = 70
S_BASE = 72
S_NA, S_NB = 73, 74
S_IT = 75
S_SCALE, S_LOG2E = 76, 77
S_WSB = 78
S_M480 = 80
S_C1 = 82
SRD_GW, SRD_OUT = 84, 88
S_WGP, S_WUP = 92, 94
S_ST = 96

V_T, V_LANE, V_G, V_I, V_OK, V_OV1, V_OV2 = 0, 1, 2, 3, 4, 5, 6
A = [7, 8, 9, 10, 11, 12, 13, 14, 15]
KA, VA, KB, VB = 16, 40, 64, 88
STG = 64
XR = 192
GU = 208
XG = 216
AQ = 220
AG = 228
V_SL, V_C, V_SL2, V_C2 = 236, 237, 238, 239
V_NEG = 240
QF = 112
ACC = 136
WR = 152
D = 172
P = 176
VM, VL = 180, 181
T2 = 182
V_OW = 200
BIG = 16


def srd(dst, lo, hi, nbytes):
    I(f"s_mov_b32 s{dst}, s{lo}")
    I(f"s_and_b32 s{dst+1}, s{hi}, 0xffff")
    I(f"s_mov_b32 s{dst+2}, {nbytes}")
    I(f"s_mov_b32 s{dst+3}, 0x00020000")


def divmod_const(vq, vr, vsrc, d, magic):
    I(f"v_mul_u32_u24 v{vq}, {magic}, v{vsrc}")
    I(f"v_lshrrev_b32 v{vq}, 16, v{vq}")
    I(f"v_mul_u32_u24 v{vr}, {d}, v{vq}")
    I(f"v_sub_u32 v{vr}, v{vsrc}, v{vr}")


stamp_n = [0]
def stamp(tag):
    if not STAMP:
        return
    n = stamp_n[0]; stamp_n[0] += 1
    assert n < 12
    I(f"s_memrealtime s[{KA0+2*n}:{KA0+2*n+1}]")
    I("s_waitcnt lgkmcnt(0)")


def dump_stamps():
    if not STAMP:
        return
    I(f"s_cmp_lg_u32 s{S_W}, 0")
    I(f"s_cbranch_scc1 L_end")
    I(f"s_lshl_b32 s{S_ST}, s{S_WG}, 8")
    I(f"s_add_u32 s{S_ST}, s{S_ST}, {0x1000000}")
    I(f"v_mov_b32 v252, s{S_ST}")
    I(f"v_cmp_eq_u32 vcc, 0, v{V_LANE}")
    I(f"s_and_saveexec_b64 s[{S_ST}:{S_ST+1}], vcc")
    for n in range(stamp_n[0]):
        I(f"v_mov_b32 v250, s{KA0+2*n}")
        I(f"v_mov_b32 v251, s{KA0+2*n+1}")
        I(f"buffer_store_dwordx2 v[250:251], v252, s[{SRD_WS}:{SRD_WS+3}], 0 offen offset:{8*n}")
        I("s_nop 2")


def fma_chunk(acc, data, scal, tmp, first=False):
    for j in range(4):
        I(f"v_lshlrev_b32 v{tmp}, 16, v{data+j}")
        I(f"v_and_b32 v{tmp+1}, 0xffff0000, v{data+j}")
        op = "v_mul_f32" if first else "v_fmac_f32"
        I(f"{op} v{acc+2*j}, v{scal}, v{tmp}")
        I(f"{op} v{acc+2*j+1}, v{scal}, v{tmp+1}")


def canon(v, tmp):
    I(f"v_cmp_eq_u32 vcc, -1, v{v}")
    I(f"v_mov_b32 v{tmp}, 0x7fc00000")
    I("s_nop 1")
    I(f"v_cndmask_b32 v{v}, v{v}, v{tmp}, vcc")


def rbf(v, tmp):
    I(f"v_cvt_pk_bf16_f32 v{tmp}, v{v}, v{v}")
    I(f"v_lshlrev_b32 v{v}, 16, v{tmp}")


def load_k(slot, soff):
    for j in range(6):
        I(f"buffer_load_dwordx4 v[{slot+4*j}:{slot+4*j+3}], v{V_OK}, s[{SRD_K}:{SRD_K+3}], s{soff} offen offset:{j*64}{NT}")


def load_v(slot, soff):
    for r in range(4):
        I(f"buffer_load_dwordx4 v[{slot+4*r}:{slot+4*r+3}], v{V_OV1}, s[{SRD_V}:{SRD_V+3}], s{soff} offen offset:{r*384}{NT}")
    for r in range(2):
        I(f"buffer_load_dwordx4 v[{slot+16+4*r}:{slot+16+4*r+3}], v{V_OV2}, s[{SRD_V}:{SRD_V+3}], s{soff} offen offset:{r*768}{NT}")


def poll_check(regs, lab_retry, lab_done, tmp):
    cur = regs[0]
    rest = list(regs[1:])
    while rest:
        if len(rest) >= 2:
            I(f"v_max3_u32 v{tmp}, v{cur}, v{rest[0]}, v{rest[1]}")
            rest = rest[2:]
        else:
            I(f"v_max_u32 v{tmp}, v{cur}, v{rest[0]}")
            rest = rest[1:]
        cur = tmp
    I(f"v_cmp_eq_u32 vcc, -1, v{cur}")
    I("s_nop 4")
    I(f"s_cbranch_vccz {lab_done}")
    I("s_sleep 2")
    I(f"s_branch {lab_retry}")


def mask_lt(n, save=S_EX):
    I(f"v_cmp_gt_u32 vcc, {n}, v{V_T}")
    I(f"s_and_saveexec_b64 s[{save}:{save+1}], vcc")


def unmask(save=S_EX):
    I(f"s_mov_b64 exec, s[{save}:{save+1}]")


e(HEADER.rstrip("\n"))
e("; Override launch geometry by editing the next line (default: block=256,")
e(f"; @launch grid=(256,1,1) block=(512,1,1) lds={LDS_BYTES}")
e('.amdgcn_target "amdgcn-amd-amdhsa--gfx950"')
e(".text")
e(f".globl {NAME}_kernel")
e(".p2align 8")
e(f".type {NAME}_kernel,@function")
e(f"{NAME}_kernel:")
I(f"s_cmp_ge_u32 s{S_WG}, 256")
I("s_cbranch_scc1 L_end")
I(f"s_load_dwordx16 s[{KA0}:{KA0+15}], s[0:1], 0")
I(f"s_load_dwordx8 s[{KA0+16}:{KA0+23}], s[0:1], 64")
I(f"s_load_dwordx2 s[{KA0+24}:{KA0+25}], s[0:1], 96")
a0, a1, a2, a3, a4, a5, a6, a7, a8 = A
I(f"v_and_b32 v{V_LANE}, 63, v{V_T}")
I(f"v_lshrrev_b32 v{a0}, 6, v{V_T}")
I(f"v_lshrrev_b32 v{V_G}, 4, v{V_LANE}")
I(f"v_and_b32 v{V_I}, 15, v{V_LANE}")
I(f"v_readfirstlane_b32 s{S_W}, v{a0}")
I(f"s_and_b32 s{S_H}, s{S_WG}, 31")
I(f"s_lshr_b32 s{S_S}, s{S_WG}, 5")
I(f"s_lshl_b32 s{S_WSB}, s{S_WG}, 12")
I(f"v_mul_u32_u24 v{V_OK}, 384, v{V_I}")
I(f"v_lshl_add_u32 v{V_OK}, v{V_G}, 4, v{V_OK}")
I(f"v_mul_u32_u24 v{a1}, 1536, v{V_G}")
I(f"v_lshl_add_u32 v{V_OV1}, v{V_I}, 4, v{a1}")
I(f"v_lshrrev_b32 v{a2}, 3, v{V_I}")
I(f"v_mul_u32_u24 v{a2}, 384, v{a2}")
I(f"v_and_b32 v{a3}, 7, v{V_I}")
I(f"v_lshlrev_b32 v{a3}, 4, v{a3}")
I(f"v_add3_u32 v{V_OV2}, v{a1}, v{a2}, v{a3}")
I(f"v_add_u32 v{V_OV2}, 256, v{V_OV2}")
I(f"v_cmp_lt_u32 s[{S_MHI}:{S_MHI+1}], 7, v{V_I}")
I(f"v_cmp_gt_u32 vcc, 480, v{V_T}")
I(f"s_mov_b64 s[{S_M480}:{S_M480+1}], vcc")
I(f"s_mov_b32 s{S_SCALE}, 0x3d93cd3a")
I(f"s_mov_b32 s{S_LOG2E}, 0x3fb8aa3b")
divmod_const(V_SL, V_C, V_T, 24, 2731)
divmod_const(V_SL2, V_C2, V_T, 12, 5462)
for k in range(4):
    I(f"v_mov_b32 v{V_NEG+k}, -1")
I("s_waitcnt lgkmcnt(0)")
kp = lambda n: (KA0 + 2 * n, KA0 + 2 * n + 1)
srd(SRD_WS, *kp(12), WS_BYTES)
srd(SRD_X, *kp(0), 1280)
srd(SRD_WQ, *kp(3), WQ_BYTES)
srd(SRD_K, *kp(1), KV_BYTES)
srd(SRD_V, *kp(2), KV_BYTES)
srd(SRD_WO, *kp(4), WO_BYTES)
srd(SRD_WD, *kp(8), WD_BYTES)
srd(SRD_GW, *kp(9), 1280)
srd(SRD_OUT, *kp(10), 1280)
srd(SRD_DBG, *kp(11), 256)
I(f"s_mov_b64 s[{S_WGP}:{S_WGP+1}], s[{kp(6)[0]}:{kp(6)[1]}]")
I(f"s_mov_b64 s[{S_WUP}:{S_WUP+1}], s[{kp(7)[0]}:{kp(7)[1]}]")
stamp("start")
I(f"s_mul_i32 s{S_BASE}, s{S_H}, 3145728")
I(f"s_mul_i32 s{S_T0}, s{S_S}, 393216")
I(f"s_add_u32 s{S_BASE}, s{S_BASE}, s{S_T0}")
I(f"s_mul_i32 s{S_T0}, s{S_W}, 49152")
I(f"s_add_u32 s{S_BASE}, s{S_BASE}, s{S_T0}")

I(f"v_mov_b32 v{a8}, {OOB}")
I(f"v_lshl_add_u32 v{a0}, v{V_T}, 4, s{S_WSB}")
I(f"v_cmp_gt_u32 vcc, 96, v{V_T}")
I(f"v_mov_b32 v{a2}, 0")
I(f"v_mov_b32 v{a3}, 0")
I(f"v_cndmask_b32 v{a0}, v{a8}, v{a0}, vcc")
I(f"buffer_store_dwordx4 v[{V_NEG}:{V_NEG+3}], v{a0}, s[{SRD_WS}:{SRD_WS+3}], 0 offen offset:{OP_OFF} sc1")
I(f"v_mov_b32 v{a1}, {L_FLAG}")
I(f"ds_write_b64 v{a1}, v[{a2}:{a3}]") if a2 % 2 == 0 else (I(f"ds_write_b32 v{a1}, v{a2}"), I(f"ds_write_b32 v{a1}, v{a2} offset:4"))
I(f"s_mul_i32 s{S_T0}, s{S_S}, 160")
I(f"v_lshlrev_b32 v{a1}, 3, v{V_SL}")
I(f"v_cndmask_b32 v{a1}, v{a8}, v{a1}, s[{S_M480}:{S_M480+1}]")
I(f"buffer_load_dwordx2 v[{XR}:{XR+1}], v{a1}, s[{SRD_X}:{SRD_X+3}], s{S_T0} offen")
I(f"v_lshlrev_b32 v{a2}, 2, v{V_SL2}")
I(f"v_cndmask_b32 v{a2}, v{a8}, v{a2}, s[{S_M480}:{S_M480+1}]")
I(f"buffer_load_dword v{XG}, v{a2}, s[{SRD_X}:{SRD_X+3}], s{S_T0} offen")
I(f"v_mul_u32_u24 v{a0}, {4*12288 // 16}, v{V_SL}")
I(f"v_add_u32 v{a0}, v{a0}, v{V_C}")
I(f"v_lshlrev_b32 v{a0}, 4, v{a0}")
I(f"v_cndmask_b32 v{a0}, v{a8}, v{a0}, s[{S_M480}:{S_M480+1}]")
I(f"s_mul_i32 s{S_T0}, s{S_H}, 384")
I(f"s_mul_i32 s{S_T1}, s{S_S}, {80*12288}")
I(f"s_add_u32 s{S_T0}, s{S_T0}, s{S_T1}")
for k in range(4):
    I(f"buffer_load_dwordx4 v[{STG+4*k}:{STG+4*k+3}], v{a0}, s[{SRD_WQ}:{SRD_WQ+3}], s{S_T0} offen")
    if k != 3:
        I(f"s_add_u32 s{S_T0}, s{S_T0}, 12288")
I(f"v_min_u32 v{a3}, 39, v{V_SL2}")
I(f"v_cmp_gt_u32 vcc, 6, v{V_C2}")
I(f"v_subrev_u32 v{a4}, 6, v{V_C2}")
I(f"v_mov_b32 v{a5}, s{S_WUP}")
I(f"v_mov_b32 v{a6}, s{S_WUP+1}")
I(f"v_cndmask_b32 v{a4}, v{a4}, v{V_C2}, vcc")
I(f"v_mov_b32 v{a0}, s{S_WGP}")
I(f"v_mov_b32 v{a1}, s{S_WGP+1}")
I(f"v_cndmask_b32 v{a5}, v{a5}, v{a0}, vcc")
I(f"v_cndmask_b32 v{a6}, v{a6}, v{a1}, vcc")
I(f"s_mul_i32 s{S_T0}, s{S_S}, {80*3072}")
I(f"s_mul_i32 s{S_T1}, s{S_H}, 96")
I(f"s_add_u32 s{S_T0}, s{S_T0}, s{S_T1}")
I(f"v_mul_u32_u24 v{a3}, 6144, v{a3}")
I(f"v_lshl_add_u32 v{a3}, v{a4}, 4, v{a3}")
I(f"v_add_u32 v{a3}, s{S_T0}, v{a3}")
I(f"v_add_co_u32 v244, vcc, v{a5}, v{a3}")
I("s_nop 1")
I(f"v_addc_co_u32 v245, vcc, 0, v{a6}, vcc")
I(f"global_load_dwordx4 v[{GU}:{GU+3}], v[244:245], off")
I(f"global_load_dwordx4 v[{GU+4}:{GU+7}], v[244:245], off offset:3072")
load_k(KA, S_BASE)
divmod_const(V_OW + 1, a3, V_T, 10, 6554)
I(f"v_mul_u32_u24 v{V_OW}, 1280, v{V_OW+1}")
I(f"v_lshl_add_u32 v{V_OW}, v{a3}, 4, v{V_OW}")
I(f"v_cndmask_b32 v{V_OW}, v{a8}, v{V_OW}, s[{S_M480}:{S_M480+1}]")
I(f"s_add_u32 s{S_NA}, s{S_BASE}, 6144")
def load_w():
    I(f"s_mul_i32 s{S_T0}, s{S_H}, {192*1280}")
    I(f"s_mul_i32 s{S_T1}, s{S_S}, 160")
    I(f"s_add_u32 s{S_T0}, s{S_T0}, s{S_T1}")
    for i in range(4):
        I(f"buffer_load_dwordx4 v[{WR+4*i}:{WR+4*i+3}], v{V_OW}, s[{SRD_WO}:{SRD_WO+3}], s{S_T0} offen")
        if i != 3:
            I(f"s_add_u32 s{S_T0}, s{S_T0}, {48*1280}")
    I(f"s_mul_i32 s{S_T0}, s{S_H}, {48*1280}")
    I(f"s_add_u32 s{S_T0}, s{S_T0}, s{S_T1}")
    I(f"buffer_load_dwordx4 v[{WR+16}:{WR+19}], v{V_OW}, s[{SRD_WD}:{SRD_WD+3}], s{S_T0} offen")
I("s_waitcnt vmcnt(8)")
for k in range(4):
    xs = XR + k // 2
    if k % 2 == 0:
        I(f"v_lshlrev_b32 v{a1}, 16, v{xs}")
    else:
        I(f"v_and_b32 v{a1}, 0xffff0000, v{xs}")
    fma_chunk(AQ, STG + 4 * k, a1, a2, first=(k == 0))
I("s_waitcnt vmcnt(6)")
I(f"v_lshlrev_b32 v{a1}, 16, v{XG}")
fma_chunk(AG, GU, a1, a2, first=True)
I(f"v_and_b32 v{a1}, 0xffff0000, v{XG}")
fma_chunk(AG, GU + 4, a1, a2)
I(f"v_mul_u32_u24 v{a1}, 768, v{V_SL}")
I(f"v_lshl_add_u32 v{a1}, v{V_C}, 5, v{a1}")
I(f"v_mul_u32_u24 v{a2}, 384, v{V_SL2}")
I(f"v_lshl_add_u32 v{a2}, v{V_C2}, 5, v{a2}")
I(f"s_mov_b64 s[{S_EX}:{S_EX+1}], exec")
I(f"s_mov_b64 exec, s[{S_M480}:{S_M480+1}]")
I(f"ds_write_b128 v{a1}, v[{AQ}:{AQ+3}] offset:{L_QR}")
I(f"ds_write_b128 v{a1}, v[{AQ+4}:{AQ+7}] offset:{L_QR+16}")
I(f"ds_write_b128 v{a2}, v[{AG}:{AG+3}] offset:{L_GR}")
I(f"ds_write_b128 v{a2}, v[{AG+4}:{AG+7}] offset:{L_GR+16}")
unmask()
I("s_waitcnt lgkmcnt(0)")
I("s_barrier")
stamp("b1")
I(f"s_cmp_lt_u32 s{S_W}, 5")
I("s_cbranch_scc1 L_a_wave")
load_v(VA, S_BASE)
load_k(KB, S_NA)
load_v(VB, S_NA)
load_w()
I("s_branch L_a_done")
e("L_a_wave:")
qregs = [T2 + sl if sl < 18 else 244 + sl - 18 for sl in range(20)]
I(f"v_lshlrev_b32 v{a1}, 2, v{V_T}")
I(f"s_cmp_ge_u32 s{S_W}, 3")
I("s_cbranch_scc1 L_a_notq")
for sl in range(20):
    I(f"ds_read_b32 v{qregs[sl]}, v{a1} offset:{L_QR + sl*768}")
I("s_waitcnt lgkmcnt(0)")
I(f"v_add_f32 v{a2}, v{qregs[0]}, v{qregs[1]}")
for r in qregs[2:]:
    I(f"v_add_f32 v{a2}, v{a2}, v{r}")
I("s_branch L_a_pub")
e("L_a_notq:")
I(f"v_subrev_u32 v{a3}, 768, v{a1}")
I(f"v_min_u32 v{a3}, 380, v{a3}")
for half in range(2):
    for sl in range(20):
        I(f"ds_read_b32 v{qregs[sl]}, v{a3} offset:{L_GR + (half*20+sl)*384}")
    I("s_waitcnt lgkmcnt(0)")
    if half == 0:
        I(f"v_add_f32 v{a2}, v{qregs[0]}, v{qregs[1]}")
        rest = qregs[2:]
    else:
        rest = qregs
    for r in rest:
        I(f"v_add_f32 v{a2}, v{a2}, v{r}")
e("L_a_pub:")
I(f"v_cmp_gt_u32 vcc, 288, v{V_T}")
I(f"v_add_u32 v{a3}, s{S_WSB}, v{a1}")
I("s_nop 0")
I(f"v_cndmask_b32 v{a3}, v{a8}, v{a3}, vcc")
I(f"v_cndmask_b32 v{a5}, v{a8}, v{a1}, vcc")
I(f"buffer_store_dword v{a2}, v{a3}, s[{SRD_WS}:{SRD_WS+3}], 0 offen offset:{QP_OFF} sc1")
I(f"v_mov_b32 v{a1}, {L_FLAG}")
I(f"v_mov_b32 v{a2}, 1")
I(f"s_lshl_b32 s{S_T1}, s{S_H}, 2")
I(f"v_mov_b32 v{a4}, s{S_T1}")
I("s_waitcnt vmcnt(0)")
I(f"v_cmp_eq_u32 vcc, 0, v{V_LANE}")
I(f"s_and_saveexec_b64 s[{S_EX}:{S_EX+1}], vcc")
I(f"ds_add_rtn_u32 v{a3}, v{a1}, v{a2}")
I("s_waitcnt lgkmcnt(0)")
I(f"v_readfirstlane_b32 s{S_T0}, v{a3}")
I(f"s_cmp_lg_u32 s{S_T0}, 4")
I("s_cbranch_scc1 L_a_noatom")
I(f"buffer_atomic_add v{a2}, v{a4}, s[{SRD_DBG}:{SRD_DBG+3}], 0 offen sc1")
e("L_a_noatom:")
unmask()
load_v(VA, S_BASE)
load_k(KB, S_NA)
I(f"s_cmp_lg_u32 s{S_W}, 0")
I("s_cbranch_scc1 L_a_lspin")
e("L_a_gpoll:")
I(f"buffer_load_dword v{a3}, v{a4}, s[{SRD_DBG}:{SRD_DBG+3}], 0 offen sc1")
I("s_waitcnt vmcnt(0)")
I(f"v_readfirstlane_b32 s{S_T0}, v{a3}")
I(f"s_cmp_ge_u32 s{S_T0}, 8")
I("s_cbranch_scc1 L_a_gok")
I("s_sleep 4")
I("s_branch L_a_gpoll")
e("L_a_gok:")
I(f"ds_write_b32 v{a1}, v{a2} offset:4")
I("s_branch L_a_gather")
e("L_a_lspin:")
I(f"ds_read_b32 v{a3}, v{a1} offset:4")
I("s_waitcnt lgkmcnt(0)")
I(f"v_readfirstlane_b32 s{S_T0}, v{a3}")
I(f"s_cmp_lg_u32 s{S_T0}, 0")
I("s_cbranch_scc1 L_a_gather")
I("s_sleep 1")
I("s_branch L_a_lspin")
e("L_a_gather:")
stamp("flag")
I(f"s_lshl_b32 s{S_T0}, s{S_H}, 12")
for p in range(8):
    I(f"buffer_load_dword v{T2+p}, v{a5}, s[{SRD_WS}:{SRD_WS+3}], s{S_T0} offen offset:{QP_OFF} sc1")
    if p != 7:
        I(f"s_add_u32 s{S_T0}, s{S_T0}, {32*4096}")
load_v(VB, S_NA)
load_w()
I("s_waitcnt vmcnt(11)")
I(f"v_add_f32 v{a2}, v{T2}, v{T2+1}")
for p in range(2, 8):
    I(f"v_add_f32 v{a2}, v{a2}, v{T2+p}")
I(f"v_cvt_pk_bf16_f32 v{a2}, v{a2}, v{a2}")
I(f"s_cmp_ge_u32 s{S_W}, 3")
I("s_cbranch_scc1 L_a_gus")
I(f"v_lshlrev_b32 v{a3}, 1, v{V_T}")
I(f"ds_write_b16 v{a3}, v{a2} offset:{L_QB}")
I("s_branch L_a_done")
e("L_a_gus:")
I(f"v_lshlrev_b32 v{a2}, 16, v{a2}")
I(f"v_lshlrev_b32 v{a3}, 2, v{V_T}")
I(f"v_cmp_gt_u32 vcc, 288, v{V_T}")
I(f"s_and_saveexec_b64 s[{S_EX}:{S_EX+1}], vcc")
I(f"ds_write_b32 v{a3}, v{a2} offset:{L_GUR - 768}")
unmask()
e("L_a_done:")
I("s_waitcnt lgkmcnt(0)")
I("s_barrier")
stamp("b2")
I(f"v_lshlrev_b32 v{a1}, 4, v{V_G}")
for j in range(6):
    I(f"ds_read_b128 v[{QF+4*j}:{QF+4*j+3}], v{a1} offset:{L_QB + 64*j}")
for k in range(16):
    I(f"v_mov_b32 v{ACC+k}, 0")
I(f"v_mov_b32 v{VM}, 0xff7fffff")
I(f"v_mov_b32 v{VL}, 0")
I(f"s_mov_b32 s{S_IT}, 0")
I(f"s_add_u32 s{S_NA}, s{S_BASE}, 12288")
I(f"s_add_u32 s{S_NB}, s{S_BASE}, 18432")
I("s_waitcnt lgkmcnt(0)")

def tile(KX, VX, soff):
    I("s_waitcnt vmcnt(18)")
    for j in range(6):
        c = "0" if j == 0 else f"v[{D}:{D+3}]"
        I(f"v_mfma_f32_16x16x32_bf16 v[{D}:{D+3}], v[{KX+4*j}:{KX+4*j+3}], v[{QF+4*j}:{QF+4*j+3}], {c}")
    load_k(KX, soff)
    I("s_nop 2")
    t0, t1 = T2, T2 + 1
    s = [T2 + 2, T2 + 3, T2 + 4, T2 + 5]
    I(f"v_cvt_pk_bf16_f32 v{t0}, v{D}, v{D+1}")
    I(f"v_cvt_pk_bf16_f32 v{t1}, v{D+2}, v{D+3}")
    I(f"v_lshlrev_b32 v{s[0]}, 16, v{t0}")
    I(f"v_and_b32 v{s[1]}, 0xffff0000, v{t0}")
    I(f"v_lshlrev_b32 v{s[2]}, 16, v{t1}")
    I(f"v_and_b32 v{s[3]}, 0xffff0000, v{t1}")
    for r in range(4):
        I(f"v_mul_f32 v{s[r]}, s{S_SCALE}, v{s[r]}")
    I(f"v_cvt_pk_bf16_f32 v{t0}, v{s[0]}, v{s[1]}")
    I(f"v_cvt_pk_bf16_f32 v{t1}, v{s[2]}, v{s[3]}")
    I(f"v_lshlrev_b32 v{s[0]}, 16, v{t0}")
    I(f"v_and_b32 v{s[1]}, 0xffff0000, v{t0}")
    I(f"v_lshlrev_b32 v{s[2]}, 16, v{t1}")
    I(f"v_and_b32 v{s[3]}, 0xffff0000, v{t1}")
    for r in range(4):
        I(f"v_mul_f32 v{s[r]}, s{S_LOG2E}, v{s[r]}")
    mn, al = T2 + 6, T2 + 7
    I(f"v_max3_f32 v{mn}, v{s[0]}, v{s[1]}, v{s[2]}")
    I(f"v_max3_f32 v{mn}, v{mn}, v{s[3]}, v{VM}")
    I(f"v_sub_f32 v{al}, v{VM}, v{mn}")
    for r in range(4):
        I(f"v_sub_f32 v{P+r}, v{s[r]}, v{mn}")
    I(f"v_exp_f32 v{al}, v{al}")
    for r in range(4):
        I(f"v_exp_f32 v{P+r}, v{P+r}")
    I(f"v_mov_b32 v{VM}, v{mn}")
    for k in range(16):
        I(f"v_mul_f32 v{ACC+k}, v{al}, v{ACC+k}")
    I(f"v_add_f32 v{t0}, v{P}, v{P+1}")
    I(f"v_add_f32 v{t1}, v{P+2}, v{P+3}")
    I(f"v_add_f32 v{t0}, v{t0}, v{t1}")
    I(f"v_fma_f32 v{VL}, v{VL}, v{al}, v{t0}")
    pa, pb = T2 + 8, T2 + 9
    I(f"v_cndmask_b32 v{pa}, v{P}, v{P+1}, s[{S_MHI}:{S_MHI+1}]")
    I(f"v_cndmask_b32 v{pb}, v{P+2}, v{P+3}, s[{S_MHI}:{S_MHI+1}]")
    I("s_waitcnt vmcnt(18)")
    for r in range(4):
        fma_chunk(ACC, VX + 4 * r, P + r, T2 + 10)
    fma_chunk(ACC + 8, VX + 16, pa, T2 + 10)
    fma_chunk(ACC + 8, VX + 20, pb, T2 + 10)
    load_v(VX, soff)

e("L_loop:")
I(f"s_cmp_lt_u32 s{S_IT}, 3")
I(f"s_cselect_b32 s{S_T0}, s{S_NA}, {OOB}")
I(f"s_cselect_b32 s{S_T1}, s{S_NB}, {OOB}")
tile(KA, VA, S_T0)
tile(KB, VB, S_T1)
I(f"s_add_u32 s{S_NA}, s{S_NA}, 12288")
I(f"s_add_u32 s{S_NB}, s{S_NB}, 12288")
I(f"s_add_u32 s{S_IT}, s{S_IT}, 1")
I(f"s_cmp_lt_u32 s{S_IT}, 4")
I("s_cbranch_scc1 L_loop")
stamp("loop_end")

I(f"s_lshl_b32 s{S_T0}, s{S_W}, 2")
I(f"v_add_u32 v{a1}, s{S_T0}, v{V_G}")
I(f"v_mul_u32_u24 v{a1}, 1040, v{a1}")
I(f"v_lshl_add_u32 v{a2}, v{V_I}, 5, v{a1}")
I(f"ds_write_b128 v{a2}, v[{ACC}:{ACC+3}] offset:{L_PART}")
I(f"ds_write_b128 v{a2}, v[{ACC+4}:{ACC+7}] offset:{L_PART+16}")
I(f"ds_write_b128 v{a2}, v[{ACC+8}:{ACC+11}] offset:{L_PART+512}")
I(f"ds_write_b128 v{a2}, v[{ACC+12}:{ACC+15}] offset:{L_PART+528}")
I(f"v_cmp_eq_u32 vcc, 0, v{V_I}")
I(f"s_and_saveexec_b64 s[{S_EX}:{S_EX+1}], vcc")
I(f"ds_write_b64 v{a1}, v[{VM}:{VM+1}] offset:{L_PART+1024}")
unmask()
I(f"s_cmp_lg_u32 s{S_W}, 5")
I("s_cbranch_scc1 L_t3_done")
I(f"v_lshlrev_b32 v{a1}, 2, v{V_LANE}")
e("L_t3_poll:")
I(f"buffer_load_dword v{a2}, v{a1}, s[{SRD_DBG}:{SRD_DBG+3}], 0 offen sc1")
I("s_waitcnt vmcnt(0)")
I(f"v_cmp_gt_u32 vcc, 8, v{a2}")
I(f"v_cmp_gt_u32 s[{S_C1}:{S_C1+1}], 32, v{V_LANE}")
I("s_nop 4")
I(f"s_and_b64 s[{S_C1}:{S_C1+1}], s[{S_C1}:{S_C1+1}], vcc")
I("s_cbranch_scc0 L_t3_done")
I("s_sleep 4")
I("s_branch L_t3_poll")
e("L_t3_done:")
I("s_waitcnt vmcnt(0) lgkmcnt(0)")
I("s_barrier")
I(f"s_cmp_ge_u32 s{S_W}, 3")
I("s_cbranch_scc1 L_t_gu")
I(f"v_mov_b32 v{a1}, 0")
for p in range(32):
    I(f"ds_read_b64 v[{BIG+2*p}:{BIG+2*p+1}], v{a1} offset:{L_PART + p*1040 + 1024}")
I("s_waitcnt lgkmcnt(0)")
I(f"v_max3_f32 v{a2}, v{BIG}, v{BIG+2}, v{BIG+4}")
for p in range(3, 31, 2):
    I(f"v_max3_f32 v{a2}, v{a2}, v{BIG+2*p}, v{BIG+2*p+2}")
I(f"v_max_f32 v{a2}, v{a2}, v{BIG+62}")
for p in range(32):
    I(f"v_sub_f32 v{BIG+2*p}, v{BIG+2*p}, v{a2}")
for p in range(32):
    I(f"v_exp_f32 v{BIG+2*p}, v{BIG+2*p}")
I("s_nop 0")
I(f"v_mul_f32 v{a3}, v{BIG}, v{BIG+1}")
for p in range(1, 32):
    I(f"v_fmac_f32 v{a3}, v{BIG+2*p}, v{BIG+2*p+1}")
I(f"v_lshlrev_b32 v{a1}, 2, v{V_T}")
I(f"s_cmp_eq_u32 s{S_W}, 2")
I("s_cbranch_scc1 L_t2_hi")
for p in range(32):
    I(f"ds_read_b32 v{BIG+2*p+1}, v{a1} offset:{L_PART + p*1040}")
I("s_waitcnt lgkmcnt(0)")
I(f"v_mul_f32 v{a4}, v{BIG}, v{BIG+1}")
for p in range(1, 32):
    I(f"v_fmac_f32 v{a4}, v{BIG+2*p}, v{BIG+2*p+1}")
I("s_branch L_t2_pub")
e("L_t2_hi:")
for p in range(32):
    I(f"ds_read_b32 v{BIG+2*p+1}, v{a1} offset:{L_PART + p*1040}")
for p in range(32):
    I(f"ds_read_b32 v{BIG+64+p}, v{a1} offset:{L_PART + p*1040 + 256}")
I("s_waitcnt lgkmcnt(0)")
for p in range(32):
    I(f"v_add_f32 v{BIG+2*p+1}, v{BIG+2*p+1}, v{BIG+64+p}")
I(f"v_mul_f32 v{a4}, v{BIG}, v{BIG+1}")
for p in range(1, 32):
    I(f"v_fmac_f32 v{a4}, v{BIG+2*p}, v{BIG+2*p+1}")
e("L_t2_pub:")
canon(a4, a5)
I(f"v_add_u32 v{a1}, s{S_WSB}, v{a1}")
I(f"buffer_store_dword v{a4}, v{a1}, s[{SRD_WS}:{SRD_WS+3}], 0 offen offset:{OP_OFF} sc1")
canon(a2, a5)
canon(a3, a5)
I(f"v_cmp_eq_u32 vcc, 0, v{V_T}")
I(f"v_mov_b32 v{a5}, 0")
I("s_nop 0")
I(f"v_cndmask_b32 v{a5}, v{a5}, v{a2}, vcc")
I(f"v_cmp_eq_u32 vcc, 1, v{V_T}")
I("s_nop 1")
I(f"v_cndmask_b32 v{a5}, v{a5}, v{a3}, vcc")
I(f"v_cmp_gt_u32 vcc, 4, v{V_T}")
I(f"v_mov_b32 v{a6}, {OOB}")
I("s_nop 0")
I(f"v_cndmask_b32 v{a1}, v{a6}, v{a1}, vcc")
I(f"buffer_store_dword v{a5}, v{a1}, s[{SRD_WS}:{SRD_WS+3}], 0 offen offset:{OP_OFF+768} sc1")
e("L_t_gu:")
I(f"v_mov_b32 v{a6}, {OOB}")
divmod_const(a2, a3, V_T, 49, 1338)
I(f"v_lshlrev_b32 v{a2}, 17, v{a2}")
I(f"v_lshl_add_u32 v{a2}, v{a3}, 4, v{a2}")
I(f"v_cmp_gt_u32 vcc, 392, v{V_T}")
I(f"s_lshl_b32 s{S_T0}, s{S_H}, 12")
I("s_nop 0")
I(f"v_cndmask_b32 v{a2}, v{a6}, v{a2}, vcc")
I(f"s_cmp_eq_u32 s{S_W}, 7")
I("s_cbranch_scc1 L_op_skip")
e("L_op_poll:")
I(f"buffer_load_dwordx4 v[{BIG}:{BIG+3}], v{a2}, s[{SRD_WS}:{SRD_WS+3}], s{S_T0} offen offset:{OP_OFF} sc1")
I("s_waitcnt vmcnt(0)")
poll_check([BIG, BIG + 1, BIG + 2, BIG + 3], "L_op_poll", "L_op_done", a4)
e("L_op_done:")
I(f"v_lshlrev_b32 v{a1}, 4, v{V_T}")
mask_lt(392)
I(f"ds_write_b128 v{a1}, v[{BIG}:{BIG+3}] offset:{L_OPR}")
unmask()
e("L_op_skip:")
I("s_waitcnt lgkmcnt(0)")
I("s_barrier")
stamp("b4")
I(f"s_cmp_gt_u32 s{S_W}, 3")
I("s_cbranch_scc1 L_t5b")
I(f"s_cmp_eq_u32 s{S_W}, 3")
I("s_cbranch_scc1 L_t5h")
I(f"v_mov_b32 v{a1}, 0")
I(f"v_lshlrev_b32 v{a5}, 2, v{V_T}")
for p in range(8):
    I(f"ds_read_b64 v[{BIG+2*p}:{BIG+2*p+1}], v{a1} offset:{L_OPR + p*784 + 768}")
for p in range(8):
    I(f"ds_read_b32 v{BIG+16+p}, v{a5} offset:{L_OPR + p*784}")
I("s_waitcnt lgkmcnt(0)")
I(f"v_max3_f32 v{a2}, v{BIG}, v{BIG+2}, v{BIG+4}")
I(f"v_max3_f32 v{a2}, v{a2}, v{BIG+6}, v{BIG+8}")
I(f"v_max3_f32 v{a2}, v{a2}, v{BIG+10}, v{BIG+12}")
I(f"v_max_f32 v{a2}, v{a2}, v{BIG+14}")
for p in range(8):
    I(f"v_sub_f32 v{BIG+2*p}, v{BIG+2*p}, v{a2}")
for p in range(8):
    I(f"v_exp_f32 v{BIG+2*p}, v{BIG+2*p}")
I("s_nop 0")
I(f"v_mul_f32 v{a3}, v{BIG}, v{BIG+1}")
I(f"v_mul_f32 v{a4}, v{BIG}, v{BIG+16}")
for p in range(1, 8):
    I(f"v_fmac_f32 v{a3}, v{BIG+2*p}, v{BIG+2*p+1}")
    I(f"v_fmac_f32 v{a4}, v{BIG+2*p}, v{BIG+16+p}")
I(f"v_rcp_f32 v{a3}, v{a3}")
I("s_nop 0")
I(f"v_mul_f32 v{a4}, v{a4}, v{a3}")
rbf(a4, a6)
I(f"ds_write_b32 v{a5}, v{a4} offset:{L_OF}")
I("s_branch L_t5b")
e("L_t5h:")
I(f"v_lshlrev_b32 v{a5}, 2, v{V_LANE}")
I(f"v_min_u32 v{a5}, 188, v{a5}")
I(f"ds_read_b32 v{a2}, v{a5} offset:{L_GUR}")
I(f"ds_read_b32 v{a3}, v{a5} offset:{L_GUR + 192}")
I("s_waitcnt lgkmcnt(0)")
I(f"v_mul_f32 v{a2}, v{a2}, v{a3}")
rbf(a2, a6)
I(f"v_cmp_gt_u32 vcc, 48, v{V_LANE}")
I(f"s_and_saveexec_b64 s[{S_EX}:{S_EX+1}], vcc")
I(f"ds_write_b32 v{a5}, v{a2} offset:{L_OF+768}")
unmask()
e("L_t5b:")
I("s_waitcnt lgkmcnt(0)")
I("s_barrier")
I(f"v_min_u32 v{a1}, 47, v{V_OW+1}")
I(f"v_lshlrev_b32 v{a1}, 2, v{a1}")
for i in range(4):
    I(f"ds_read_b32 v{BIG+i}, v{a1} offset:{L_OF + 192*i}")
I(f"ds_read_b32 v{BIG+4}, v{a1} offset:{L_OF + 768}")
I("s_waitcnt lgkmcnt(0)")
for i in range(4):
    fma_chunk(BIG + 8, WR + 4 * i, BIG + i, a2, first=(i == 0))
fma_chunk(BIG + 16, WR + 16, BIG + 4, a2, first=True)
I(f"v_lshlrev_b32 v{a1}, 6, v{V_T}")
I(f"s_mov_b64 s[{S_EX}:{S_EX+1}], exec")
I(f"s_mov_b64 exec, s[{S_M480}:{S_M480+1}]")
for k in range(4):
    I(f"ds_write_b128 v{a1}, v[{BIG+8+4*k}:{BIG+11+4*k}] offset:{L_RED + 16*k}")
unmask()
I("s_waitcnt lgkmcnt(0)")
I("s_barrier")
I(f"s_cmp_ge_u32 s{S_W}, 3")
I("s_cbranch_scc1 L_t6")
I(f"v_min_u32 v{a1}, 159, v{V_T}")
I(f"v_cmp_lt_u32 vcc, 79, v{a1}")
I(f"v_subrev_u32 v{a2}, 80, v{a1}")
I("s_nop 0")
I(f"v_cndmask_b32 v{a2}, v{a1}, v{a2}, vcc")
I(f"v_cndmask_b32 v{a3}, 0, 32, vcc")
I(f"v_lshrrev_b32 v{a4}, 3, v{a2}")
I(f"v_and_b32 v{a2}, 7, v{a2}")
I(f"v_lshl_add_u32 v{a3}, v{a4}, 6, v{a3}")
I(f"v_lshl_add_u32 v{a3}, v{a2}, 2, v{a3}")
for sl in range(48):
    I(f"ds_read_b32 v{BIG+sl}, v{a3} offset:{L_RED + sl*640}")
I("s_waitcnt lgkmcnt(0)")
for k in range(0, 48, 4):
    I(f"v_add_f32 v{BIG+k}, v{BIG+k}, v{BIG+k+1}")
    I(f"v_add_f32 v{BIG+k+2}, v{BIG+k+2}, v{BIG+k+3}")
    I(f"v_add_f32 v{BIG+k}, v{BIG+k}, v{BIG+k+2}")
for k in range(4, 48, 4):
    I(f"v_add_f32 v{BIG}, v{BIG}, v{BIG+k}")
canon(BIG, a5)
I(f"v_lshl_add_u32 v{a1}, v{V_T}, 2, s{S_WSB}")
I(f"v_cmp_gt_u32 vcc, 160, v{V_T}")
I(f"v_mov_b32 v{a6}, {OOB}")
I("s_nop 0")
I(f"v_cndmask_b32 v{a1}, v{a6}, v{a1}, vcc")
I(f"buffer_store_dword v{BIG}, v{a1}, s[{SRD_WS}:{SRD_WS+3}], 0 offen offset:{AP_OFF} sc1")
e("L_t6:")
stamp("t6")
I(f"s_cmp_lg_u32 s{S_H}, 0")
I("s_cbranch_scc1 L_fin")
I(f"s_cmp_eq_u32 s{S_W}, 7")
I("s_cbranch_scc1 L_gate")
I(f"s_cmp_ge_u32 s{S_W}, 5")
I("s_cbranch_scc1 L_fin_bar")
divmod_const(a2, a3, V_T, 40, 1639)
I(f"v_lshlrev_b32 v{a2}, 14, v{a2}")
I(f"v_lshl_add_u32 v{a2}, v{a3}, 4, v{a2}")
I(f"s_lshl_b32 s{S_T0}, s{S_S}, 17")
I(f"s_add_u32 s{S_T1}, s{S_T0}, 4096")
I(f"s_add_u32 s{S_T2}, s{S_T0}, 8192")
I(f"s_add_u32 s{S_T3}, s{S_T0}, 12288")
e("L_ap_poll:")
for k, sr in enumerate((S_T0, S_T1, S_T2, S_T3)):
    I(f"buffer_load_dwordx4 v[{BIG+4*k}:{BIG+4*k+3}], v{a2}, s[{SRD_WS}:{SRD_WS+3}], s{sr} offen offset:{AP_OFF} sc1")
I("s_waitcnt vmcnt(0)")
poll_check(list(range(BIG, BIG + 16)), "L_ap_poll", "L_ap_done", a4)
e("L_ap_done:")
for k in range(4):
    I(f"v_add_f32 v{BIG+k}, v{BIG+k}, v{BIG+4+k}")
    I(f"v_add_f32 v{BIG+8+k}, v{BIG+8+k}, v{BIG+12+k}")
for k in range(4):
    I(f"v_add_f32 v{BIG+k}, v{BIG+k}, v{BIG+8+k}")
I(f"v_lshlrev_b32 v{a1}, 4, v{V_T}")
I(f"ds_write_b128 v{a1}, v[{BIG}:{BIG+3}] offset:{L_FR}")
I("s_branch L_fin_bar")
e("L_gate:")
I(f"v_lshlrev_b32 v{a1}, 5, v{V_LANE}")
I(f"buffer_load_dwordx4 v[{BIG}:{BIG+3}], v{a1}, s[{SRD_X}:{SRD_X+3}], 0 offen")
I(f"buffer_load_dwordx4 v[{BIG+4}:{BIG+7}], v{a1}, s[{SRD_X}:{SRD_X+3}], 0 offen offset:16")
I(f"buffer_load_dwordx4 v[{BIG+8}:{BIG+11}], v{a1}, s[{SRD_GW}:{SRD_GW+3}], 0 offen")
I(f"buffer_load_dwordx4 v[{BIG+12}:{BIG+15}], v{a1}, s[{SRD_GW}:{SRD_GW+3}], 0 offen offset:16")
I(f"v_mov_b32 v{a2}, 0")
I("s_waitcnt vmcnt(0)")
for k in range(8):
    I(f"v_lshlrev_b32 v{a3}, 16, v{BIG+k}")
    I(f"v_lshlrev_b32 v{a4}, 16, v{BIG+8+k}")
    I(f"v_and_b32 v{a5}, 0xffff0000, v{BIG+k}")
    I(f"v_and_b32 v{a6}, 0xffff0000, v{BIG+8+k}")
    I(f"v_mul_f32 v{a3}, v{a3}, v{a4}")
    I(f"v_mul_f32 v{a5}, v{a5}, v{a6}")
    I(f"v_cvt_pk_bf16_f32 v{a3}, v{a3}, v{a5}")
    I(f"v_lshlrev_b32 v{a4}, 16, v{a3}")
    I(f"v_and_b32 v{a5}, 0xffff0000, v{a3}")
    I(f"v_add_f32 v{a2}, v{a2}, v{a4}")
    I(f"v_add_f32 v{a2}, v{a2}, v{a5}")
I(f"v_lshlrev_b32 v{a1}, 2, v{V_LANE}")
for m in (1, 2, 4, 8, 16, 32):
    I(f"v_xor_b32 v{a3}, {4*m}, v{a1}")
    I(f"ds_bpermute_b32 v{a4}, v{a3}, v{a2}")
    I("s_waitcnt lgkmcnt(0)")
    I(f"v_add_f32 v{a2}, v{a2}, v{a4}")
rbf(a2, a6)
I(f"v_mul_f32 v{a2}, s{S_LOG2E}, v{a2}")
I(f"v_sub_f32 v{a2}, 0, v{a2}")
I(f"v_exp_f32 v{a2}, v{a2}")
I("s_nop 0")
I(f"v_add_f32 v{a2}, 1.0, v{a2}")
I(f"v_rcp_f32 v{a2}, v{a2}")
I("s_nop 0")
rbf(a2, a6)
I(f"v_mov_b32 v{a1}, 0")
I(f"ds_write_b32 v{a1}, v{a2} offset:{L_GATE}")
e("L_fin_bar:")
I("s_waitcnt lgkmcnt(0)")
I("s_barrier")
I(f"s_cmp_ge_u32 s{S_W}, 2")
I("s_cbranch_scc1 L_fin")
I(f"v_min_u32 v{a1}, 79, v{V_T}")
I(f"v_lshlrev_b32 v{a1}, 2, v{a1}")
I(f"v_mov_b32 v{a5}, 0")
for hg in range(8):
    I(f"ds_read_b32 v{BIG+hg}, v{a1} offset:{L_FR + hg*640}")
    I(f"ds_read_b32 v{BIG+8+hg}, v{a1} offset:{L_FR + hg*640 + 320}")
I(f"ds_read_b32 v{a7}, v{a5} offset:{L_GATE}")
I("s_waitcnt lgkmcnt(0)")
I(f"v_add_f32 v{a2}, v{BIG}, v{BIG+1}")
I(f"v_add_f32 v{a3}, v{BIG+8}, v{BIG+9}")
for p in range(2, 8):
    I(f"v_add_f32 v{a2}, v{a2}, v{BIG+p}")
    I(f"v_add_f32 v{a3}, v{a3}, v{BIG+8+p}")
rbf(a2, a6)
rbf(a3, a6)
I(f"v_sub_f32 v{a4}, 1.0, v{a7}")
rbf(a4, a6)
I(f"v_mul_f32 v{a2}, v{a7}, v{a2}")
I(f"v_mul_f32 v{a3}, v{a4}, v{a3}")
rbf(a2, a6)
rbf(a3, a6)
I(f"v_add_f32 v{a2}, v{a2}, v{a3}")
I(f"v_cvt_pk_bf16_f32 v{a2}, v{a2}, v{a2}")
I(f"s_mul_i32 s{S_T0}, s{S_S}, 160")
I(f"v_lshlrev_b32 v{a1}, 1, v{V_T}")
I(f"v_cmp_gt_u32 vcc, 80, v{V_T}")
I(f"v_mov_b32 v{a6}, {OOB}")
I("s_nop 0")
I(f"v_cndmask_b32 v{a1}, v{a6}, v{a1}, vcc")
I(f"buffer_store_short v{a2}, v{a1}, s[{SRD_OUT}:{SRD_OUT+3}], s{S_T0} offen")
e("L_fin:")
stamp("end")
dump_stamps()
e("L_end:")
I("s_endpgm")
e('.section .rodata,"a"')
e(".p2align 6")
e(f".amdhsa_kernel {NAME}_kernel")
e("  .amdhsa_next_free_vgpr 256")
e("  .amdhsa_next_free_sgpr 102")
e("  .amdhsa_accum_offset 256")
e("  .amdhsa_group_segment_fixed_size 0")
e("  .amdhsa_kernarg_size 104")
e("  .amdhsa_user_sgpr_count 2")
e("  .amdhsa_user_sgpr_kernarg_segment_ptr 1")
e("  .amdhsa_system_sgpr_workgroup_id_x 1")
e(".end_amdhsa_kernel")

open(OUTFILE, "w").write("\n".join(out) + "\n")
print("wrote", OUTFILE, len(out), "lines")
```

```python
import sys

NAME = "gated_mix__gqa_block_cached__glu_gated_bilinear__decode"
HEADER = open("cdna_kernels/%s.s.ref" % NAME).read().split("; Override launch geometry")[0]

out = []
def e(s=""):
    out.append(s)
def I(s):
    out.append("    " + s)

NT = " nt" if "--nt" in sys.argv else ""
STAMP = "--stamp" in sys.argv
OUTFILE = "cdna_kernels/%s.s" % NAME
for a in sys.argv[1:]:
    if a.startswith("--out="):
        OUTFILE = a[6:]

KV_BYTES = 100663296
WQ_BYTES = 640 * 6144 * 2
WO_BYTES = 6144 * 640 * 2
WD_BYTES = 1536 * 640 * 2
WS_BYTES = 402653184
OOB = 0x7f000000
FLAG_OFF = 2688
QP_OFF, OP_OFF, AP_OFF = 0, 1152, 2048
L_FLAG = 51200
L_QR = 0
L_GR = 15360
L_PART = 0
L_QB = 34816
L_OPR = 35328
L_GUR = 41600
L_OF = 44672
L_GATE = 45632
L_RED = 0
L_FR = 46080
LDS_BYTES = 51456

S_WG = 2
S_H, S_S, S_W = 3, 62, 63
SRD_K, SRD_V, SRD_WQ, SRD_WO, SRD_WD, SRD_WS, SRD_X, SRD_DBG = 4, 8, 12, 16, 20, 24, 28, 32
KA0 = 36
S_MHI = 64
S_T0, S_T1, S_T2, S_T3 = 66, 67, 68, 69
S_EX = 70
S_BASE = 72
S_NA, S_NB = 73, 74
S_IT = 75
S_SCALE, S_LOG2E = 76, 77
S_WSB = 78
S_M480 = 80
S_C1 = 82
SRD_GW, SRD_OUT = 84, 88
S_WGP, S_WUP = 92, 94
S_ST = 96

V_T, V_LANE, V_G, V_I, V_OK, V_OV1, V_OV2 = 0, 1, 2, 3, 4, 5, 6
A = [7, 8, 9, 10, 11, 12, 13, 14, 15]
KA, VA, KB, VB = 16, 40, 64, 88
STG = 64
XR = 192
GU = 208
XG = 216
AQ = 220
AG = 228
V_SL, V_C, V_SL2, V_C2 = 236, 237, 238, 239
V_NEG = 240
QF = 112
ACC = 136
WR = 152
D = 172
P = 176
VM, VL = 180, 181
T2 = 182
V_OW = 200
BIG = 16


def srd(dst, lo, hi, nbytes):
    I(f"s_mov_b32 s{dst}, s{lo}")
    I(f"s_and_b32 s{dst+1}, s{hi}, 0xffff")
    I(f"s_mov_b32 s{dst+2}, {nbytes}")
    I(f"s_mov_b32 s{dst+3}, 0x00020000")


def divmod_const(vq, vr, vsrc, d, magic):
    I(f"v_mul_u32_u24 v{vq}, {magic}, v{vsrc}")
    I(f"v_lshrrev_b32 v{vq}, 16, v{vq}")
    I(f"v_mul_u32_u24 v{vr}, {d}, v{vq}")
    I(f"v_sub_u32 v{vr}, v{vsrc}, v{vr}")


stamp_n = [0]
def stamp(tag):
    if not STAMP:
        return
    n = stamp_n[0]; stamp_n[0] += 1
    assert n < 12
    I(f"s_memrealtime s[{KA0+2*n}:{KA0+2*n+1}]")
    I("s_waitcnt lgkmcnt(0)")


def dump_stamps():
    if not STAMP:
        return
    I(f"s_cmp_lg_u32 s{S_W}, 0")
    I(f"s_cbranch_scc1 L_end")
    I(f"s_lshl_b32 s{S_ST}, s{S_WG}, 8")
    I(f"s_add_u32 s{S_ST}, s{S_ST}, {0x1000000}")
    I(f"v_mov_b32 v252, s{S_ST}")
    I(f"v_cmp_eq_u32 vcc, 0, v{V_LANE}")
    I(f"s_and_saveexec_b64 s[{S_ST}:{S_ST+1}], vcc")
    for n in range(stamp_n[0]):
        I(f"v_mov_b32 v250, s{KA0+2*n}")
        I(f"v_mov_b32 v251, s{KA0+2*n+1}")
        I(f"buffer_store_dwordx2 v[250:251], v252, s[{SRD_WS}:{SRD_WS+3}], 0 offen offset:{8*n}")
        I("s_nop 2")


def fma_chunk(acc, data, scal, tmp, first=False):
    for j in range(4):
        I(f"v_lshlrev_b32 v{tmp}, 16, v{data+j}")
        I(f"v_and_b32 v{tmp+1}, 0xffff0000, v{data+j}")
        op = "v_mul_f32" if first else "v_fmac_f32"
        I(f"{op} v{acc+2*j}, v{scal}, v{tmp}")
        I(f"{op} v{acc+2*j+1}, v{scal}, v{tmp+1}")


def canon(v, tmp):
    I(f"v_cmp_eq_u32 vcc, -1, v{v}")
    I(f"v_mov_b32 v{tmp}, 0x7fc00000")
    I("s_nop 1")
    I(f"v_cndmask_b32 v{v}, v{v}, v{tmp}, vcc")


def rbf(v, tmp):
    I(f"v_cvt_pk_bf16_f32 v{tmp}, v{v}, v{v}")
    I(f"v_lshlrev_b32 v{v}, 16, v{tmp}")


def load_k(slot, soff):
    for j in range(6):
        I(f"buffer_load_dwordx4 v[{slot+4*j}:{slot+4*j+3}], v{V_OK}, s[{SRD_K}:{SRD_K+3}], s{soff} offen offset:{j*64}{NT}")


def load_v(slot, soff):
    for r in range(4):
        I(f"buffer_load_dwordx4 v[{slot+4*r}:{slot+4*r+3}], v{V_OV1}, s[{SRD_V}:{SRD_V+3}], s{soff} offen offset:{r*384}{NT}")
    for r in range(2):
        I(f"buffer_load_dwordx4 v[{slot+16+4*r}:{slot+16+4*r+3}], v{V_OV2}, s[{SRD_V}:{SRD_V+3}], s{soff} offen offset:{r*768}{NT}")


def poll_check(regs, lab_retry, lab_done, tmp):
    cur = regs[0]
    rest = list(regs[1:])
    while rest:
        if len(rest) >= 2:
            I(f"v_max3_u32 v{tmp}, v{cur}, v{rest[0]}, v{rest[1]}")
            rest = rest[2:]
        else:
            I(f"v_max_u32 v{tmp}, v{cur}, v{rest[0]}")
            rest = rest[1:]
        cur = tmp
    I(f"v_cmp_eq_u32 vcc, -1, v{cur}")
    I("s_nop 4")
    I(f"s_cbranch_vccz {lab_done}")
    I("s_sleep 2")
    I(f"s_branch {lab_retry}")


def mask_lt(n, save=S_EX):
    I(f"v_cmp_gt_u32 vcc, {n}, v{V_T}")
    I(f"s_and_saveexec_b64 s[{save}:{save+1}], vcc")


def unmask(save=S_EX):
    I(f"s_mov_b64 exec, s[{save}:{save+1}]")


e(HEADER.rstrip("\n"))
e("; Override launch geometry by editing the next line (default: block=256,")
e(f"; @launch grid=(256,1,1) block=(512,1,1) lds={LDS_BYTES}")
e('.amdgcn_target "amdgcn-amd-amdhsa--gfx950"')
e(".text")
e(f".globl {NAME}_kernel")
e(".p2align 8")
e(f".type {NAME}_kernel,@function")
e(f"{NAME}_kernel:")
I(f"s_cmp_ge_u32 s{S_WG}, 256")
I("s_cbranch_scc1 L_end")
I(f"s_load_dwordx16 s[{KA0}:{KA0+15}], s[0:1], 0")
I(f"s_load_dwordx8 s[{KA0+16}:{KA0+23}], s[0:1], 64")
I(f"s_load_dwordx2 s[{KA0+24}:{KA0+25}], s[0:1], 96")
a0, a1, a2, a3, a4, a5, a6, a7, a8 = A
I(f"v_and_b32 v{V_LANE}, 63, v{V_T}")
I(f"v_lshrrev_b32 v{a0}, 6, v{V_T}")
I(f"v_lshrrev_b32 v{V_G}, 4, v{V_LANE}")
I(f"v_and_b32 v{V_I}, 15, v{V_LANE}")
I(f"v_readfirstlane_b32 s{S_W}, v{a0}")
I(f"s_and_b32 s{S_H}, s{S_WG}, 31")
I(f"s_lshr_b32 s{S_S}, s{S_WG}, 5")
I(f"s_lshl_b32 s{S_WSB}, s{S_WG}, 12")
I(f"v_mul_u32_u24 v{V_OK}, 384, v{V_I}")
I(f"v_lshl_add_u32 v{V_OK}, v{V_G}, 4, v{V_OK}")
I(f"v_mul_u32_u24 v{a1}, 1536, v{V_G}")
I(f"v_lshl_add_u32 v{V_OV1}, v{V_I}, 4, v{a1}")
I(f"v_lshrrev_b32 v{a2}, 3, v{V_I}")
I(f"v_mul_u32_u24 v{a2}, 384, v{a2}")
I(f"v_and_b32 v{a3}, 7, v{V_I}")
I(f"v_lshlrev_b32 v{a3}, 4, v{a3}")
I(f"v_add3_u32 v{V_OV2}, v{a1}, v{a2}, v{a3}")
I(f"v_add_u32 v{V_OV2}, 256, v{V_OV2}")
I(f"v_cmp_lt_u32 s[{S_MHI}:{S_MHI+1}], 7, v{V_I}")
I(f"v_cmp_gt_u32 vcc, 480, v{V_T}")
I(f"s_mov_b64 s[{S_M480}:{S_M480+1}], vcc")
I(f"s_mov_b32 s{S_SCALE}, 0x3d93cd3a")
I(f"s_mov_b32 s{S_LOG2E}, 0x3fb8aa3b")
divmod_const(V_SL, V_C, V_T, 24, 2731)
divmod_const(V_SL2, V_C2, V_T, 12, 5462)
for k in range(4):
    I(f"v_mov_b32 v{V_NEG+k}, -1")
I("s_waitcnt lgkmcnt(0)")
kp = lambda n: (KA0 + 2 * n, KA0 + 2 * n + 1)
srd(SRD_WS, *kp(12), WS_BYTES)
srd(SRD_X, *kp(0), 1280)
srd(SRD_WQ, *kp(3), WQ_BYTES)
srd(SRD_K, *kp(1), KV_BYTES)
srd(SRD_V, *kp(2), KV_BYTES)
srd(SRD_WO, *kp(4), WO_BYTES)
srd(SRD_WD, *kp(8), WD_BYTES)
srd(SRD_GW, *kp(9), 1280)
srd(SRD_OUT, *kp(10), 1280)
srd(SRD_DBG, *kp(11), 256)
I(f"s_mov_b64 s[{S_WGP}:{S_WGP+1}], s[{kp(6)[0]}:{kp(6)[1]}]")
I(f"s_mov_b64 s[{S_WUP}:{S_WUP+1}], s[{kp(7)[0]}:{kp(7)[1]}]")
stamp("start")
I(f"s_mul_i32 s{S_BASE}, s{S_H}, 3145728")
I(f"s_mul_i32 s{S_T0}, s{S_S}, 393216")
I(f"s_add_u32 s{S_BASE}, s{S_BASE}, s{S_T0}")
I(f"s_mul_i32 s{S_T0}, s{S_W}, 49152")
I(f"s_add_u32 s{S_BASE}, s{S_BASE}, s{S_T0}")

I(f"v_mov_b32 v{a8}, {OOB}")
I(f"v_lshl_add_u32 v{a0}, v{V_T}, 4, s{S_WSB}")
I(f"v_cmp_gt_u32 vcc, 97, v{V_T}")
I(f"v_mov_b32 v{a2}, 0")
I(f"v_mov_b32 v{a3}, 0")
I(f"v_cndmask_b32 v{a0}, v{a8}, v{a0}, vcc")
I(f"buffer_store_dwordx4 v[{V_NEG}:{V_NEG+3}], v{a0}, s[{SRD_WS}:{SRD_WS+3}], 0 offen offset:{OP_OFF} sc1")
I(f"v_mov_b32 v{a1}, {L_FLAG}")
I(f"ds_write_b64 v{a1}, v[{a2}:{a3}]") if a2 % 2 == 0 else (I(f"ds_write_b32 v{a1}, v{a2}"), I(f"ds_write_b32 v{a1}, v{a2} offset:4"))
I(f"s_mul_i32 s{S_T0}, s{S_S}, 160")
I(f"v_lshlrev_b32 v{a1}, 3, v{V_SL}")
I(f"v_cndmask_b32 v{a1}, v{a8}, v{a1}, s[{S_M480}:{S_M480+1}]")
I(f"buffer_load_dwordx2 v[{XR}:{XR+1}], v{a1}, s[{SRD_X}:{SRD_X+3}], s{S_T0} offen")
I(f"v_lshlrev_b32 v{a2}, 2, v{V_SL2}")
I(f"v_cndmask_b32 v{a2}, v{a8}, v{a2}, s[{S_M480}:{S_M480+1}]")
I(f"buffer_load_dword v{XG}, v{a2}, s[{SRD_X}:{SRD_X+3}], s{S_T0} offen")
I(f"v_mul_u32_u24 v{a0}, {4*12288 // 16}, v{V_SL}")
I(f"v_add_u32 v{a0}, v{a0}, v{V_C}")
I(f"v_lshlrev_b32 v{a0}, 4, v{a0}")
I(f"v_cndmask_b32 v{a0}, v{a8}, v{a0}, s[{S_M480}:{S_M480+1}]")
I(f"s_mul_i32 s{S_T0}, s{S_H}, 384")
I(f"s_mul_i32 s{S_T1}, s{S_S}, {80*12288}")
I(f"s_add_u32 s{S_T0}, s{S_T0}, s{S_T1}")
for k in range(4):
    I(f"buffer_load_dwordx4 v[{STG+4*k}:{STG+4*k+3}], v{a0}, s[{SRD_WQ}:{SRD_WQ+3}], s{S_T0} offen")
    if k != 3:
        I(f"s_add_u32 s{S_T0}, s{S_T0}, 12288")
I(f"v_min_u32 v{a3}, 39, v{V_SL2}")
I(f"v_cmp_gt_u32 vcc, 6, v{V_C2}")
I(f"v_subrev_u32 v{a4}, 6, v{V_C2}")
I(f"v_mov_b32 v{a5}, s{S_WUP}")
I(f"v_mov_b32 v{a6}, s{S_WUP+1}")
I(f"v_cndmask_b32 v{a4}, v{a4}, v{V_C2}, vcc")
I(f"v_mov_b32 v{a0}, s{S_WGP}")
I(f"v_mov_b32 v{a1}, s{S_WGP+1}")
I(f"v_cndmask_b32 v{a5}, v{a5}, v{a0}, vcc")
I(f"v_cndmask_b32 v{a6}, v{a6}, v{a1}, vcc")
I(f"s_mul_i32 s{S_T0}, s{S_S}, {80*3072}")
I(f"s_mul_i32 s{S_T1}, s{S_H}, 96")
I(f"s_add_u32 s{S_T0}, s{S_T0}, s{S_T1}")
I(f"v_mul_u32_u24 v{a3}, 6144, v{a3}")
I(f"v_lshl_add_u32 v{a3}, v{a4}, 4, v{a3}")
I(f"v_add_u32 v{a3}, s{S_T0}, v{a3}")
I(f"v_add_co_u32 v244, vcc, v{a5}, v{a3}")
I("s_nop 1")
I(f"v_addc_co_u32 v245, vcc, 0, v{a6}, vcc")
I(f"global_load_dwordx4 v[{GU}:{GU+3}], v[244:245], off")
I(f"global_load_dwordx4 v[{GU+4}:{GU+7}], v[244:245], off offset:3072")
load_k(KA, S_BASE)
divmod_const(V_OW + 1, a3, V_T, 10, 6554)
I(f"v_mul_u32_u24 v{V_OW}, 1280, v{V_OW+1}")
I(f"v_lshl_add_u32 v{V_OW}, v{a3}, 4, v{V_OW}")
I(f"v_cndmask_b32 v{V_OW}, v{a8}, v{V_OW}, s[{S_M480}:{S_M480+1}]")
I(f"s_add_u32 s{S_NA}, s{S_BASE}, 6144")
def load_w():
    I(f"s_mul_i32 s{S_T0}, s{S_H}, {192*1280}")
    I(f"s_mul_i32 s{S_T1}, s{S_S}, 160")
    I(f"s_add_u32 s{S_T0}, s{S_T0}, s{S_T1}")
    for i in range(4):
        I(f"buffer_load_dwordx4 v[{WR+4*i}:{WR+4*i+3}], v{V_OW}, s[{SRD_WO}:{SRD_WO+3}], s{S_T0} offen")
        if i != 3:
            I(f"s_add_u32 s{S_T0}, s{S_T0}, {48*1280}")
    I(f"s_mul_i32 s{S_T0}, s{S_H}, {48*1280}")
    I(f"s_add_u32 s{S_T0}, s{S_T0}, s{S_T1}")
    I(f"buffer_load_dwordx4 v[{WR+16}:{WR+19}], v{V_OW}, s[{SRD_WD}:{SRD_WD+3}], s{S_T0} offen")
I("s_waitcnt vmcnt(8)")
for k in range(4):
    xs = XR + k // 2
    if k % 2 == 0:
        I(f"v_lshlrev_b32 v{a1}, 16, v{xs}")
    else:
        I(f"v_and_b32 v{a1}, 0xffff0000, v{xs}")
    fma_chunk(AQ, STG + 4 * k, a1, a2, first=(k == 0))
I("s_waitcnt vmcnt(6)")
I(f"v_lshlrev_b32 v{a1}, 16, v{XG}")
fma_chunk(AG, GU, a1, a2, first=True)
I(f"v_and_b32 v{a1}, 0xffff0000, v{XG}")
fma_chunk(AG, GU + 4, a1, a2)
I(f"v_mul_u32_u24 v{a1}, 768, v{V_SL}")
I(f"v_lshl_add_u32 v{a1}, v{V_C}, 5, v{a1}")
I(f"v_mul_u32_u24 v{a2}, 384, v{V_SL2}")
I(f"v_lshl_add_u32 v{a2}, v{V_C2}, 5, v{a2}")
I(f"s_mov_b64 s[{S_EX}:{S_EX+1}], exec")
I(f"s_mov_b64 exec, s[{S_M480}:{S_M480+1}]")
I(f"ds_write_b128 v{a1}, v[{AQ}:{AQ+3}] offset:{L_QR}")
I(f"ds_write_b128 v{a1}, v[{AQ+4}:{AQ+7}] offset:{L_QR+16}")
I(f"ds_write_b128 v{a2}, v[{AG}:{AG+3}] offset:{L_GR}")
I(f"ds_write_b128 v{a2}, v[{AG+4}:{AG+7}] offset:{L_GR+16}")
unmask()
I("s_waitcnt lgkmcnt(0)")
I("s_barrier")
stamp("b1")
I(f"s_cmp_lt_u32 s{S_W}, 5")
I("s_cbranch_scc1 L_a_wave")
load_v(VA, S_BASE)
load_k(KB, S_NA)
load_v(VB, S_NA)
load_w()
I("s_branch L_a_done")
e("L_a_wave:")
qregs = [T2 + sl if sl < 18 else 244 + sl - 18 for sl in range(20)]
I(f"v_lshlrev_b32 v{a1}, 2, v{V_T}")
I(f"s_cmp_ge_u32 s{S_W}, 3")
I("s_cbranch_scc1 L_a_notq")
for sl in range(20):
    I(f"ds_read_b32 v{qregs[sl]}, v{a1} offset:{L_QR + sl*768}")
I("s_waitcnt lgkmcnt(0)")
I(f"v_add_f32 v{a2}, v{qregs[0]}, v{qregs[1]}")
for r in qregs[2:]:
    I(f"v_add_f32 v{a2}, v{a2}, v{r}")
I("s_branch L_a_pub")
e("L_a_notq:")
I(f"v_subrev_u32 v{a3}, 768, v{a1}")
I(f"v_min_u32 v{a3}, 380, v{a3}")
for half in range(2):
    for sl in range(20):
        I(f"ds_read_b32 v{qregs[sl]}, v{a3} offset:{L_GR + (half*20+sl)*384}")
    I("s_waitcnt lgkmcnt(0)")
    if half == 0:
        I(f"v_add_f32 v{a2}, v{qregs[0]}, v{qregs[1]}")
        rest = qregs[2:]
    else:
        rest = qregs
    for r in rest:
        I(f"v_add_f32 v{a2}, v{a2}, v{r}")
e("L_a_pub:")
I(f"v_cmp_gt_u32 vcc, 288, v{V_T}")
I(f"v_add_u32 v{a3}, s{S_WSB}, v{a1}")
I("s_nop 0")
I(f"v_cndmask_b32 v{a3}, v{a8}, v{a3}, vcc")
I(f"v_cndmask_b32 v{a5}, v{a8}, v{a1}, vcc")
I(f"buffer_store_dword v{a2}, v{a3}, s[{SRD_WS}:{SRD_WS+3}], 0 offen offset:{QP_OFF} sc1")
I(f"v_mov_b32 v{a1}, {L_FLAG}")
I(f"v_mov_b32 v{a2}, 1")
I(f"s_lshl_b32 s{S_T1}, s{S_H}, 2")
I(f"v_mov_b32 v{a4}, s{S_T1}")
I("s_waitcnt vmcnt(0)")
stamp("ack")
I(f"v_cmp_eq_u32 vcc, 0, v{V_LANE}")
I(f"s_and_saveexec_b64 s[{S_EX}:{S_EX+1}], vcc")
I(f"ds_add_rtn_u32 v{a3}, v{a1}, v{a2}")
I("s_waitcnt lgkmcnt(0)")
I(f"v_readfirstlane_b32 s{S_T0}, v{a3}")
I(f"s_cmp_lg_u32 s{S_T0}, 4")
I("s_cbranch_scc1 L_a_noatom")
I(f"v_mov_b32 v{a3}, 1")
I(f"buffer_atomic_add v{a3}, v{a4}, s[{SRD_DBG}:{SRD_DBG+3}], 0 offen sc0 sc1")
I("s_waitcnt vmcnt(0)")
I(f"v_readfirstlane_b32 s{S_T0}, v{a3}")
I(f"s_cmp_lg_u32 s{S_T0}, 7")
I("s_cbranch_scc1 L_a_noatom")
I(f"s_mov_b64 exec, 0xff")
I(f"s_lshl_b32 s{S_T0}, s{S_H}, 12")
I(f"v_lshlrev_b32 v{a3}, 17, v{V_LANE}")
I(f"buffer_store_dword v{a2}, v{a3}, s[{SRD_WS}:{SRD_WS+3}], s{S_T0} offen offset:{FLAG_OFF} sc1")
e("L_a_noatom:")
unmask()
I(f"s_cmp_lg_u32 s{S_W}, 0")
I("s_cbranch_scc1 L_a_others")
I(f"v_mov_b32 v{a4}, s{S_WSB}")
e("L_a_gpoll:")
I(f"buffer_load_dword v{a3}, v{a4}, s[{SRD_WS}:{SRD_WS+3}], 0 offen offset:{FLAG_OFF} sc1")
I("s_waitcnt vmcnt(0)")
I(f"v_readfirstlane_b32 s{S_T0}, v{a3}")
I(f"s_cmp_eq_u32 s{S_T0}, 1")
I("s_cbranch_scc1 L_a_gok")
I("s_sleep 2")
I("s_branch L_a_gpoll")
e("L_a_gok:")
I(f"ds_write_b32 v{a1}, v{a2} offset:4")
I("s_branch L_a_gather")
e("L_a_others:")
load_v(VA, S_BASE)
load_k(KB, S_NA)
e("L_a_lspin:")
I(f"ds_read_b32 v{a3}, v{a1} offset:4")
I("s_waitcnt lgkmcnt(0)")
I(f"v_readfirstlane_b32 s{S_T0}, v{a3}")
I(f"s_cmp_lg_u32 s{S_T0}, 0")
I("s_cbranch_scc1 L_a_gather")
I("s_sleep 1")
I("s_branch L_a_lspin")
e("L_a_gather:")
stamp("flag")
I(f"s_lshl_b32 s{S_T0}, s{S_H}, 12")
for p in range(8):
    I(f"buffer_load_dword v{T2+p}, v{a5}, s[{SRD_WS}:{SRD_WS+3}], s{S_T0} offen offset:{QP_OFF} sc1")
    if p != 7:
        I(f"s_add_u32 s{S_T0}, s{S_T0}, {32*4096}")
I(f"s_cmp_lg_u32 s{S_W}, 0")
I("s_cbranch_scc1 L_a_g2")
load_v(VA, S_BASE)
load_k(KB, S_NA)
load_v(VB, S_NA)
load_w()
I("s_waitcnt vmcnt(23)")
I("s_branch L_a_g3")
e("L_a_g2:")
load_v(VB, S_NA)
load_w()
I("s_waitcnt vmcnt(11)")
e("L_a_g3:")
I(f"v_add_f32 v{a2}, v{T2}, v{T2+1}")
for p in range(2, 8):
    I(f"v_add_f32 v{a2}, v{a2}, v{T2+p}")
I(f"v_cvt_pk_bf16_f32 v{a2}, v{a2}, v{a2}")
I(f"s_cmp_ge_u32 s{S_W}, 3")
I("s_cbranch_scc1 L_a_gus")
I(f"v_lshlrev_b32 v{a3}, 1, v{V_T}")
I(f"ds_write_b16 v{a3}, v{a2} offset:{L_QB}")
I("s_branch L_a_done")
e("L_a_gus:")
I(f"v_lshlrev_b32 v{a2}, 16, v{a2}")
I(f"v_lshlrev_b32 v{a3}, 2, v{V_T}")
I(f"v_cmp_gt_u32 vcc, 288, v{V_T}")
I(f"s_and_saveexec_b64 s[{S_EX}:{S_EX+1}], vcc")
I(f"ds_write_b32 v{a3}, v{a2} offset:{L_GUR - 768}")
unmask()
e("L_a_done:")
I("s_waitcnt lgkmcnt(0)")
I("s_barrier")
stamp("b2")
I(f"v_lshlrev_b32 v{a1}, 4, v{V_G}")
for j in range(6):
    I(f"ds_read_b128 v[{QF+4*j}:{QF+4*j+3}], v{a1} offset:{L_QB + 64*j}")
for k in range(16):
    I(f"v_mov_b32 v{ACC+k}, 0")
I(f"v_mov_b32 v{VM}, 0xff7fffff")
I(f"v_mov_b32 v{VL}, 0")
I(f"s_mov_b32 s{S_IT}, 0")
I(f"s_add_u32 s{S_NA}, s{S_BASE}, 12288")
I(f"s_add_u32 s{S_NB}, s{S_BASE}, 18432")
I("s_waitcnt lgkmcnt(0)")

def tile(KX, VX, soff):
    I("s_waitcnt vmcnt(18)")
    for j in range(6):
        c = "0" if j == 0 else f"v[{D}:{D+3}]"
        I(f"v_mfma_f32_16x16x32_bf16 v[{D}:{D+3}], v[{KX+4*j}:{KX+4*j+3}], v[{QF+4*j}:{QF+4*j+3}], {c}")
    load_k(KX, soff)
    I("s_nop 2")
    t0, t1 = T2, T2 + 1
    s = [T2 + 2, T2 + 3, T2 + 4, T2 + 5]
    I(f"v_cvt_pk_bf16_f32 v{t0}, v{D}, v{D+1}")
    I(f"v_cvt_pk_bf16_f32 v{t1}, v{D+2}, v{D+3}")
    I(f"v_lshlrev_b32 v{s[0]}, 16, v{t0}")
    I(f"v_and_b32 v{s[1]}, 0xffff0000, v{t0}")
    I(f"v_lshlrev_b32 v{s[2]}, 16, v{t1}")
    I(f"v_and_b32 v{s[3]}, 0xffff0000, v{t1}")
    for r in range(4):
        I(f"v_mul_f32 v{s[r]}, s{S_SCALE}, v{s[r]}")
    I(f"v_cvt_pk_bf16_f32 v{t0}, v{s[0]}, v{s[1]}")
    I(f"v_cvt_pk_bf16_f32 v{t1}, v{s[2]}, v{s[3]}")
    I(f"v_lshlrev_b32 v{s[0]}, 16, v{t0}")
    I(f"v_and_b32 v{s[1]}, 0xffff0000, v{t0}")
    I(f"v_lshlrev_b32 v{s[2]}, 16, v{t1}")
    I(f"v_and_b32 v{s[3]}, 0xffff0000, v{t1}")
    for r in range(4):
        I(f"v_mul_f32 v{s[r]}, s{S_LOG2E}, v{s[r]}")
    mn, al = T2 + 6, T2 + 7
    I(f"v_max3_f32 v{mn}, v{s[0]}, v{s[1]}, v{s[2]}")
    I(f"v_max3_f32 v{mn}, v{mn}, v{s[3]}, v{VM}")
    I(f"v_sub_f32 v{al}, v{VM}, v{mn}")
    for r in range(4):
        I(f"v_sub_f32 v{P+r}, v{s[r]}, v{mn}")
    I(f"v_exp_f32 v{al}, v{al}")
    for r in range(4):
        I(f"v_exp_f32 v{P+r}, v{P+r}")
    I(f"v_mov_b32 v{VM}, v{mn}")
    for k in range(16):
        I(f"v_mul_f32 v{ACC+k}, v{al}, v{ACC+k}")
    I(f"v_add_f32 v{t0}, v{P}, v{P+1}")
    I(f"v_add_f32 v{t1}, v{P+2}, v{P+3}")
    I(f"v_add_f32 v{t0}, v{t0}, v{t1}")
    I(f"v_fma_f32 v{VL}, v{VL}, v{al}, v{t0}")
    pa, pb = T2 + 8, T2 + 9
    I(f"v_cndmask_b32 v{pa}, v{P}, v{P+1}, s[{S_MHI}:{S_MHI+1}]")
    I(f"v_cndmask_b32 v{pb}, v{P+2}, v{P+3}, s[{S_MHI}:{S_MHI+1}]")
    I("s_waitcnt vmcnt(18)")
    for r in range(4):
        fma_chunk(ACC, VX + 4 * r, P + r, T2 + 10)
    fma_chunk(ACC + 8, VX + 16, pa, T2 + 10)
    fma_chunk(ACC + 8, VX + 20, pb, T2 + 10)
    load_v(VX, soff)

e("L_loop:")
I(f"s_cmp_lt_u32 s{S_IT}, 3")
I(f"s_cselect_b32 s{S_T0}, s{S_NA}, {OOB}")
I(f"s_cselect_b32 s{S_T1}, s{S_NB}, {OOB}")
tile(KA, VA, S_T0)
tile(KB, VB, S_T1)
I(f"s_add_u32 s{S_NA}, s{S_NA}, 12288")
I(f"s_add_u32 s{S_NB}, s{S_NB}, 12288")
I(f"s_add_u32 s{S_IT}, s{S_IT}, 1")
I(f"s_cmp_lt_u32 s{S_IT}, 4")
I("s_cbranch_scc1 L_loop")
stamp("loop_end")

I(f"s_lshl_b32 s{S_T0}, s{S_W}, 2")
I(f"v_add_u32 v{a1}, s{S_T0}, v{V_G}")
I(f"v_mul_u32_u24 v{a1}, 1040, v{a1}")
I(f"v_lshl_add_u32 v{a2}, v{V_I}, 5, v{a1}")
I(f"ds_write_b128 v{a2}, v[{ACC}:{ACC+3}] offset:{L_PART}")
I(f"ds_write_b128 v{a2}, v[{ACC+4}:{ACC+7}] offset:{L_PART+16}")
I(f"ds_write_b128 v{a2}, v[{ACC+8}:{ACC+11}] offset:{L_PART+512}")
I(f"ds_write_b128 v{a2}, v[{ACC+12}:{ACC+15}] offset:{L_PART+528}")
I(f"v_cmp_eq_u32 vcc, 0, v{V_I}")
I(f"s_and_saveexec_b64 s[{S_EX}:{S_EX+1}], vcc")
I(f"ds_write_b64 v{a1}, v[{VM}:{VM+1}] offset:{L_PART+1024}")
unmask()
I(f"s_cmp_lg_u32 s{S_W}, 5")
I("s_cbranch_scc1 L_t3_done")
I(f"v_lshlrev_b32 v{a1}, 2, v{V_LANE}")
e("L_t3_poll:")
I(f"buffer_load_dword v{a2}, v{a1}, s[{SRD_DBG}:{SRD_DBG+3}], 0 offen sc1")
I("s_waitcnt vmcnt(0)")
I(f"v_cmp_gt_u32 vcc, 8, v{a2}")
I(f"v_cmp_gt_u32 s[{S_C1}:{S_C1+1}], 32, v{V_LANE}")
I("s_nop 4")
I(f"s_and_b64 s[{S_C1}:{S_C1+1}], s[{S_C1}:{S_C1+1}], vcc")
I("s_cbranch_scc0 L_t3_done")
I("s_sleep 4")
I("s_branch L_t3_poll")
e("L_t3_done:")
I("s_waitcnt vmcnt(0) lgkmcnt(0)")
I("s_barrier")
I(f"s_cmp_ge_u32 s{S_W}, 3")
I("s_cbranch_scc1 L_t_gu")
I(f"v_mov_b32 v{a1}, 0")
for p in range(32):
    I(f"ds_read_b64 v[{BIG+2*p}:{BIG+2*p+1}], v{a1} offset:{L_PART + p*1040 + 1024}")
I("s_waitcnt lgkmcnt(0)")
I(f"v_max3_f32 v{a2}, v{BIG}, v{BIG+2}, v{BIG+4}")
for p in range(3, 31, 2):
    I(f"v_max3_f32 v{a2}, v{a2}, v{BIG+2*p}, v{BIG+2*p+2}")
I(f"v_max_f32 v{a2}, v{a2}, v{BIG+62}")
for p in range(32):
    I(f"v_sub_f32 v{BIG+2*p}, v{BIG+2*p}, v{a2}")
for p in range(32):
    I(f"v_exp_f32 v{BIG+2*p}, v{BIG+2*p}")
I("s_nop 0")
I(f"v_mul_f32 v{a3}, v{BIG}, v{BIG+1}")
for p in range(1, 32):
    I(f"v_fmac_f32 v{a3}, v{BIG+2*p}, v{BIG+2*p+1}")
I(f"v_lshlrev_b32 v{a1}, 2, v{V_T}")
I(f"s_cmp_eq_u32 s{S_W}, 2")
I("s_cbranch_scc1 L_t2_hi")
for p in range(32):
    I(f"ds_read_b32 v{BIG+2*p+1}, v{a1} offset:{L_PART + p*1040}")
I("s_waitcnt lgkmcnt(0)")
I(f"v_mul_f32 v{a4}, v{BIG}, v{BIG+1}")
for p in range(1, 32):
    I(f"v_fmac_f32 v{a4}, v{BIG+2*p}, v{BIG+2*p+1}")
I("s_branch L_t2_pub")
e("L_t2_hi:")
for p in range(32):
    I(f"ds_read_b32 v{BIG+2*p+1}, v{a1} offset:{L_PART + p*1040}")
for p in range(32):
    I(f"ds_read_b32 v{BIG+64+p}, v{a1} offset:{L_PART + p*1040 + 256}")
I("s_waitcnt lgkmcnt(0)")
for p in range(32):
    I(f"v_add_f32 v{BIG+2*p+1}, v{BIG+2*p+1}, v{BIG+64+p}")
I(f"v_mul_f32 v{a4}, v{BIG}, v{BIG+1}")
for p in range(1, 32):
    I(f"v_fmac_f32 v{a4}, v{BIG+2*p}, v{BIG+2*p+1}")
e("L_t2_pub:")
canon(a4, a5)
I(f"v_add_u32 v{a1}, s{S_WSB}, v{a1}")
I(f"buffer_store_dword v{a4}, v{a1}, s[{SRD_WS}:{SRD_WS+3}], 0 offen offset:{OP_OFF} sc1")
canon(a2, a5)
canon(a3, a5)
I(f"v_cmp_eq_u32 vcc, 0, v{V_T}")
I(f"v_mov_b32 v{a5}, 0")
I("s_nop 0")
I(f"v_cndmask_b32 v{a5}, v{a5}, v{a2}, vcc")
I(f"v_cmp_eq_u32 vcc, 1, v{V_T}")
I("s_nop 1")
I(f"v_cndmask_b32 v{a5}, v{a5}, v{a3}, vcc")
I(f"v_cmp_gt_u32 vcc, 4, v{V_T}")
I(f"v_mov_b32 v{a6}, {OOB}")
I("s_nop 0")
I(f"v_cndmask_b32 v{a1}, v{a6}, v{a1}, vcc")
I(f"buffer_store_dword v{a5}, v{a1}, s[{SRD_WS}:{SRD_WS+3}], 0 offen offset:{OP_OFF+768} sc1")
e("L_t_gu:")
I(f"v_mov_b32 v{a6}, {OOB}")
divmod_const(a2, a3, V_T, 49, 1338)
I(f"v_lshlrev_b32 v{a2}, 17, v{a2}")
I(f"v_lshl_add_u32 v{a2}, v{a3}, 4, v{a2}")
I(f"v_cmp_gt_u32 vcc, 392, v{V_T}")
I(f"s_lshl_b32 s{S_T0}, s{S_H}, 12")
I("s_nop 0")
I(f"v_cndmask_b32 v{a2}, v{a6}, v{a2}, vcc")
I(f"s_cmp_eq_u32 s{S_W}, 7")
I("s_cbranch_scc1 L_op_skip")
e("L_op_poll:")
I(f"buffer_load_dwordx4 v[{BIG}:{BIG+3}], v{a2}, s[{SRD_WS}:{SRD_WS+3}], s{S_T0} offen offset:{OP_OFF} sc1")
I("s_waitcnt vmcnt(0)")
poll_check([BIG, BIG + 1, BIG + 2, BIG + 3], "L_op_light", "L_op_done", a4)
e("L_op_light:")
I(f"v_lshlrev_b32 v{a5}, 17, v{V_LANE}")
I(f"v_cmp_gt_u32 vcc, 8, v{V_LANE}")
I("s_nop 1")
I(f"v_cndmask_b32 v{a5}, v{a6}, v{a5}, vcc")
e("L_op_light2:")
I(f"buffer_load_dword v{a4}, v{a5}, s[{SRD_WS}:{SRD_WS+3}], s{S_T0} offen offset:{OP_OFF+768} sc1")
I("s_waitcnt vmcnt(0)")
I(f"v_cmp_eq_u32 vcc, -1, v{a4}")
I("s_nop 4")
I("s_cbranch_vccz L_op_poll")
I("s_sleep 16")
I("s_branch L_op_light2")
e("L_op_done:")
I(f"v_lshlrev_b32 v{a1}, 4, v{V_T}")
mask_lt(392)
I(f"ds_write_b128 v{a1}, v[{BIG}:{BIG+3}] offset:{L_OPR}")
unmask()
e("L_op_skip:")
I("s_waitcnt lgkmcnt(0)")
I("s_barrier")
stamp("b4")
I(f"s_cmp_gt_u32 s{S_W}, 3")
I("s_cbranch_scc1 L_t5b")
I(f"s_cmp_eq_u32 s{S_W}, 3")
I("s_cbranch_scc1 L_t5h")
I(f"v_mov_b32 v{a1}, 0")
I(f"v_lshlrev_b32 v{a5}, 2, v{V_T}")
for p in range(8):
    I(f"ds_read_b64 v[{BIG+2*p}:{BIG+2*p+1}], v{a1} offset:{L_OPR + p*784 + 768}")
for p in range(8):
    I(f"ds_read_b32 v{BIG+16+p}, v{a5} offset:{L_OPR + p*784}")
I("s_waitcnt lgkmcnt(0)")
I(f"v_max3_f32 v{a2}, v{BIG}, v{BIG+2}, v{BIG+4}")
I(f"v_max3_f32 v{a2}, v{a2}, v{BIG+6}, v{BIG+8}")
I(f"v_max3_f32 v{a2}, v{a2}, v{BIG+10}, v{BIG+12}")
I(f"v_max_f32 v{a2}, v{a2}, v{BIG+14}")
for p in range(8):
    I(f"v_sub_f32 v{BIG+2*p}, v{BIG+2*p}, v{a2}")
for p in range(8):
    I(f"v_exp_f32 v{BIG+2*p}, v{BIG+2*p}")
I("s_nop 0")
I(f"v_mul_f32 v{a3}, v{BIG}, v{BIG+1}")
I(f"v_mul_f32 v{a4}, v{BIG}, v{BIG+16}")
for p in range(1, 8):
    I(f"v_fmac_f32 v{a3}, v{BIG+2*p}, v{BIG+2*p+1}")
    I(f"v_fmac_f32 v{a4}, v{BIG+2*p}, v{BIG+16+p}")
I(f"v_rcp_f32 v{a3}, v{a3}")
I("s_nop 0")
I(f"v_mul_f32 v{a4}, v{a4}, v{a3}")
rbf(a4, a6)
I(f"ds_write_b32 v{a5}, v{a4} offset:{L_OF}")
I("s_branch L_t5b")
e("L_t5h:")
I(f"v_lshlrev_b32 v{a5}, 2, v{V_LANE}")
I(f"v_min_u32 v{a5}, 188, v{a5}")
I(f"ds_read_b32 v{a2}, v{a5} offset:{L_GUR}")
I(f"ds_read_b32 v{a3}, v{a5} offset:{L_GUR + 192}")
I("s_waitcnt lgkmcnt(0)")
I(f"v_mul_f32 v{a2}, v{a2}, v{a3}")
rbf(a2, a6)
I(f"v_cmp_gt_u32 vcc, 48, v{V_LANE}")
I(f"s_and_saveexec_b64 s[{S_EX}:{S_EX+1}], vcc")
I(f"ds_write_b32 v{a5}, v{a2} offset:{L_OF+768}")
unmask()
e("L_t5b:")
I("s_waitcnt lgkmcnt(0)")
I("s_barrier")
I(f"v_min_u32 v{a1}, 47, v{V_OW+1}")
I(f"v_lshlrev_b32 v{a1}, 2, v{a1}")
for i in range(4):
    I(f"ds_read_b32 v{BIG+i}, v{a1} offset:{L_OF + 192*i}")
I(f"ds_read_b32 v{BIG+4}, v{a1} offset:{L_OF + 768}")
I("s_waitcnt lgkmcnt(0)")
for i in range(4):
    fma_chunk(BIG + 8, WR + 4 * i, BIG + i, a2, first=(i == 0))
fma_chunk(BIG + 16, WR + 16, BIG + 4, a2, first=True)
I(f"v_lshlrev_b32 v{a1}, 6, v{V_T}")
I(f"s_mov_b64 s[{S_EX}:{S_EX+1}], exec")
I(f"s_mov_b64 exec, s[{S_M480}:{S_M480+1}]")
for k in range(4):
    I(f"ds_write_b128 v{a1}, v[{BIG+8+4*k}:{BIG+11+4*k}] offset:{L_RED + 16*k}")
unmask()
I("s_waitcnt lgkmcnt(0)")
I("s_barrier")
I(f"s_cmp_ge_u32 s{S_W}, 3")
I("s_cbranch_scc1 L_t6")
I(f"v_min_u32 v{a1}, 159, v{V_T}")
I(f"v_cmp_lt_u32 vcc, 79, v{a1}")
I(f"v_subrev_u32 v{a2}, 80, v{a1}")
I("s_nop 0")
I(f"v_cndmask_b32 v{a2}, v{a1}, v{a2}, vcc")
I(f"v_cndmask_b32 v{a3}, 0, 32, vcc")
I(f"v_lshrrev_b32 v{a4}, 3, v{a2}")
I(f"v_and_b32 v{a2}, 7, v{a2}")
I(f"v_lshl_add_u32 v{a3}, v{a4}, 6, v{a3}")
I(f"v_lshl_add_u32 v{a3}, v{a2}, 2, v{a3}")
for sl in range(48):
    I(f"ds_read_b32 v{BIG+sl}, v{a3} offset:{L_RED + sl*640}")
I("s_waitcnt lgkmcnt(0)")
for k in range(0, 48, 4):
    I(f"v_add_f32 v{BIG+k}, v{BIG+k}, v{BIG+k+1}")
    I(f"v_add_f32 v{BIG+k+2}, v{BIG+k+2}, v{BIG+k+3}")
    I(f"v_add_f32 v{BIG+k}, v{BIG+k}, v{BIG+k+2}")
for k in range(4, 48, 4):
    I(f"v_add_f32 v{BIG}, v{BIG}, v{BIG+k}")
canon(BIG, a5)
I(f"v_lshl_add_u32 v{a1}, v{V_T}, 2, s{S_WSB}")
I(f"v_cmp_gt_u32 vcc, 160, v{V_T}")
I(f"v_mov_b32 v{a6}, {OOB}")
I("s_nop 0")
I(f"v_cndmask_b32 v{a1}, v{a6}, v{a1}, vcc")
I(f"buffer_store_dword v{BIG}, v{a1}, s[{SRD_WS}:{SRD_WS+3}], 0 offen offset:{AP_OFF} sc1")
e("L_t6:")
stamp("t6")
I(f"s_cmp_lg_u32 s{S_H}, 0")
I("s_cbranch_scc1 L_fin")
I(f"s_cmp_eq_u32 s{S_W}, 7")
I("s_cbranch_scc1 L_gate")
I(f"s_cmp_ge_u32 s{S_W}, 5")
I("s_cbranch_scc1 L_fin_bar")
divmod_const(a2, a3, V_T, 40, 1639)
I(f"v_lshlrev_b32 v{a2}, 14, v{a2}")
I(f"v_lshl_add_u32 v{a2}, v{a3}, 4, v{a2}")
I(f"s_lshl_b32 s{S_T0}, s{S_S}, 17")
I(f"s_add_u32 s{S_T1}, s{S_T0}, 4096")
I(f"s_add_u32 s{S_T2}, s{S_T0}, 8192")
I(f"s_add_u32 s{S_T3}, s{S_T0}, 12288")
e("L_ap_poll:")
for k, sr in enumerate((S_T0, S_T1, S_T2, S_T3)):
    I(f"buffer_load_dwordx4 v[{BIG+4*k}:{BIG+4*k+3}], v{a2}, s[{SRD_WS}:{SRD_WS+3}], s{sr} offen offset:{AP_OFF} sc1")
I("s_waitcnt vmcnt(0)")
poll_check(list(range(BIG, BIG + 16)), "L_ap_light", "L_ap_done", a4)
e("L_ap_light:")
I(f"v_lshlrev_b32 v{a5}, 12, v{V_LANE}")
I(f"v_cmp_gt_u32 vcc, 32, v{V_LANE}")
I(f"v_mov_b32 v{a6}, {OOB}")
I("s_nop 0")
I(f"v_cndmask_b32 v{a5}, v{a6}, v{a5}, vcc")
e("L_ap_light2:")
I(f"buffer_load_dword v{a4}, v{a5}, s[{SRD_WS}:{SRD_WS+3}], s{S_T0} offen offset:{AP_OFF} sc1")
I("s_waitcnt vmcnt(0)")
I(f"v_cmp_eq_u32 vcc, -1, v{a4}")
I("s_nop 4")
I("s_cbranch_vccz L_ap_poll")
I("s_sleep 8")
I("s_branch L_ap_light2")
e("L_ap_done:")
for k in range(4):
    I(f"v_add_f32 v{BIG+k}, v{BIG+k}, v{BIG+4+k}")
    I(f"v_add_f32 v{BIG+8+k}, v{BIG+8+k}, v{BIG+12+k}")
for k in range(4):
    I(f"v_add_f32 v{BIG+k}, v{BIG+k}, v{BIG+8+k}")
I(f"v_lshlrev_b32 v{a1}, 4, v{V_T}")
I(f"ds_write_b128 v{a1}, v[{BIG}:{BIG+3}] offset:{L_FR}")
I("s_branch L_fin_bar")
e("L_gate:")
I(f"v_lshlrev_b32 v{a1}, 5, v{V_LANE}")
I(f"buffer_load_dwordx4 v[{BIG}:{BIG+3}], v{a1}, s[{SRD_X}:{SRD_X+3}], 0 offen")
I(f"buffer_load_dwordx4 v[{BIG+4}:{BIG+7}], v{a1}, s[{SRD_X}:{SRD_X+3}], 0 offen offset:16")
I(f"buffer_load_dwordx4 v[{BIG+8}:{BIG+11}], v{a1}, s[{SRD_GW}:{SRD_GW+3}], 0 offen")
I(f"buffer_load_dwordx4 v[{BIG+12}:{BIG+15}], v{a1}, s[{SRD_GW}:{SRD_GW+3}], 0 offen offset:16")
I(f"v_mov_b32 v{a2}, 0")
I("s_waitcnt vmcnt(0)")
for k in range(8):
    I(f"v_lshlrev_b32 v{a3}, 16, v{BIG+k}")
    I(f"v_lshlrev_b32 v{a4}, 16, v{BIG+8+k}")
    I(f"v_and_b32 v{a5}, 0xffff0000, v{BIG+k}")
    I(f"v_and_b32 v{a6}, 0xffff0000, v{BIG+8+k}")
    I(f"v_mul_f32 v{a3}, v{a3}, v{a4}")
    I(f"v_mul_f32 v{a5}, v{a5}, v{a6}")
    I(f"v_cvt_pk_bf16_f32 v{a3}, v{a3}, v{a5}")
    I(f"v_lshlrev_b32 v{a4}, 16, v{a3}")
    I(f"v_and_b32 v{a5}, 0xffff0000, v{a3}")
    I(f"v_add_f32 v{a2}, v{a2}, v{a4}")
    I(f"v_add_f32 v{a2}, v{a2}, v{a5}")
I(f"v_lshlrev_b32 v{a1}, 2, v{V_LANE}")
for m in (1, 2, 4, 8, 16, 32):
    I(f"v_xor_b32 v{a3}, {4*m}, v{a1}")
    I(f"ds_bpermute_b32 v{a4}, v{a3}, v{a2}")
    I("s_waitcnt lgkmcnt(0)")
    I(f"v_add_f32 v{a2}, v{a2}, v{a4}")
rbf(a2, a6)
I(f"v_mul_f32 v{a2}, s{S_LOG2E}, v{a2}")
I(f"v_sub_f32 v{a2}, 0, v{a2}")
I(f"v_exp_f32 v{a2}, v{a2}")
I("s_nop 0")
I(f"v_add_f32 v{a2}, 1.0, v{a2}")
I(f"v_rcp_f32 v{a2}, v{a2}")
I("s_nop 0")
rbf(a2, a6)
I(f"v_mov_b32 v{a1}, 0")
I(f"ds_write_b32 v{a1}, v{a2} offset:{L_GATE}")
e("L_fin_bar:")
I("s_waitcnt lgkmcnt(0)")
I("s_barrier")
I(f"s_cmp_ge_u32 s{S_W}, 2")
I("s_cbranch_scc1 L_fin")
I(f"v_min_u32 v{a1}, 79, v{V_T}")
I(f"v_lshlrev_b32 v{a1}, 2, v{a1}")
I(f"v_mov_b32 v{a5}, 0")
for hg in range(8):
    I(f"ds_read_b32 v{BIG+hg}, v{a1} offset:{L_FR + hg*640}")
    I(f"ds_read_b32 v{BIG+8+hg}, v{a1} offset:{L_FR + hg*640 + 320}")
I(f"ds_read_b32 v{a7}, v{a5} offset:{L_GATE}")
I("s_waitcnt lgkmcnt(0)")
I(f"v_add_f32 v{a2}, v{BIG}, v{BIG+1}")
I(f"v_add_f32 v{a3}, v{BIG+8}, v{BIG+9}")
for p in range(2, 8):
    I(f"v_add_f32 v{a2}, v{a2}, v{BIG+p}")
    I(f"v_add_f32 v{a3}, v{a3}, v{BIG+8+p}")
rbf(a2, a6)
rbf(a3, a6)
I(f"v_sub_f32 v{a4}, 1.0, v{a7}")
rbf(a4, a6)
I(f"v_mul_f32 v{a2}, v{a7}, v{a2}")
I(f"v_mul_f32 v{a3}, v{a4}, v{a3}")
rbf(a2, a6)
rbf(a3, a6)
I(f"v_add_f32 v{a2}, v{a2}, v{a3}")
I(f"v_cvt_pk_bf16_f32 v{a2}, v{a2}, v{a2}")
I(f"s_mul_i32 s{S_T0}, s{S_S}, 160")
I(f"v_lshlrev_b32 v{a1}, 1, v{V_T}")
I(f"v_cmp_gt_u32 vcc, 80, v{V_T}")
I(f"v_mov_b32 v{a6}, {OOB}")
I("s_nop 0")
I(f"v_cndmask_b32 v{a1}, v{a6}, v{a1}, vcc")
I(f"buffer_store_short v{a2}, v{a1}, s[{SRD_OUT}:{SRD_OUT+3}], s{S_T0} offen")
e("L_fin:")
stamp("end")
dump_stamps()
e("L_end:")
I("s_endpgm")
e('.section .rodata,"a"')
e(".p2align 6")
e(f".amdhsa_kernel {NAME}_kernel")
e("  .amdhsa_next_free_vgpr 256")
e("  .amdhsa_next_free_sgpr 102")
e("  .amdhsa_accum_offset 256")
e("  .amdhsa_group_segment_fixed_size 0")
e("  .amdhsa_kernarg_size 104")
e("  .amdhsa_user_sgpr_count 2")
e("  .amdhsa_user_sgpr_kernarg_segment_ptr 1")
e("  .amdhsa_system_sgpr_workgroup_id_x 1")
e(".end_amdhsa_kernel")

open(OUTFILE, "w").write("\n".join(out) + "\n")
print("wrote", OUTFILE, len(out), "lines")
```

```python
import sys

NAME = "gated_mix__gqa_block_cached__glu_gated_bilinear__decode"
HEADER = open("cdna_kernels/%s.s.ref" % NAME).read().split("; Override launch geometry")[0]

out = []
def e(s=""):
    out.append(s)
def I(s):
    out.append("    " + s)

NT = " nt" if "--nt" in sys.argv else ""
STAMP = "--stamp" in sys.argv
RR = "--rr" in sys.argv
WSTRIDE, TSTRIDE = (6144, 49152) if RR else (49152, 6144)
OUTFILE = "cdna_kernels/%s.s" % NAME
for a in sys.argv[1:]:
    if a.startswith("--out="):
        OUTFILE = a[6:]

KV_BYTES = 100663296
WQ_BYTES = 640 * 6144 * 2
WO_BYTES = 6144 * 640 * 2
WD_BYTES = 1536 * 640 * 2
WS_BYTES = 402653184
OOB = 0x7f000000
FLAG_OFF = 2688
QP_OFF, OP_OFF, AP_OFF = 0, 1152, 2048
L_FLAG = 51200
L_QR = 0
L_GR = 15360
L_PART = 0
L_QB = 34816
L_OPR = 35328
L_GUR = 41600
L_OF = 44672
L_GATE = 45632
L_RED = 0
L_FR = 46080
L_KR = 51712
LDS_BYTES = L_KR + 16 * 6144

S_WG = 2
S_H, S_S, S_W = 3, 62, 63
SRD_K, SRD_V, SRD_WQ, SRD_WO, SRD_WD, SRD_WS, SRD_X, SRD_DBG = 4, 8, 12, 16, 20, 24, 28, 32
KA0 = 36
S_MHI = 64
S_T0, S_T1, S_T2, S_T3 = 66, 67, 68, 69
S_EX = 70
S_BASE = 72
S_NA, S_NB = 73, 74
S_IT = 75
S_SCALE, S_LOG2E = 76, 77
S_WSB = 78
S_M480 = 80
S_C1 = 82
SRD_GW, SRD_OUT = 84, 88
S_WGP, S_WUP = 92, 94
S_ST = 96
S_KL = 79
S_T4 = 100

V_T, V_LANE, V_G, V_I, V_OK, V_OV1, V_OV2 = 0, 1, 2, 3, 4, 5, 6
A = [7, 8, 9, 10, 11, 12, 13, 14, 15]
KA, VA, KB, VB = 16, 40, 64, 88
STG = 64
XR = 192
GU = 208
XG = 216
AQ = 220
AG = 228
V_SL, V_C, V_SL2, V_C2 = 236, 237, 238, 239
V_NEG = 240
QF = 112
ACC = 136
WR = 152
D = 172
P = 176
VM, VL = 180, 181
T2 = 182
V_OW = 200
V_KRD = 202
BIG = 16


def srd(dst, lo, hi, nbytes):
    I(f"s_mov_b32 s{dst}, s{lo}")
    I(f"s_and_b32 s{dst+1}, s{hi}, 0xffff")
    I(f"s_mov_b32 s{dst+2}, {nbytes}")
    I(f"s_mov_b32 s{dst+3}, 0x00020000")


def divmod_const(vq, vr, vsrc, d, magic):
    I(f"v_mul_u32_u24 v{vq}, {magic}, v{vsrc}")
    I(f"v_lshrrev_b32 v{vq}, 16, v{vq}")
    I(f"v_mul_u32_u24 v{vr}, {d}, v{vq}")
    I(f"v_sub_u32 v{vr}, v{vsrc}, v{vr}")


stamp_n = [0]
def stamp(tag):
    if not STAMP:
        return
    n = stamp_n[0]; stamp_n[0] += 1
    assert n < 12
    I(f"s_memrealtime s[{KA0+2*n}:{KA0+2*n+1}]")
    I("s_waitcnt lgkmcnt(0)")


def dump_stamps():
    if not STAMP:
        return
    I(f"s_lshl_b32 s{S_ST}, s{S_WG}, 3")
    I(f"s_add_u32 s{S_ST}, s{S_ST}, s{S_W}")
    I(f"s_lshl_b32 s{S_ST}, s{S_ST}, 8")
    I(f"s_add_u32 s{S_ST}, s{S_ST}, {0x1000000}")
    I(f"v_mov_b32 v252, s{S_ST}")
    I(f"v_cmp_eq_u32 vcc, 0, v{V_LANE}")
    I(f"s_and_saveexec_b64 s[{S_ST}:{S_ST+1}], vcc")
    for n in range(stamp_n[0]):
        I(f"v_mov_b32 v250, s{KA0+2*n}")
        I(f"v_mov_b32 v251, s{KA0+2*n+1}")
        I(f"buffer_store_dwordx2 v[250:251], v252, s[{SRD_WS}:{SRD_WS+3}], 0 offen offset:{8*n}")
        I("s_nop 2")


def fma_chunk(acc, data, scal, tmp, first=False):
    for j in range(4):
        I(f"v_lshlrev_b32 v{tmp}, 16, v{data+j}")
        I(f"v_and_b32 v{tmp+1}, 0xffff0000, v{data+j}")
        op = "v_mul_f32" if first else "v_fmac_f32"
        I(f"{op} v{acc+2*j}, v{scal}, v{tmp}")
        I(f"{op} v{acc+2*j+1}, v{scal}, v{tmp+1}")


def canon(v, tmp):
    I(f"v_cmp_eq_u32 vcc, -1, v{v}")
    I(f"v_mov_b32 v{tmp}, 0x7fc00000")
    I("s_nop 1")
    I(f"v_cndmask_b32 v{v}, v{v}, v{tmp}, vcc")


def rbf(v, tmp):
    I(f"v_cvt_pk_bf16_f32 v{tmp}, v{v}, v{v}")
    I(f"v_lshlrev_b32 v{v}, 16, v{tmp}")


def load_k(slot, soff):
    x = 0 if slot == KA else 1
    I(f"s_add_u32 m0, s{S_KL}, {x*6144}")
    I(f"s_add_u32 s{S_T4}, s{soff}, 4096")
    for j in range(4):
        I(f"buffer_load_dwordx4 v{V_OK}, s[{SRD_K}:{SRD_K+3}], s{soff} offen offset:{j*1024}{NT} lds")
    I(f"s_add_u32 m0, s{S_KL}, {x*6144 + 4096}")
    I("s_nop 0")
    for j in range(2):
        I(f"buffer_load_dwordx4 v{V_OK}, s[{SRD_K}:{SRD_K+3}], s{S_T4} offen offset:{j*1024}{NT} lds")


def load_v(slot, soff):
    for r in range(4):
        I(f"buffer_load_dwordx4 v[{slot+4*r}:{slot+4*r+3}], v{V_OV1}, s[{SRD_V}:{SRD_V+3}], s{soff} offen offset:{r*384}{NT}")
    for r in range(2):
        I(f"buffer_load_dwordx4 v[{slot+16+4*r}:{slot+16+4*r+3}], v{V_OV2}, s[{SRD_V}:{SRD_V+3}], s{soff} offen offset:{r*768}{NT}")


def poll_check(regs, lab_retry, lab_done, tmp):
    cur = regs[0]
    rest = list(regs[1:])
    while rest:
        if len(rest) >= 2:
            I(f"v_max3_u32 v{tmp}, v{cur}, v{rest[0]}, v{rest[1]}")
            rest = rest[2:]
        else:
            I(f"v_max_u32 v{tmp}, v{cur}, v{rest[0]}")
            rest = rest[1:]
        cur = tmp
    I(f"v_cmp_eq_u32 vcc, -1, v{cur}")
    I("s_nop 4")
    I(f"s_cbranch_vccz {lab_done}")
    I("s_sleep 2")
    I(f"s_branch {lab_retry}")


def mask_lt(n, save=S_EX):
    I(f"v_cmp_gt_u32 vcc, {n}, v{V_T}")
    I(f"s_and_saveexec_b64 s[{save}:{save+1}], vcc")


def unmask(save=S_EX):
    I(f"s_mov_b64 exec, s[{save}:{save+1}]")


e(HEADER.rstrip("\n"))
e("; Override launch geometry by editing the next line (default: block=256,")
e(f"; @launch grid=(256,1,1) block=(512,1,1) lds={LDS_BYTES}")
e('.amdgcn_target "amdgcn-amd-amdhsa--gfx950"')
e(".text")
e(f".globl {NAME}_kernel")
e(".p2align 8")
e(f".type {NAME}_kernel,@function")
e(f"{NAME}_kernel:")
I(f"s_cmp_ge_u32 s{S_WG}, 256")
I("s_cbranch_scc1 L_end")
I(f"s_load_dwordx16 s[{KA0}:{KA0+15}], s[0:1], 0")
I(f"s_load_dwordx8 s[{KA0+16}:{KA0+23}], s[0:1], 64")
I(f"s_load_dwordx2 s[{KA0+24}:{KA0+25}], s[0:1], 96")
a0, a1, a2, a3, a4, a5, a6, a7, a8 = A
I(f"v_and_b32 v{V_LANE}, 63, v{V_T}")
I(f"v_lshrrev_b32 v{a0}, 6, v{V_T}")
I(f"v_lshrrev_b32 v{V_G}, 4, v{V_LANE}")
I(f"v_and_b32 v{V_I}, 15, v{V_LANE}")
I(f"v_readfirstlane_b32 s{S_W}, v{a0}")
I(f"s_and_b32 s{S_H}, s{S_WG}, 31")
I(f"s_lshr_b32 s{S_S}, s{S_WG}, 5")
I(f"s_lshl_b32 s{S_WSB}, s{S_WG}, 12")
I(f"v_mul_u32_u24 v{V_KRD}, 384, v{V_I}")
I(f"v_lshl_add_u32 v{V_KRD}, v{V_G}, 4, v{V_KRD}")
I(f"v_lshlrev_b32 v{V_OK}, 4, v{V_LANE}")
I(f"s_mul_i32 s{S_KL}, s{S_W}, 12288")
I(f"s_add_u32 s{S_KL}, s{S_KL}, {L_KR}")
I(f"v_add_u32 v{V_KRD}, s{S_KL}, v{V_KRD}")
I(f"v_mul_u32_u24 v{a1}, 1536, v{V_G}")
I(f"v_lshl_add_u32 v{V_OV1}, v{V_I}, 4, v{a1}")
I(f"v_lshrrev_b32 v{a2}, 3, v{V_I}")
I(f"v_mul_u32_u24 v{a2}, 384, v{a2}")
I(f"v_and_b32 v{a3}, 7, v{V_I}")
I(f"v_lshlrev_b32 v{a3}, 4, v{a3}")
I(f"v_add3_u32 v{V_OV2}, v{a1}, v{a2}, v{a3}")
I(f"v_add_u32 v{V_OV2}, 256, v{V_OV2}")
I(f"v_cmp_lt_u32 s[{S_MHI}:{S_MHI+1}], 7, v{V_I}")
I(f"v_cmp_gt_u32 vcc, 480, v{V_T}")
I(f"s_mov_b64 s[{S_M480}:{S_M480+1}], vcc")
I(f"s_mov_b32 s{S_SCALE}, 0x3d93cd3a")
I(f"s_mov_b32 s{S_LOG2E}, 0x3fb8aa3b")
divmod_const(V_SL, V_C, V_T, 24, 2731)
divmod_const(V_SL2, V_C2, V_T, 12, 5462)
for k in range(4):
    I(f"v_mov_b32 v{V_NEG+k}, -1")
I("s_waitcnt lgkmcnt(0)")
kp = lambda n: (KA0 + 2 * n, KA0 + 2 * n + 1)
srd(SRD_WS, *kp(12), WS_BYTES)
srd(SRD_X, *kp(0), 1280)
srd(SRD_WQ, *kp(3), WQ_BYTES)
srd(SRD_K, *kp(1), KV_BYTES)
srd(SRD_V, *kp(2), KV_BYTES)
srd(SRD_WO, *kp(4), WO_BYTES)
srd(SRD_WD, *kp(8), WD_BYTES)
srd(SRD_GW, *kp(9), 1280)
srd(SRD_OUT, *kp(10), 1280)
srd(SRD_DBG, *kp(11), 256)
I(f"s_mov_b64 s[{S_WGP}:{S_WGP+1}], s[{kp(6)[0]}:{kp(6)[1]}]")
I(f"s_mov_b64 s[{S_WUP}:{S_WUP+1}], s[{kp(7)[0]}:{kp(7)[1]}]")
stamp("start")
I(f"s_mul_i32 s{S_BASE}, s{S_H}, 3145728")
I(f"s_mul_i32 s{S_T0}, s{S_S}, 393216")
I(f"s_add_u32 s{S_BASE}, s{S_BASE}, s{S_T0}")
I(f"s_mul_i32 s{S_T0}, s{S_W}, {WSTRIDE}")
I(f"s_add_u32 s{S_BASE}, s{S_BASE}, s{S_T0}")

I(f"v_mov_b32 v{a8}, {OOB}")
I(f"v_lshl_add_u32 v{a0}, v{V_T}, 4, s{S_WSB}")
I(f"v_cmp_gt_u32 vcc, 97, v{V_T}")
I(f"v_mov_b32 v{a2}, 0")
I(f"v_mov_b32 v{a3}, 0")
I(f"v_cndmask_b32 v{a0}, v{a8}, v{a0}, vcc")
I(f"buffer_store_dwordx4 v[{V_NEG}:{V_NEG+3}], v{a0}, s[{SRD_WS}:{SRD_WS+3}], 0 offen offset:{OP_OFF} sc1")
I(f"v_mov_b32 v{a1}, {L_FLAG}")
I(f"ds_write_b64 v{a1}, v[{a2}:{a3}]") if a2 % 2 == 0 else (I(f"ds_write_b32 v{a1}, v{a2}"), I(f"ds_write_b32 v{a1}, v{a2} offset:4"))
I(f"s_mul_i32 s{S_T0}, s{S_S}, 160")
I(f"v_lshlrev_b32 v{a1}, 3, v{V_SL}")
I(f"v_cndmask_b32 v{a1}, v{a8}, v{a1}, s[{S_M480}:{S_M480+1}]")
I(f"buffer_load_dwordx2 v[{XR}:{XR+1}], v{a1}, s[{SRD_X}:{SRD_X+3}], s{S_T0} offen")
I(f"v_lshlrev_b32 v{a2}, 2, v{V_SL2}")
I(f"v_cndmask_b32 v{a2}, v{a8}, v{a2}, s[{S_M480}:{S_M480+1}]")
I(f"buffer_load_dword v{XG}, v{a2}, s[{SRD_X}:{SRD_X+3}], s{S_T0} offen")
I(f"v_mul_u32_u24 v{a0}, {4*12288 // 16}, v{V_SL}")
I(f"v_add_u32 v{a0}, v{a0}, v{V_C}")
I(f"v_lshlrev_b32 v{a0}, 4, v{a0}")
I(f"v_cndmask_b32 v{a0}, v{a8}, v{a0}, s[{S_M480}:{S_M480+1}]")
I(f"s_mul_i32 s{S_T0}, s{S_H}, 384")
I(f"s_mul_i32 s{S_T1}, s{S_S}, {80*12288}")
I(f"s_add_u32 s{S_T0}, s{S_T0}, s{S_T1}")
for k in range(4):
    I(f"buffer_load_dwordx4 v[{STG+4*k}:{STG+4*k+3}], v{a0}, s[{SRD_WQ}:{SRD_WQ+3}], s{S_T0} offen")
    if k != 3:
        I(f"s_add_u32 s{S_T0}, s{S_T0}, 12288")
I(f"v_min_u32 v{a3}, 39, v{V_SL2}")
I(f"v_cmp_gt_u32 vcc, 6, v{V_C2}")
I(f"v_subrev_u32 v{a4}, 6, v{V_C2}")
I(f"v_mov_b32 v{a5}, s{S_WUP}")
I(f"v_mov_b32 v{a6}, s{S_WUP+1}")
I(f"v_cndmask_b32 v{a4}, v{a4}, v{V_C2}, vcc")
I(f"v_mov_b32 v{a0}, s{S_WGP}")
I(f"v_mov_b32 v{a1}, s{S_WGP+1}")
I(f"v_cndmask_b32 v{a5}, v{a5}, v{a0}, vcc")
I(f"v_cndmask_b32 v{a6}, v{a6}, v{a1}, vcc")
I(f"s_mul_i32 s{S_T0}, s{S_S}, {80*3072}")
I(f"s_mul_i32 s{S_T1}, s{S_H}, 96")
I(f"s_add_u32 s{S_T0}, s{S_T0}, s{S_T1}")
I(f"v_mul_u32_u24 v{a3}, 6144, v{a3}")
I(f"v_lshl_add_u32 v{a3}, v{a4}, 4, v{a3}")
I(f"v_add_u32 v{a3}, s{S_T0}, v{a3}")
I(f"v_add_co_u32 v244, vcc, v{a5}, v{a3}")
I("s_nop 1")
I(f"v_addc_co_u32 v245, vcc, 0, v{a6}, vcc")
I(f"global_load_dwordx4 v[{GU}:{GU+3}], v[244:245], off")
I(f"global_load_dwordx4 v[{GU+4}:{GU+7}], v[244:245], off offset:3072")
load_k(KA, S_BASE)
divmod_const(V_OW + 1, a3, V_T, 10, 6554)
I(f"v_mul_u32_u24 v{V_OW}, 1280, v{V_OW+1}")
I(f"v_lshl_add_u32 v{V_OW}, v{a3}, 4, v{V_OW}")
I(f"v_cndmask_b32 v{V_OW}, v{a8}, v{V_OW}, s[{S_M480}:{S_M480+1}]")
I(f"s_add_u32 s{S_NA}, s{S_BASE}, {TSTRIDE}")
def load_w():
    I(f"s_mul_i32 s{S_T0}, s{S_H}, {192*1280}")
    I(f"s_mul_i32 s{S_T1}, s{S_S}, 160")
    I(f"s_add_u32 s{S_T0}, s{S_T0}, s{S_T1}")
    for i in range(4):
        I(f"buffer_load_dwordx4 v[{WR+4*i}:{WR+4*i+3}], v{V_OW}, s[{SRD_WO}:{SRD_WO+3}], s{S_T0} offen")
        if i != 3:
            I(f"s_add_u32 s{S_T0}, s{S_T0}, {48*1280}")
    I(f"s_mul_i32 s{S_T0}, s{S_H}, {48*1280}")
    I(f"s_add_u32 s{S_T0}, s{S_T0}, s{S_T1}")
    I(f"buffer_load_dwordx4 v[{WR+16}:{WR+19}], v{V_OW}, s[{SRD_WD}:{SRD_WD+3}], s{S_T0} offen")
I("s_waitcnt vmcnt(8)")
for k in range(4):
    xs = XR + k // 2
    if k % 2 == 0:
        I(f"v_lshlrev_b32 v{a1}, 16, v{xs}")
    else:
        I(f"v_and_b32 v{a1}, 0xffff0000, v{xs}")
    fma_chunk(AQ, STG + 4 * k, a1, a2, first=(k == 0))
I("s_waitcnt vmcnt(6)")
I(f"v_lshlrev_b32 v{a1}, 16, v{XG}")
fma_chunk(AG, GU, a1, a2, first=True)
I(f"v_and_b32 v{a1}, 0xffff0000, v{XG}")
fma_chunk(AG, GU + 4, a1, a2)
I(f"v_mul_u32_u24 v{a1}, 768, v{V_SL}")
I(f"v_lshl_add_u32 v{a1}, v{V_C}, 5, v{a1}")
I(f"v_mul_u32_u24 v{a2}, 384, v{V_SL2}")
I(f"v_lshl_add_u32 v{a2}, v{V_C2}, 5, v{a2}")
I(f"s_mov_b64 s[{S_EX}:{S_EX+1}], exec")
I(f"s_mov_b64 exec, s[{S_M480}:{S_M480+1}]")
I(f"ds_write_b128 v{a1}, v[{AQ}:{AQ+3}] offset:{L_QR}")
I(f"ds_write_b128 v{a1}, v[{AQ+4}:{AQ+7}] offset:{L_QR+16}")
I(f"ds_write_b128 v{a2}, v[{AG}:{AG+3}] offset:{L_GR}")
I(f"ds_write_b128 v{a2}, v[{AG+4}:{AG+7}] offset:{L_GR+16}")
unmask()
I("s_waitcnt lgkmcnt(0)")
I("s_barrier")
stamp("b1")
I(f"s_cmp_lt_u32 s{S_W}, 5")
I("s_cbranch_scc1 L_a_wave")
load_v(VA, S_BASE)
load_k(KB, S_NA)
load_v(VB, S_NA)
load_w()
I("s_branch L_a_done")
e("L_a_wave:")
qregs = [T2 + sl if sl < 18 else 244 + sl - 18 for sl in range(20)]
I(f"v_lshlrev_b32 v{a1}, 2, v{V_T}")
I(f"s_cmp_ge_u32 s{S_W}, 3")
I("s_cbranch_scc1 L_a_notq")
for sl in range(20):
    I(f"ds_read_b32 v{qregs[sl]}, v{a1} offset:{L_QR + sl*768}")
I("s_waitcnt lgkmcnt(0)")
I(f"v_add_f32 v{a2}, v{qregs[0]}, v{qregs[1]}")
for r in qregs[2:]:
    I(f"v_add_f32 v{a2}, v{a2}, v{r}")
I("s_branch L_a_pub")
e("L_a_notq:")
I(f"v_subrev_u32 v{a3}, 768, v{a1}")
I(f"v_min_u32 v{a3}, 380, v{a3}")
for half in range(2):
    for sl in range(20):
        I(f"ds_read_b32 v{qregs[sl]}, v{a3} offset:{L_GR + (half*20+sl)*384}")
    I("s_waitcnt lgkmcnt(0)")
    if half == 0:
        I(f"v_add_f32 v{a2}, v{qregs[0]}, v{qregs[1]}")
        rest = qregs[2:]
    else:
        rest = qregs
    for r in rest:
        I(f"v_add_f32 v{a2}, v{a2}, v{r}")
e("L_a_pub:")
I(f"v_cmp_gt_u32 vcc, 288, v{V_T}")
I(f"v_add_u32 v{a3}, s{S_WSB}, v{a1}")
I("s_nop 0")
I(f"v_cndmask_b32 v{a3}, v{a8}, v{a3}, vcc")
I(f"v_cndmask_b32 v{a5}, v{a8}, v{a1}, vcc")
I(f"buffer_store_dword v{a2}, v{a3}, s[{SRD_WS}:{SRD_WS+3}], 0 offen offset:{QP_OFF} sc1")
I(f"v_mov_b32 v{a1}, {L_FLAG}")
I(f"v_mov_b32 v{a2}, 1")
I(f"s_lshl_b32 s{S_T1}, s{S_H}, 2")
I(f"v_mov_b32 v{a4}, s{S_T1}")
I("s_waitcnt vmcnt(0)")
stamp("ack")
I(f"v_cmp_eq_u32 vcc, 0, v{V_LANE}")
I(f"s_and_saveexec_b64 s[{S_EX}:{S_EX+1}], vcc")
I(f"ds_add_rtn_u32 v{a3}, v{a1}, v{a2}")
I("s_waitcnt lgkmcnt(0)")
I(f"v_readfirstlane_b32 s{S_T0}, v{a3}")
I(f"s_cmp_lg_u32 s{S_T0}, 4")
I("s_cbranch_scc1 L_a_noatom")
I(f"v_mov_b32 v{a3}, 1")
I(f"buffer_atomic_add v{a3}, v{a4}, s[{SRD_DBG}:{SRD_DBG+3}], 0 offen sc0 sc1")
I("s_waitcnt vmcnt(0)")
I(f"v_readfirstlane_b32 s{S_T0}, v{a3}")
I(f"s_cmp_lg_u32 s{S_T0}, 7")
I("s_cbranch_scc1 L_a_noatom")
I(f"s_mov_b64 exec, 0xff")
I(f"s_lshl_b32 s{S_T0}, s{S_H}, 12")
I(f"v_lshlrev_b32 v{a3}, 17, v{V_LANE}")
I(f"buffer_store_dword v{a2}, v{a3}, s[{SRD_WS}:{SRD_WS+3}], s{S_T0} offen offset:{FLAG_OFF} sc1")
e("L_a_noatom:")
unmask()
I(f"s_cmp_lg_u32 s{S_W}, 0")
I("s_cbranch_scc1 L_a_others")
I(f"v_mov_b32 v{a4}, s{S_WSB}")
e("L_a_gpoll:")
I(f"buffer_load_dword v{a3}, v{a4}, s[{SRD_WS}:{SRD_WS+3}], 0 offen offset:{FLAG_OFF} sc1")
I("s_waitcnt vmcnt(0)")
I(f"v_readfirstlane_b32 s{S_T0}, v{a3}")
I(f"s_cmp_eq_u32 s{S_T0}, 1")
I("s_cbranch_scc1 L_a_gok")
I("s_sleep 2")
I("s_branch L_a_gpoll")
e("L_a_gok:")
I(f"ds_write_b32 v{a1}, v{a2} offset:4")
I("s_branch L_a_gather")
e("L_a_others:")
load_v(VA, S_BASE)
load_k(KB, S_NA)
e("L_a_lspin:")
I(f"ds_read_b32 v{a3}, v{a1} offset:4")
I("s_waitcnt lgkmcnt(0)")
I(f"v_readfirstlane_b32 s{S_T0}, v{a3}")
I(f"s_cmp_lg_u32 s{S_T0}, 0")
I("s_cbranch_scc1 L_a_gather")
I("s_sleep 1")
I("s_branch L_a_lspin")
e("L_a_gather:")
stamp("flag")
I(f"s_lshl_b32 s{S_T0}, s{S_H}, 12")
for p in range(8):
    I(f"buffer_load_dword v{T2+p}, v{a5}, s[{SRD_WS}:{SRD_WS+3}], s{S_T0} offen offset:{QP_OFF} sc1")
    if p != 7:
        I(f"s_add_u32 s{S_T0}, s{S_T0}, {32*4096}")
I(f"s_cmp_lg_u32 s{S_W}, 0")
I("s_cbranch_scc1 L_a_g2")
load_v(VA, S_BASE)
load_k(KB, S_NA)
load_v(VB, S_NA)
load_w()
I("s_waitcnt vmcnt(23)")
I("s_branch L_a_g3")
e("L_a_g2:")
load_v(VB, S_NA)
load_w()
I("s_waitcnt vmcnt(11)")
e("L_a_g3:")
I(f"v_add_f32 v{a2}, v{T2}, v{T2+1}")
for p in range(2, 8):
    I(f"v_add_f32 v{a2}, v{a2}, v{T2+p}")
I(f"v_cvt_pk_bf16_f32 v{a2}, v{a2}, v{a2}")
I(f"s_cmp_ge_u32 s{S_W}, 3")
I("s_cbranch_scc1 L_a_gus")
I(f"v_lshlrev_b32 v{a3}, 1, v{V_T}")
I(f"ds_write_b16 v{a3}, v{a2} offset:{L_QB}")
I("s_branch L_a_done")
e("L_a_gus:")
I(f"v_lshlrev_b32 v{a2}, 16, v{a2}")
I(f"v_lshlrev_b32 v{a3}, 2, v{V_T}")
I(f"v_cmp_gt_u32 vcc, 288, v{V_T}")
I(f"s_and_saveexec_b64 s[{S_EX}:{S_EX+1}], vcc")
I(f"ds_write_b32 v{a3}, v{a2} offset:{L_GUR - 768}")
unmask()
e("L_a_done:")
I("s_waitcnt lgkmcnt(0)")
I("s_barrier")
stamp("b2")
I(f"v_lshlrev_b32 v{a1}, 4, v{V_G}")
for j in range(6):
    I(f"ds_read_b128 v[{QF+4*j}:{QF+4*j+3}], v{a1} offset:{L_QB + 64*j}")
for k in range(16):
    I(f"v_mov_b32 v{ACC+k}, 0")
I(f"v_mov_b32 v{VM}, 0xff7fffff")
I(f"v_mov_b32 v{VL}, 0")
I(f"s_mov_b32 s{S_IT}, 0")
I(f"s_add_u32 s{S_NA}, s{S_BASE}, {2*TSTRIDE}")
I(f"s_add_u32 s{S_NB}, s{S_BASE}, {3*TSTRIDE}")
I("s_waitcnt lgkmcnt(0)")

def tile(KX, VX, soff):
    I("s_waitcnt vmcnt(18)")
    x = 0 if KX == KA else 1
    for j in range(6):
        I(f"ds_read_b128 v[{KA+4*j}:{KA+4*j+3}], v{V_KRD} offset:{x*6144 + j*64}")
    I("s_waitcnt lgkmcnt(0)")
    load_k(KX, soff)
    for j in range(6):
        c = "0" if j == 0 else f"v[{D}:{D+3}]"
        I(f"v_mfma_f32_16x16x32_bf16 v[{D}:{D+3}], v[{KA+4*j}:{KA+4*j+3}], v[{QF+4*j}:{QF+4*j+3}], {c}")
    I("s_nop 7")
    t0, t1 = T2, T2 + 1
    s = [T2 + 2, T2 + 3, T2 + 4, T2 + 5]
    I(f"v_cvt_pk_bf16_f32 v{t0}, v{D}, v{D+1}")
    I(f"v_cvt_pk_bf16_f32 v{t1}, v{D+2}, v{D+3}")
    I(f"v_lshlrev_b32 v{s[0]}, 16, v{t0}")
    I(f"v_and_b32 v{s[1]}, 0xffff0000, v{t0}")
    I(f"v_lshlrev_b32 v{s[2]}, 16, v{t1}")
    I(f"v_and_b32 v{s[3]}, 0xffff0000, v{t1}")
    for r in range(4):
        I(f"v_mul_f32 v{s[r]}, s{S_SCALE}, v{s[r]}")
    I(f"v_cvt_pk_bf16_f32 v{t0}, v{s[0]}, v{s[1]}")
    I(f"v_cvt_pk_bf16_f32 v{t1}, v{s[2]}, v{s[3]}")
    I(f"v_lshlrev_b32 v{s[0]}, 16, v{t0}")
    I(f"v_and_b32 v{s[1]}, 0xffff0000, v{t0}")
    I(f"v_lshlrev_b32 v{s[2]}, 16, v{t1}")
    I(f"v_and_b32 v{s[3]}, 0xffff0000, v{t1}")
    for r in range(4):
        I(f"v_mul_f32 v{s[r]}, s{S_LOG2E}, v{s[r]}")
    mn, al = T2 + 6, T2 + 7
    I(f"v_max3_f32 v{mn}, v{s[0]}, v{s[1]}, v{s[2]}")
    I(f"v_max3_f32 v{mn}, v{mn}, v{s[3]}, v{VM}")
    I(f"v_sub_f32 v{al}, v{VM}, v{mn}")
    for r in range(4):
        I(f"v_sub_f32 v{P+r}, v{s[r]}, v{mn}")
    I(f"v_exp_f32 v{al}, v{al}")
    for r in range(4):
        I(f"v_exp_f32 v{P+r}, v{P+r}")
    I(f"v_mov_b32 v{VM}, v{mn}")
    for k in range(16):
        I(f"v_mul_f32 v{ACC+k}, v{al}, v{ACC+k}")
    I(f"v_add_f32 v{t0}, v{P}, v{P+1}")
    I(f"v_add_f32 v{t1}, v{P+2}, v{P+3}")
    I(f"v_add_f32 v{t0}, v{t0}, v{t1}")
    I(f"v_fma_f32 v{VL}, v{VL}, v{al}, v{t0}")
    pa, pb = T2 + 8, T2 + 9
    I(f"v_cndmask_b32 v{pa}, v{P}, v{P+1}, s[{S_MHI}:{S_MHI+1}]")
    I(f"v_cndmask_b32 v{pb}, v{P+2}, v{P+3}, s[{S_MHI}:{S_MHI+1}]")
    I("s_waitcnt vmcnt(18)")
    for r in range(4):
        fma_chunk(ACC, VX + 4 * r, P + r, T2 + 10)
    fma_chunk(ACC + 8, VX + 16, pa, T2 + 10)
    fma_chunk(ACC + 8, VX + 20, pb, T2 + 10)
    load_v(VX, soff)

e("L_loop:")
I(f"s_cmp_lt_u32 s{S_IT}, 3")
I(f"s_cselect_b32 s{S_T0}, s{S_NA}, {OOB}")
I(f"s_cselect_b32 s{S_T1}, s{S_NB}, {OOB}")
tile(KA, VA, S_T0)
tile(KB, VB, S_T1)
I(f"s_add_u32 s{S_NA}, s{S_NA}, {2*TSTRIDE}")
I(f"s_add_u32 s{S_NB}, s{S_NB}, {2*TSTRIDE}")
I(f"s_add_u32 s{S_IT}, s{S_IT}, 1")
I(f"s_cmp_lt_u32 s{S_IT}, 4")
I("s_cbranch_scc1 L_loop")
stamp("loop_end")

I(f"s_lshl_b32 s{S_T0}, s{S_W}, 2")
I(f"v_add_u32 v{a1}, s{S_T0}, v{V_G}")
I(f"v_mul_u32_u24 v{a1}, 1040, v{a1}")
I(f"v_lshl_add_u32 v{a2}, v{V_I}, 5, v{a1}")
I(f"ds_write_b128 v{a2}, v[{ACC}:{ACC+3}] offset:{L_PART}")
I(f"ds_write_b128 v{a2}, v[{ACC+4}:{ACC+7}] offset:{L_PART+16}")
I(f"ds_write_b128 v{a2}, v[{ACC+8}:{ACC+11}] offset:{L_PART+512}")
I(f"ds_write_b128 v{a2}, v[{ACC+12}:{ACC+15}] offset:{L_PART+528}")
I(f"v_cmp_eq_u32 vcc, 0, v{V_I}")
I(f"s_and_saveexec_b64 s[{S_EX}:{S_EX+1}], vcc")
I(f"ds_write_b64 v{a1}, v[{VM}:{VM+1}] offset:{L_PART+1024}")
unmask()
I(f"s_cmp_lg_u32 s{S_W}, 5")
I("s_cbranch_scc1 L_t3_done")
I(f"v_lshlrev_b32 v{a1}, 2, v{V_LANE}")
e("L_t3_poll:")
I(f"buffer_load_dword v{a2}, v{a1}, s[{SRD_DBG}:{SRD_DBG+3}], 0 offen sc1")
I("s_waitcnt vmcnt(0)")
I(f"v_cmp_gt_u32 vcc, 8, v{a2}")
I(f"v_cmp_gt_u32 s[{S_C1}:{S_C1+1}], 32, v{V_LANE}")
I("s_nop 4")
I(f"s_and_b64 s[{S_C1}:{S_C1+1}], s[{S_C1}:{S_C1+1}], vcc")
I("s_cbranch_scc0 L_t3_done")
I("s_sleep 4")
I("s_branch L_t3_poll")
e("L_t3_done:")
I("s_waitcnt vmcnt(0) lgkmcnt(0)")
I("s_barrier")
I(f"s_cmp_ge_u32 s{S_W}, 3")
I("s_cbranch_scc1 L_t_gu")
I(f"v_mov_b32 v{a1}, 0")
for p in range(32):
    I(f"ds_read_b64 v[{BIG+2*p}:{BIG+2*p+1}], v{a1} offset:{L_PART + p*1040 + 1024}")
I("s_waitcnt lgkmcnt(0)")
I(f"v_max3_f32 v{a2}, v{BIG}, v{BIG+2}, v{BIG+4}")
for p in range(3, 31, 2):
    I(f"v_max3_f32 v{a2}, v{a2}, v{BIG+2*p}, v{BIG+2*p+2}")
I(f"v_max_f32 v{a2}, v{a2}, v{BIG+62}")
for p in range(32):
    I(f"v_sub_f32 v{BIG+2*p}, v{BIG+2*p}, v{a2}")
for p in range(32):
    I(f"v_exp_f32 v{BIG+2*p}, v{BIG+2*p}")
I("s_nop 0")
I(f"v_mul_f32 v{a3}, v{BIG}, v{BIG+1}")
for p in range(1, 32):
    I(f"v_fmac_f32 v{a3}, v{BIG+2*p}, v{BIG+2*p+1}")
I(f"v_lshlrev_b32 v{a1}, 2, v{V_T}")
I(f"s_cmp_eq_u32 s{S_W}, 2")
I("s_cbranch_scc1 L_t2_hi")
for p in range(32):
    I(f"ds_read_b32 v{BIG+2*p+1}, v{a1} offset:{L_PART + p*1040}")
I("s_waitcnt lgkmcnt(0)")
I(f"v_mul_f32 v{a4}, v{BIG}, v{BIG+1}")
for p in range(1, 32):
    I(f"v_fmac_f32 v{a4}, v{BIG+2*p}, v{BIG+2*p+1}")
I("s_branch L_t2_pub")
e("L_t2_hi:")
for p in range(32):
    I(f"ds_read_b32 v{BIG+2*p+1}, v{a1} offset:{L_PART + p*1040}")
for p in range(32):
    I(f"ds_read_b32 v{BIG+64+p}, v{a1} offset:{L_PART + p*1040 + 256}")
I("s_waitcnt lgkmcnt(0)")
for p in range(32):
    I(f"v_add_f32 v{BIG+2*p+1}, v{BIG+2*p+1}, v{BIG+64+p}")
I(f"v_mul_f32 v{a4}, v{BIG}, v{BIG+1}")
for p in range(1, 32):
    I(f"v_fmac_f32 v{a4}, v{BIG+2*p}, v{BIG+2*p+1}")
e("L_t2_pub:")
canon(a4, a5)
I(f"v_add_u32 v{a1}, s{S_WSB}, v{a1}")
I(f"buffer_store_dword v{a4}, v{a1}, s[{SRD_WS}:{SRD_WS+3}], 0 offen offset:{OP_OFF} sc1")
canon(a2, a5)
canon(a3, a5)
I(f"v_cmp_eq_u32 vcc, 0, v{V_T}")
I(f"v_mov_b32 v{a5}, 0")
I("s_nop 0")
I(f"v_cndmask_b32 v{a5}, v{a5}, v{a2}, vcc")
I(f"v_cmp_eq_u32 vcc, 1, v{V_T}")
I("s_nop 1")
I(f"v_cndmask_b32 v{a5}, v{a5}, v{a3}, vcc")
I(f"v_cmp_gt_u32 vcc, 4, v{V_T}")
I(f"v_mov_b32 v{a6}, {OOB}")
I("s_nop 0")
I(f"v_cndmask_b32 v{a1}, v{a6}, v{a1}, vcc")
I(f"buffer_store_dword v{a5}, v{a1}, s[{SRD_WS}:{SRD_WS+3}], 0 offen offset:{OP_OFF+768} sc1")
e("L_t_gu:")
I(f"v_mov_b32 v{a6}, {OOB}")
divmod_const(a2, a3, V_T, 49, 1338)
I(f"v_lshlrev_b32 v{a2}, 17, v{a2}")
I(f"v_lshl_add_u32 v{a2}, v{a3}, 4, v{a2}")
I(f"v_cmp_gt_u32 vcc, 392, v{V_T}")
I(f"s_lshl_b32 s{S_T0}, s{S_H}, 12")
I("s_nop 0")
I(f"v_cndmask_b32 v{a2}, v{a6}, v{a2}, vcc")
I(f"s_cmp_eq_u32 s{S_W}, 7")
I("s_cbranch_scc1 L_op_skip")
e("L_op_poll:")
I(f"buffer_load_dwordx4 v[{BIG}:{BIG+3}], v{a2}, s[{SRD_WS}:{SRD_WS+3}], s{S_T0} offen offset:{OP_OFF} sc1")
I("s_waitcnt vmcnt(0)")
poll_check([BIG, BIG + 1, BIG + 2, BIG + 3], "L_op_light", "L_op_done", a4)
e("L_op_light:")
I(f"v_lshlrev_b32 v{a5}, 17, v{V_LANE}")
I(f"v_cmp_gt_u32 vcc, 8, v{V_LANE}")
I("s_nop 1")
I(f"v_cndmask_b32 v{a5}, v{a6}, v{a5}, vcc")
e("L_op_light2:")
I(f"buffer_load_dword v{a4}, v{a5}, s[{SRD_WS}:{SRD_WS+3}], s{S_T0} offen offset:{OP_OFF+768} sc1")
I("s_waitcnt vmcnt(0)")
I(f"v_cmp_eq_u32 vcc, -1, v{a4}")
I("s_nop 4")
I("s_cbranch_vccz L_op_poll")
I("s_sleep 16")
I("s_branch L_op_light2")
e("L_op_done:")
I(f"v_lshlrev_b32 v{a1}, 4, v{V_T}")
mask_lt(392)
I(f"ds_write_b128 v{a1}, v[{BIG}:{BIG+3}] offset:{L_OPR}")
unmask()
e("L_op_skip:")
I("s_waitcnt lgkmcnt(0)")
I("s_barrier")
stamp("b4")
I(f"s_cmp_gt_u32 s{S_W}, 3")
I("s_cbranch_scc1 L_t5b")
I(f"s_cmp_eq_u32 s{S_W}, 3")
I("s_cbranch_scc1 L_t5h")
I(f"v_mov_b32 v{a1}, 0")
I(f"v_lshlrev_b32 v{a5}, 2, v{V_T}")
for p in range(8):
    I(f"ds_read_b64 v[{BIG+2*p}:{BIG+2*p+1}], v{a1} offset:{L_OPR + p*784 + 768}")
for p in range(8):
    I(f"ds_read_b32 v{BIG+16+p}, v{a5} offset:{L_OPR + p*784}")
I("s_waitcnt lgkmcnt(0)")
I(f"v_max3_f32 v{a2}, v{BIG}, v{BIG+2}, v{BIG+4}")
I(f"v_max3_f32 v{a2}, v{a2}, v{BIG+6}, v{BIG+8}")
I(f"v_max3_f32 v{a2}, v{a2}, v{BIG+10}, v{BIG+12}")
I(f"v_max_f32 v{a2}, v{a2}, v{BIG+14}")
for p in range(8):
    I(f"v_sub_f32 v{BIG+2*p}, v{BIG+2*p}, v{a2}")
for p in range(8):
    I(f"v_exp_f32 v{BIG+2*p}, v{BIG+2*p}")
I("s_nop 0")
I(f"v_mul_f32 v{a3}, v{BIG}, v{BIG+1}")
I(f"v_mul_f32 v{a4}, v{BIG}, v{BIG+16}")
for p in range(1, 8):
    I(f"v_fmac_f32 v{a3}, v{BIG+2*p}, v{BIG+2*p+1}")
    I(f"v_fmac_f32 v{a4}, v{BIG+2*p}, v{BIG+16+p}")
I(f"v_rcp_f32 v{a3}, v{a3}")
I("s_nop 0")
I(f"v_mul_f32 v{a4}, v{a4}, v{a3}")
rbf(a4, a6)
I(f"ds_write_b32 v{a5}, v{a4} offset:{L_OF}")
I("s_branch L_t5b")
e("L_t5h:")
I(f"v_lshlrev_b32 v{a5}, 2, v{V_LANE}")
I(f"v_min_u32 v{a5}, 188, v{a5}")
I(f"ds_read_b32 v{a2}, v{a5} offset:{L_GUR}")
I(f"ds_read_b32 v{a3}, v{a5} offset:{L_GUR + 192}")
I("s_waitcnt lgkmcnt(0)")
I(f"v_mul_f32 v{a2}, v{a2}, v{a3}")
rbf(a2, a6)
I(f"v_cmp_gt_u32 vcc, 48, v{V_LANE}")
I(f"s_and_saveexec_b64 s[{S_EX}:{S_EX+1}], vcc")
I(f"ds_write_b32 v{a5}, v{a2} offset:{L_OF+768}")
unmask()
e("L_t5b:")
I("s_waitcnt lgkmcnt(0)")
I("s_barrier")
I(f"v_min_u32 v{a1}, 47, v{V_OW+1}")
I(f"v_lshlrev_b32 v{a1}, 2, v{a1}")
for i in range(4):
    I(f"ds_read_b32 v{BIG+i}, v{a1} offset:{L_OF + 192*i}")
I(f"ds_read_b32 v{BIG+4}, v{a1} offset:{L_OF + 768}")
I("s_waitcnt lgkmcnt(0)")
for i in range(4):
    fma_chunk(BIG + 8, WR + 4 * i, BIG + i, a2, first=(i == 0))
fma_chunk(BIG + 16, WR + 16, BIG + 4, a2, first=True)
I(f"v_lshlrev_b32 v{a1}, 6, v{V_T}")
I(f"s_mov_b64 s[{S_EX}:{S_EX+1}], exec")
I(f"s_mov_b64 exec, s[{S_M480}:{S_M480+1}]")
for k in range(4):
    I(f"ds_write_b128 v{a1}, v[{BIG+8+4*k}:{BIG+11+4*k}] offset:{L_RED + 16*k}")
unmask()
I("s_waitcnt lgkmcnt(0)")
I("s_barrier")
I(f"s_cmp_ge_u32 s{S_W}, 3")
I("s_cbranch_scc1 L_t6")
I(f"v_min_u32 v{a1}, 159, v{V_T}")
I(f"v_cmp_lt_u32 vcc, 79, v{a1}")
I(f"v_subrev_u32 v{a2}, 80, v{a1}")
I("s_nop 0")
I(f"v_cndmask_b32 v{a2}, v{a1}, v{a2}, vcc")
I(f"v_cndmask_b32 v{a3}, 0, 32, vcc")
I(f"v_lshrrev_b32 v{a4}, 3, v{a2}")
I(f"v_and_b32 v{a2}, 7, v{a2}")
I(f"v_lshl_add_u32 v{a3}, v{a4}, 6, v{a3}")
I(f"v_lshl_add_u32 v{a3}, v{a2}, 2, v{a3}")
for sl in range(48):
    I(f"ds_read_b32 v{BIG+sl}, v{a3} offset:{L_RED + sl*640}")
I("s_waitcnt lgkmcnt(0)")
for k in range(0, 48, 4):
    I(f"v_add_f32 v{BIG+k}, v{BIG+k}, v{BIG+k+1}")
    I(f"v_add_f32 v{BIG+k+2}, v{BIG+k+2}, v{BIG+k+3}")
    I(f"v_add_f32 v{BIG+k}, v{BIG+k}, v{BIG+k+2}")
for k in range(4, 48, 4):
    I(f"v_add_f32 v{BIG}, v{BIG}, v{BIG+k}")
canon(BIG, a5)
I(f"v_lshl_add_u32 v{a1}, v{V_T}, 2, s{S_WSB}")
I(f"v_cmp_gt_u32 vcc, 160, v{V_T}")
I(f"v_mov_b32 v{a6}, {OOB}")
I("s_nop 0")
I(f"v_cndmask_b32 v{a1}, v{a6}, v{a1}, vcc")
I(f"buffer_store_dword v{BIG}, v{a1}, s[{SRD_WS}:{SRD_WS+3}], 0 offen offset:{AP_OFF} sc1")
e("L_t6:")
stamp("t6")
I(f"s_cmp_lg_u32 s{S_H}, 0")
I("s_cbranch_scc1 L_fin")
I(f"s_cmp_eq_u32 s{S_W}, 7")
I("s_cbranch_scc1 L_gate")
I(f"s_cmp_ge_u32 s{S_W}, 5")
I("s_cbranch_scc1 L_fin_bar")
divmod_const(a2, a3, V_T, 40, 1639)
I(f"v_lshlrev_b32 v{a2}, 14, v{a2}")
I(f"v_lshl_add_u32 v{a2}, v{a3}, 4, v{a2}")
I(f"s_lshl_b32 s{S_T0}, s{S_S}, 17")
I(f"s_add_u32 s{S_T1}, s{S_T0}, 4096")
I(f"s_add_u32 s{S_T2}, s{S_T0}, 8192")
I(f"s_add_u32 s{S_T3}, s{S_T0}, 12288")
e("L_ap_poll:")
for k, sr in enumerate((S_T0, S_T1, S_T2, S_T3)):
    I(f"buffer_load_dwordx4 v[{BIG+4*k}:{BIG+4*k+3}], v{a2}, s[{SRD_WS}:{SRD_WS+3}], s{sr} offen offset:{AP_OFF} sc1")
I("s_waitcnt vmcnt(0)")
poll_check(list(range(BIG, BIG + 16)), "L_ap_light", "L_ap_done", a4)
e("L_ap_light:")
I(f"v_lshlrev_b32 v{a5}, 12, v{V_LANE}")
I(f"v_cmp_gt_u32 vcc, 32, v{V_LANE}")
I(f"v_mov_b32 v{a6}, {OOB}")
I("s_nop 0")
I(f"v_cndmask_b32 v{a5}, v{a6}, v{a5}, vcc")
e("L_ap_light2:")
I(f"buffer_load_dword v{a4}, v{a5}, s[{SRD_WS}:{SRD_WS+3}], s{S_T0} offen offset:{AP_OFF} sc1")
I("s_waitcnt vmcnt(0)")
I(f"v_cmp_eq_u32 vcc, -1, v{a4}")
I("s_nop 4")
I("s_cbranch_vccz L_ap_poll")
I("s_sleep 8")
I("s_branch L_ap_light2")
e("L_ap_done:")
for k in range(4):
    I(f"v_add_f32 v{BIG+k}, v{BIG+k}, v{BIG+4+k}")
    I(f"v_add_f32 v{BIG+8+k}, v{BIG+8+k}, v{BIG+12+k}")
for k in range(4):
    I(f"v_add_f32 v{BIG+k}, v{BIG+k}, v{BIG+8+k}")
I(f"v_lshlrev_b32 v{a1}, 4, v{V_T}")
I(f"ds_write_b128 v{a1}, v[{BIG}:{BIG+3}] offset:{L_FR}")
I("s_branch L_fin_bar")
e("L_gate:")
I(f"v_lshlrev_b32 v{a1}, 5, v{V_LANE}")
I(f"buffer_load_dwordx4 v[{BIG}:{BIG+3}], v{a1}, s[{SRD_X}:{SRD_X+3}], 0 offen")
I(f"buffer_load_dwordx4 v[{BIG+4}:{BIG+7}], v{a1}, s[{SRD_X}:{SRD_X+3}], 0 offen offset:16")
I(f"buffer_load_dwordx4 v[{BIG+8}:{BIG+11}], v{a1}, s[{SRD_GW}:{SRD_GW+3}], 0 offen")
I(f"buffer_load_dwordx4 v[{BIG+12}:{BIG+15}], v{a1}, s[{SRD_GW}:{SRD_GW+3}], 0 offen offset:16")
I(f"v_mov_b32 v{a2}, 0")
I("s_waitcnt vmcnt(0)")
for k in range(8):
    I(f"v_lshlrev_b32 v{a3}, 16, v{BIG+k}")
    I(f"v_lshlrev_b32 v{a4}, 16, v{BIG+8+k}")
    I(f"v_and_b32 v{a5}, 0xffff0000, v{BIG+k}")
    I(f"v_and_b32 v{a6}, 0xffff0000, v{BIG+8+k}")
    I(f"v_mul_f32 v{a3}, v{a3}, v{a4}")
    I(f"v_mul_f32 v{a5}, v{a5}, v{a6}")
    I(f"v_cvt_pk_bf16_f32 v{a3}, v{a3}, v{a5}")
    I(f"v_lshlrev_b32 v{a4}, 16, v{a3}")
    I(f"v_and_b32 v{a5}, 0xffff0000, v{a3}")
    I(f"v_add_f32 v{a2}, v{a2}, v{a4}")
    I(f"v_add_f32 v{a2}, v{a2}, v{a5}")
I(f"v_lshlrev_b32 v{a1}, 2, v{V_LANE}")
for m in (1, 2, 4, 8, 16, 32):
    I(f"v_xor_b32 v{a3}, {4*m}, v{a1}")
    I(f"ds_bpermute_b32 v{a4}, v{a3}, v{a2}")
    I("s_waitcnt lgkmcnt(0)")
    I(f"v_add_f32 v{a2}, v{a2}, v{a4}")
rbf(a2, a6)
I(f"v_mul_f32 v{a2}, s{S_LOG2E}, v{a2}")
I(f"v_sub_f32 v{a2}, 0, v{a2}")
I(f"v_exp_f32 v{a2}, v{a2}")
I("s_nop 0")
I(f"v_add_f32 v{a2}, 1.0, v{a2}")
I(f"v_rcp_f32 v{a2}, v{a2}")
I("s_nop 0")
rbf(a2, a6)
I(f"v_mov_b32 v{a1}, 0")
I(f"ds_write_b32 v{a1}, v{a2} offset:{L_GATE}")
e("L_fin_bar:")
I("s_waitcnt lgkmcnt(0)")
I("s_barrier")
I(f"s_cmp_ge_u32 s{S_W}, 2")
I("s_cbranch_scc1 L_fin")
I(f"v_min_u32 v{a1}, 79, v{V_T}")
I(f"v_lshlrev_b32 v{a1}, 2, v{a1}")
I(f"v_mov_b32 v{a5}, 0")
for hg in range(8):
    I(f"ds_read_b32 v{BIG+hg}, v{a1} offset:{L_FR + hg*640}")
    I(f"ds_read_b32 v{BIG+8+hg}, v{a1} offset:{L_FR + hg*640 + 320}")
I(f"ds_read_b32 v{a7}, v{a5} offset:{L_GATE}")
I("s_waitcnt lgkmcnt(0)")
I(f"v_add_f32 v{a2}, v{BIG}, v{BIG+1}")
I(f"v_add_f32 v{a3}, v{BIG+8}, v{BIG+9}")
for p in range(2, 8):
    I(f"v_add_f32 v{a2}, v{a2}, v{BIG+p}")
    I(f"v_add_f32 v{a3}, v{a3}, v{BIG+8+p}")
rbf(a2, a6)
rbf(a3, a6)
I(f"v_sub_f32 v{a4}, 1.0, v{a7}")
rbf(a4, a6)
I(f"v_mul_f32 v{a2}, v{a7}, v{a2}")
I(f"v_mul_f32 v{a3}, v{a4}, v{a3}")
rbf(a2, a6)
rbf(a3, a6)
I(f"v_add_f32 v{a2}, v{a2}, v{a3}")
I(f"v_cvt_pk_bf16_f32 v{a2}, v{a2}, v{a2}")
I(f"s_mul_i32 s{S_T0}, s{S_S}, 160")
I(f"v_lshlrev_b32 v{a1}, 1, v{V_T}")
I(f"v_cmp_gt_u32 vcc, 80, v{V_T}")
I(f"v_mov_b32 v{a6}, {OOB}")
I("s_nop 0")
I(f"v_cndmask_b32 v{a1}, v{a6}, v{a1}, vcc")
I(f"buffer_store_short v{a2}, v{a1}, s[{SRD_OUT}:{SRD_OUT+3}], s{S_T0} offen")
e("L_fin:")
stamp("end")
dump_stamps()
e("L_end:")
I("s_endpgm")
e('.section .rodata,"a"')
e(".p2align 6")
e(f".amdhsa_kernel {NAME}_kernel")
e("  .amdhsa_next_free_vgpr 256")
e("  .amdhsa_next_free_sgpr 102")
e("  .amdhsa_accum_offset 256")
e("  .amdhsa_group_segment_fixed_size 0")
e("  .amdhsa_kernarg_size 104")
e("  .amdhsa_user_sgpr_count 2")
e("  .amdhsa_user_sgpr_kernarg_segment_ptr 1")
e("  .amdhsa_system_sgpr_workgroup_id_x 1")
e(".end_amdhsa_kernel")

open(OUTFILE, "w").write("\n".join(out) + "\n")
print("wrote", OUTFILE, len(out), "lines")
```

```python
import sys

NAME = "gated_mix__gqa_block_cached__glu_gated_bilinear__decode"
HEADER = open("cdna_kernels/%s.s.ref" % NAME).read().split("; Override launch geometry")[0]

out = []
def e(s=""):
    out.append(s)
def I(s):
    out.append("    " + s)

NT = " nt" if "--nt" in sys.argv else ""
STAMP = "--stamp" in sys.argv
RR = "--rr" in sys.argv
WSTRIDE, TSTRIDE = (6144, 49152) if RR else (49152, 6144)
OUTFILE = "cdna_kernels/%s.s" % NAME
for a in sys.argv[1:]:
    if a.startswith("--out="):
        OUTFILE = a[6:]

KV_BYTES = 100663296
WQ_BYTES = 640 * 6144 * 2
WO_BYTES = 6144 * 640 * 2
WD_BYTES = 1536 * 640 * 2
WS_BYTES = 402653184
OOB = 0x7f000000
FLAG_OFF = 2688
QP_OFF, OP_OFF, AP_OFF = 0, 1152, 2048
L_FLAG = 51200
L_QR = 0
L_GR = 15360
L_PART = 0
L_QB = 34816
L_OPR = 35328
L_GUR = 41600
L_OF = 44672
L_GATE = 45632
L_RED = 0
L_FR = 46080
L_KR = 51712
LDS_BYTES = L_KR + 16 * 6144

S_WG = 2
S_H, S_S, S_W = 3, 62, 63
SRD_K, SRD_V, SRD_WQ, SRD_WO, SRD_WD, SRD_WS, SRD_X, SRD_DBG = 4, 8, 12, 16, 20, 24, 28, 32
KA0 = 36
S_MHI = 64
S_T0, S_T1, S_T2, S_T3 = 66, 67, 68, 69
S_EX = 70
S_BASE = 72
S_NA, S_NB = 73, 74
S_IT = 75
S_SCALE, S_LOG2E = 76, 77
S_WSB = 78
S_M480 = 80
S_C1 = 82
SRD_GW, SRD_OUT = 84, 88
S_WGP, S_WUP = 92, 94
S_ST = 96
S_KL = 79
S_T4 = 100

V_T, V_LANE, V_G, V_I, V_OK, V_OV1, V_OV2 = 0, 1, 2, 3, 4, 5, 6
A = [7, 8, 9, 10, 11, 12, 13, 14, 15]
KA, VA, KB, VB = 16, 40, 64, 88
STG = 64
XR = 192
GU = 208
XG = 216
AQ = 220
AG = 228
V_SL, V_C, V_SL2, V_C2 = 236, 237, 238, 239
V_NEG = 240
QF = 112
ACC = 136
WR = 152
D = 172
P = 176
VM, VL = 180, 181
T2 = 182
V_OW = 200
V_KRD = 202
BIG = 16


def srd(dst, lo, hi, nbytes):
    I(f"s_mov_b32 s{dst}, s{lo}")
    I(f"s_and_b32 s{dst+1}, s{hi}, 0xffff")
    I(f"s_mov_b32 s{dst+2}, {nbytes}")
    I(f"s_mov_b32 s{dst+3}, 0x00020000")


def divmod_const(vq, vr, vsrc, d, magic):
    I(f"v_mul_u32_u24 v{vq}, {magic}, v{vsrc}")
    I(f"v_lshrrev_b32 v{vq}, 16, v{vq}")
    I(f"v_mul_u32_u24 v{vr}, {d}, v{vq}")
    I(f"v_sub_u32 v{vr}, v{vsrc}, v{vr}")


stamp_n = [0]
def stamp(tag):
    if not STAMP:
        return
    n = stamp_n[0]; stamp_n[0] += 1
    assert n < 13
    I(f"s_memrealtime s[{KA0+2*n}:{KA0+2*n+1}]")
    I("s_waitcnt lgkmcnt(0)")


def dump_stamps():
    if not STAMP:
        return
    I(f"s_lshl_b32 s{S_ST}, s{S_WG}, 3")
    I(f"s_add_u32 s{S_ST}, s{S_ST}, s{S_W}")
    I(f"s_lshl_b32 s{S_ST}, s{S_ST}, 8")
    I(f"s_add_u32 s{S_ST}, s{S_ST}, {0x1000000}")
    I(f"v_mov_b32 v252, s{S_ST}")
    I(f"v_cmp_eq_u32 vcc, 0, v{V_LANE}")
    I(f"s_and_saveexec_b64 s[{S_ST}:{S_ST+1}], vcc")
    for n in range(stamp_n[0]):
        I(f"v_mov_b32 v250, s{KA0+2*n}")
        I(f"v_mov_b32 v251, s{KA0+2*n+1}")
        I(f"buffer_store_dwordx2 v[250:251], v252, s[{SRD_WS}:{SRD_WS+3}], 0 offen offset:{8*n}")
        I("s_nop 2")


def fma_chunk(acc, data, scal, tmp, first=False):
    for j in range(4):
        I(f"v_lshlrev_b32 v{tmp}, 16, v{data+j}")
        I(f"v_and_b32 v{tmp+1}, 0xffff0000, v{data+j}")
        op = "v_mul_f32" if first else "v_fmac_f32"
        I(f"{op} v{acc+2*j}, v{scal}, v{tmp}")
        I(f"{op} v{acc+2*j+1}, v{scal}, v{tmp+1}")


def canon(v, tmp):
    I(f"v_cmp_eq_u32 vcc, -1, v{v}")
    I(f"v_mov_b32 v{tmp}, 0x7fc00000")
    I("s_nop 1")
    I(f"v_cndmask_b32 v{v}, v{v}, v{tmp}, vcc")


def rbf(v, tmp):
    I(f"v_cvt_pk_bf16_f32 v{tmp}, v{v}, v{v}")
    I(f"v_lshlrev_b32 v{v}, 16, v{tmp}")


def load_k(slot, soff):
    x = 0 if slot == KA else 1
    I(f"s_add_u32 m0, s{S_KL}, {x*6144}")
    I(f"s_add_u32 s{S_T4}, s{soff}, 4096")
    for j in range(4):
        I(f"buffer_load_dwordx4 v{V_OK}, s[{SRD_K}:{SRD_K+3}], s{soff} offen offset:{j*1024}{NT} lds")
    I(f"s_add_u32 m0, s{S_KL}, {x*6144 + 4096}")
    I("s_nop 0")
    for j in range(2):
        I(f"buffer_load_dwordx4 v{V_OK}, s[{SRD_K}:{SRD_K+3}], s{S_T4} offen offset:{j*1024}{NT} lds")


def load_v(slot, soff):
    for r in range(4):
        I(f"buffer_load_dwordx4 v[{slot+4*r}:{slot+4*r+3}], v{V_OV1}, s[{SRD_V}:{SRD_V+3}], s{soff} offen offset:{r*384}{NT}")
    for r in range(2):
        I(f"buffer_load_dwordx4 v[{slot+16+4*r}:{slot+16+4*r+3}], v{V_OV2}, s[{SRD_V}:{SRD_V+3}], s{soff} offen offset:{r*768}{NT}")


def poll_check(regs, lab_retry, lab_done, tmp):
    cur = regs[0]
    rest = list(regs[1:])
    while rest:
        if len(rest) >= 2:
            I(f"v_max3_u32 v{tmp}, v{cur}, v{rest[0]}, v{rest[1]}")
            rest = rest[2:]
        else:
            I(f"v_max_u32 v{tmp}, v{cur}, v{rest[0]}")
            rest = rest[1:]
        cur = tmp
    I(f"v_cmp_eq_u32 vcc, -1, v{cur}")
    I("s_nop 4")
    I(f"s_cbranch_vccz {lab_done}")
    I("s_sleep 2")
    I(f"s_branch {lab_retry}")


def mask_lt(n, save=S_EX):
    I(f"v_cmp_gt_u32 vcc, {n}, v{V_T}")
    I(f"s_and_saveexec_b64 s[{save}:{save+1}], vcc")


def unmask(save=S_EX):
    I(f"s_mov_b64 exec, s[{save}:{save+1}]")


e(HEADER.rstrip("\n"))
e("; Override launch geometry by editing the next line (default: block=256,")
e(f"; @launch grid=(256,1,1) block=(512,1,1) lds={LDS_BYTES}")
e('.amdgcn_target "amdgcn-amd-amdhsa--gfx950"')
e(".text")
e(f".globl {NAME}_kernel")
e(".p2align 8")
e(f".type {NAME}_kernel,@function")
e(f"{NAME}_kernel:")
I(f"s_cmp_ge_u32 s{S_WG}, 256")
I("s_cbranch_scc1 L_end")
I(f"s_load_dwordx16 s[{KA0}:{KA0+15}], s[0:1], 0")
I(f"s_load_dwordx8 s[{KA0+16}:{KA0+23}], s[0:1], 64")
I(f"s_load_dwordx2 s[{KA0+24}:{KA0+25}], s[0:1], 96")
a0, a1, a2, a3, a4, a5, a6, a7, a8 = A
I(f"v_and_b32 v{V_LANE}, 63, v{V_T}")
I(f"v_lshrrev_b32 v{a0}, 6, v{V_T}")
I(f"v_lshrrev_b32 v{V_G}, 4, v{V_LANE}")
I(f"v_and_b32 v{V_I}, 15, v{V_LANE}")
I(f"v_readfirstlane_b32 s{S_W}, v{a0}")
I(f"s_and_b32 s{S_H}, s{S_WG}, 31")
I(f"s_lshr_b32 s{S_S}, s{S_WG}, 5")
I(f"s_lshl_b32 s{S_WSB}, s{S_WG}, 12")
I(f"v_mul_u32_u24 v{V_KRD}, 384, v{V_I}")
I(f"v_lshl_add_u32 v{V_KRD}, v{V_G}, 4, v{V_KRD}")
I(f"v_lshlrev_b32 v{V_OK}, 4, v{V_LANE}")
I(f"s_mul_i32 s{S_KL}, s{S_W}, 12288")
I(f"s_add_u32 s{S_KL}, s{S_KL}, {L_KR}")
I(f"v_add_u32 v{V_KRD}, s{S_KL}, v{V_KRD}")
I(f"v_mul_u32_u24 v{a1}, 1536, v{V_G}")
I(f"v_lshl_add_u32 v{V_OV1}, v{V_I}, 4, v{a1}")
I(f"v_lshrrev_b32 v{a2}, 3, v{V_I}")
I(f"v_mul_u32_u24 v{a2}, 384, v{a2}")
I(f"v_and_b32 v{a3}, 7, v{V_I}")
I(f"v_lshlrev_b32 v{a3}, 4, v{a3}")
I(f"v_add3_u32 v{V_OV2}, v{a1}, v{a2}, v{a3}")
I(f"v_add_u32 v{V_OV2}, 256, v{V_OV2}")
I(f"v_cmp_lt_u32 s[{S_MHI}:{S_MHI+1}], 7, v{V_I}")
I(f"v_cmp_gt_u32 vcc, 480, v{V_T}")
I(f"s_mov_b64 s[{S_M480}:{S_M480+1}], vcc")
I(f"s_mov_b32 s{S_SCALE}, 0x3d93cd3a")
I(f"s_mov_b32 s{S_LOG2E}, 0x3fb8aa3b")
divmod_const(V_SL, V_C, V_T, 24, 2731)
divmod_const(V_SL2, V_C2, V_T, 12, 5462)
for k in range(4):
    I(f"v_mov_b32 v{V_NEG+k}, -1")
I("s_waitcnt lgkmcnt(0)")
kp = lambda n: (KA0 + 2 * n, KA0 + 2 * n + 1)
srd(SRD_WS, *kp(12), WS_BYTES)
srd(SRD_X, *kp(0), 1280)
srd(SRD_WQ, *kp(3), WQ_BYTES)
srd(SRD_K, *kp(1), KV_BYTES)
srd(SRD_V, *kp(2), KV_BYTES)
srd(SRD_WO, *kp(4), WO_BYTES)
srd(SRD_WD, *kp(8), WD_BYTES)
srd(SRD_GW, *kp(9), 1280)
srd(SRD_OUT, *kp(10), 1280)
srd(SRD_DBG, *kp(11), 256)
I(f"s_mov_b64 s[{S_WGP}:{S_WGP+1}], s[{kp(6)[0]}:{kp(6)[1]}]")
I(f"s_mov_b64 s[{S_WUP}:{S_WUP+1}], s[{kp(7)[0]}:{kp(7)[1]}]")
stamp("start")
I(f"s_mul_i32 s{S_BASE}, s{S_H}, 3145728")
I(f"s_mul_i32 s{S_T0}, s{S_S}, 393216")
I(f"s_add_u32 s{S_BASE}, s{S_BASE}, s{S_T0}")
I(f"s_mul_i32 s{S_T0}, s{S_W}, {WSTRIDE}")
I(f"s_add_u32 s{S_BASE}, s{S_BASE}, s{S_T0}")

I(f"v_mov_b32 v{a8}, {OOB}")
I(f"v_lshl_add_u32 v{a0}, v{V_T}, 4, s{S_WSB}")
I(f"v_cmp_gt_u32 vcc, 97, v{V_T}")
I(f"v_mov_b32 v{a2}, 0")
I(f"v_mov_b32 v{a3}, 0")
I(f"v_cndmask_b32 v{a0}, v{a8}, v{a0}, vcc")
I(f"buffer_store_dwordx4 v[{V_NEG}:{V_NEG+3}], v{a0}, s[{SRD_WS}:{SRD_WS+3}], 0 offen offset:{OP_OFF} sc1")
I(f"v_mov_b32 v{a1}, {L_FLAG}")
I(f"ds_write_b64 v{a1}, v[{a2}:{a3}]") if a2 % 2 == 0 else (I(f"ds_write_b32 v{a1}, v{a2}"), I(f"ds_write_b32 v{a1}, v{a2} offset:4"))
I(f"s_mul_i32 s{S_T0}, s{S_S}, 160")
I(f"v_lshlrev_b32 v{a1}, 3, v{V_SL}")
I(f"v_cndmask_b32 v{a1}, v{a8}, v{a1}, s[{S_M480}:{S_M480+1}]")
I(f"buffer_load_dwordx2 v[{XR}:{XR+1}], v{a1}, s[{SRD_X}:{SRD_X+3}], s{S_T0} offen")
I(f"v_lshlrev_b32 v{a2}, 2, v{V_SL2}")
I(f"v_cndmask_b32 v{a2}, v{a8}, v{a2}, s[{S_M480}:{S_M480+1}]")
I(f"buffer_load_dword v{XG}, v{a2}, s[{SRD_X}:{SRD_X+3}], s{S_T0} offen")
I(f"v_mul_u32_u24 v{a0}, {4*12288 // 16}, v{V_SL}")
I(f"v_add_u32 v{a0}, v{a0}, v{V_C}")
I(f"v_lshlrev_b32 v{a0}, 4, v{a0}")
I(f"v_cndmask_b32 v{a0}, v{a8}, v{a0}, s[{S_M480}:{S_M480+1}]")
I(f"s_mul_i32 s{S_T0}, s{S_H}, 384")
I(f"s_mul_i32 s{S_T1}, s{S_S}, {80*12288}")
I(f"s_add_u32 s{S_T0}, s{S_T0}, s{S_T1}")
for k in range(4):
    I(f"buffer_load_dwordx4 v[{STG+4*k}:{STG+4*k+3}], v{a0}, s[{SRD_WQ}:{SRD_WQ+3}], s{S_T0} offen")
    if k != 3:
        I(f"s_add_u32 s{S_T0}, s{S_T0}, 12288")
I(f"v_min_u32 v{a3}, 39, v{V_SL2}")
I(f"v_cmp_gt_u32 vcc, 6, v{V_C2}")
I(f"v_subrev_u32 v{a4}, 6, v{V_C2}")
I(f"v_mov_b32 v{a5}, s{S_WUP}")
I(f"v_mov_b32 v{a6}, s{S_WUP+1}")
I(f"v_cndmask_b32 v{a4}, v{a4}, v{V_C2}, vcc")
I(f"v_mov_b32 v{a0}, s{S_WGP}")
I(f"v_mov_b32 v{a1}, s{S_WGP+1}")
I(f"v_cndmask_b32 v{a5}, v{a5}, v{a0}, vcc")
I(f"v_cndmask_b32 v{a6}, v{a6}, v{a1}, vcc")
I(f"s_mul_i32 s{S_T0}, s{S_S}, {80*3072}")
I(f"s_mul_i32 s{S_T1}, s{S_H}, 96")
I(f"s_add_u32 s{S_T0}, s{S_T0}, s{S_T1}")
I(f"v_mul_u32_u24 v{a3}, 6144, v{a3}")
I(f"v_lshl_add_u32 v{a3}, v{a4}, 4, v{a3}")
I(f"v_add_u32 v{a3}, s{S_T0}, v{a3}")
I(f"v_add_co_u32 v244, vcc, v{a5}, v{a3}")
I("s_nop 1")
I(f"v_addc_co_u32 v245, vcc, 0, v{a6}, vcc")
I(f"global_load_dwordx4 v[{GU}:{GU+3}], v[244:245], off")
I(f"global_load_dwordx4 v[{GU+4}:{GU+7}], v[244:245], off offset:3072")
divmod_const(V_OW + 1, a3, V_T, 10, 6554)
I(f"v_mul_u32_u24 v{V_OW}, 1280, v{V_OW+1}")
I(f"v_lshl_add_u32 v{V_OW}, v{a3}, 4, v{V_OW}")
I(f"v_cndmask_b32 v{V_OW}, v{a8}, v{V_OW}, s[{S_M480}:{S_M480+1}]")
I(f"s_add_u32 s{S_NA}, s{S_BASE}, {TSTRIDE}")
def load_w():
    I(f"s_mul_i32 s{S_T0}, s{S_H}, {192*1280}")
    I(f"s_mul_i32 s{S_T1}, s{S_S}, 160")
    I(f"s_add_u32 s{S_T0}, s{S_T0}, s{S_T1}")
    for i in range(4):
        I(f"buffer_load_dwordx4 v[{WR+4*i}:{WR+4*i+3}], v{V_OW}, s[{SRD_WO}:{SRD_WO+3}], s{S_T0} offen")
        if i != 3:
            I(f"s_add_u32 s{S_T0}, s{S_T0}, {48*1280}")
    I(f"s_mul_i32 s{S_T0}, s{S_H}, {48*1280}")
    I(f"s_add_u32 s{S_T0}, s{S_T0}, s{S_T1}")
    I(f"buffer_load_dwordx4 v[{WR+16}:{WR+19}], v{V_OW}, s[{SRD_WD}:{SRD_WD+3}], s{S_T0} offen")
I("s_waitcnt vmcnt(0)")
load_k(KA, S_BASE)
for k in range(4):
    xs = XR + k // 2
    if k % 2 == 0:
        I(f"v_lshlrev_b32 v{a1}, 16, v{xs}")
    else:
        I(f"v_and_b32 v{a1}, 0xffff0000, v{xs}")
    fma_chunk(AQ, STG + 4 * k, a1, a2, first=(k == 0))
I(f"v_lshlrev_b32 v{a1}, 16, v{XG}")
fma_chunk(AG, GU, a1, a2, first=True)
I(f"v_and_b32 v{a1}, 0xffff0000, v{XG}")
fma_chunk(AG, GU + 4, a1, a2)
I(f"v_mul_u32_u24 v{a1}, 768, v{V_SL}")
I(f"v_lshl_add_u32 v{a1}, v{V_C}, 5, v{a1}")
I(f"v_mul_u32_u24 v{a2}, 384, v{V_SL2}")
I(f"v_lshl_add_u32 v{a2}, v{V_C2}, 5, v{a2}")
I(f"s_mov_b64 s[{S_EX}:{S_EX+1}], exec")
I(f"s_mov_b64 exec, s[{S_M480}:{S_M480+1}]")
I(f"ds_write_b128 v{a1}, v[{AQ}:{AQ+3}] offset:{L_QR}")
I(f"ds_write_b128 v{a1}, v[{AQ+4}:{AQ+7}] offset:{L_QR+16}")
I(f"ds_write_b128 v{a2}, v[{AG}:{AG+3}] offset:{L_GR}")
I(f"ds_write_b128 v{a2}, v[{AG+4}:{AG+7}] offset:{L_GR+16}")
unmask()
I("s_waitcnt lgkmcnt(0)")
I("s_barrier")
stamp("b1")
I(f"s_cmp_lt_u32 s{S_W}, 5")
I("s_cbranch_scc1 L_a_wave")
load_v(VA, S_BASE)
load_k(KB, S_NA)
load_v(VB, S_NA)
load_w()
I("s_branch L_a_done")
e("L_a_wave:")
qregs = [T2 + sl if sl < 18 else 244 + sl - 18 for sl in range(20)]
I(f"v_lshlrev_b32 v{a1}, 2, v{V_T}")
I(f"s_cmp_ge_u32 s{S_W}, 3")
I("s_cbranch_scc1 L_a_notq")
for sl in range(20):
    I(f"ds_read_b32 v{qregs[sl]}, v{a1} offset:{L_QR + sl*768}")
I("s_waitcnt lgkmcnt(0)")
I(f"v_add_f32 v{a2}, v{qregs[0]}, v{qregs[1]}")
for r in qregs[2:]:
    I(f"v_add_f32 v{a2}, v{a2}, v{r}")
I("s_branch L_a_pub")
e("L_a_notq:")
I(f"v_subrev_u32 v{a3}, 768, v{a1}")
I(f"v_min_u32 v{a3}, 380, v{a3}")
for half in range(2):
    for sl in range(20):
        I(f"ds_read_b32 v{qregs[sl]}, v{a3} offset:{L_GR + (half*20+sl)*384}")
    I("s_waitcnt lgkmcnt(0)")
    if half == 0:
        I(f"v_add_f32 v{a2}, v{qregs[0]}, v{qregs[1]}")
        rest = qregs[2:]
    else:
        rest = qregs
    for r in rest:
        I(f"v_add_f32 v{a2}, v{a2}, v{r}")
e("L_a_pub:")
I(f"v_cmp_gt_u32 vcc, 288, v{V_T}")
I(f"v_add_u32 v{a3}, s{S_WSB}, v{a1}")
I("s_nop 0")
I(f"v_cndmask_b32 v{a3}, v{a8}, v{a3}, vcc")
I(f"v_cndmask_b32 v{a5}, v{a8}, v{a1}, vcc")
I(f"buffer_store_dword v{a2}, v{a3}, s[{SRD_WS}:{SRD_WS+3}], 0 offen offset:{QP_OFF} sc1")
I(f"v_mov_b32 v{a1}, {L_FLAG}")
I(f"v_mov_b32 v{a2}, 1")
I(f"s_lshl_b32 s{S_T1}, s{S_H}, 2")
I(f"v_mov_b32 v{a4}, s{S_T1}")
I("s_waitcnt vmcnt(0)")
stamp("ack")
I(f"v_cmp_eq_u32 vcc, 0, v{V_LANE}")
I(f"s_and_saveexec_b64 s[{S_EX}:{S_EX+1}], vcc")
I(f"ds_add_rtn_u32 v{a3}, v{a1}, v{a2}")
I("s_waitcnt lgkmcnt(0)")
I(f"v_readfirstlane_b32 s{S_T0}, v{a3}")
I(f"s_cmp_lg_u32 s{S_T0}, 4")
I("s_cbranch_scc1 L_a_noatom")
I(f"v_mov_b32 v{a3}, 1")
I(f"buffer_atomic_add v{a3}, v{a4}, s[{SRD_DBG}:{SRD_DBG+3}], 0 offen sc0 sc1")
I("s_waitcnt vmcnt(0)")
I(f"v_readfirstlane_b32 s{S_T0}, v{a3}")
I(f"s_cmp_lg_u32 s{S_T0}, 7")
I("s_cbranch_scc1 L_a_noatom")
I(f"s_mov_b64 exec, 0xff")
I(f"s_lshl_b32 s{S_T0}, s{S_H}, 12")
I(f"v_lshlrev_b32 v{a3}, 17, v{V_LANE}")
I(f"buffer_store_dword v{a2}, v{a3}, s[{SRD_WS}:{SRD_WS+3}], s{S_T0} offen offset:{FLAG_OFF} sc1")
e("L_a_noatom:")
unmask()
I(f"s_cmp_lg_u32 s{S_W}, 0")
I("s_cbranch_scc1 L_a_others")
I(f"v_mov_b32 v{a4}, s{S_WSB}")
e("L_a_gpoll:")
I(f"buffer_load_dword v{a3}, v{a4}, s[{SRD_WS}:{SRD_WS+3}], 0 offen offset:{FLAG_OFF} sc1")
I("s_waitcnt vmcnt(0)")
I(f"v_readfirstlane_b32 s{S_T0}, v{a3}")
I(f"s_cmp_eq_u32 s{S_T0}, 1")
I("s_cbranch_scc1 L_a_gok")
I("s_sleep 2")
I("s_branch L_a_gpoll")
e("L_a_gok:")
I(f"ds_write_b32 v{a1}, v{a2} offset:4")
I("s_branch L_a_gather")
e("L_a_others:")
load_v(VA, S_BASE)
load_k(KB, S_NA)
e("L_a_lspin:")
I(f"ds_read_b32 v{a3}, v{a1} offset:4")
I("s_waitcnt lgkmcnt(0)")
I(f"v_readfirstlane_b32 s{S_T0}, v{a3}")
I(f"s_cmp_lg_u32 s{S_T0}, 0")
I("s_cbranch_scc1 L_a_gather")
I("s_sleep 1")
I("s_branch L_a_lspin")
e("L_a_gather:")
stamp("flag")
I(f"s_lshl_b32 s{S_T0}, s{S_H}, 12")
for p in range(8):
    I(f"buffer_load_dword v{T2+p}, v{a5}, s[{SRD_WS}:{SRD_WS+3}], s{S_T0} offen offset:{QP_OFF} sc1")
    if p != 7:
        I(f"s_add_u32 s{S_T0}, s{S_T0}, {32*4096}")
I(f"s_cmp_lg_u32 s{S_W}, 0")
I("s_cbranch_scc1 L_a_g2")
load_v(VA, S_BASE)
load_k(KB, S_NA)
load_v(VB, S_NA)
load_w()
I("s_waitcnt vmcnt(23)")
I("s_branch L_a_g3")
e("L_a_g2:")
load_v(VB, S_NA)
load_w()
I("s_waitcnt vmcnt(11)")
e("L_a_g3:")
I(f"v_add_f32 v{a2}, v{T2}, v{T2+1}")
for p in range(2, 8):
    I(f"v_add_f32 v{a2}, v{a2}, v{T2+p}")
I(f"v_cvt_pk_bf16_f32 v{a2}, v{a2}, v{a2}")
I(f"s_cmp_ge_u32 s{S_W}, 3")
I("s_cbranch_scc1 L_a_gus")
I(f"v_lshlrev_b32 v{a3}, 1, v{V_T}")
I(f"ds_write_b16 v{a3}, v{a2} offset:{L_QB}")
I("s_branch L_a_done")
e("L_a_gus:")
I(f"v_lshlrev_b32 v{a2}, 16, v{a2}")
I(f"v_lshlrev_b32 v{a3}, 2, v{V_T}")
I(f"v_cmp_gt_u32 vcc, 288, v{V_T}")
I(f"s_and_saveexec_b64 s[{S_EX}:{S_EX+1}], vcc")
I(f"ds_write_b32 v{a3}, v{a2} offset:{L_GUR - 768}")
unmask()
e("L_a_done:")
I("s_waitcnt lgkmcnt(0)")
I("s_barrier")
stamp("b2")
I(f"v_lshlrev_b32 v{a1}, 4, v{V_G}")
for j in range(6):
    I(f"ds_read_b128 v[{QF+4*j}:{QF+4*j+3}], v{a1} offset:{L_QB + 64*j}")
for k in range(16):
    I(f"v_mov_b32 v{ACC+k}, 0")
I(f"v_mov_b32 v{VM}, 0xff7fffff")
I(f"v_mov_b32 v{VL}, 0")
I(f"s_mov_b32 s{S_IT}, 0")
I(f"s_add_u32 s{S_NA}, s{S_BASE}, {2*TSTRIDE}")
I(f"s_add_u32 s{S_NB}, s{S_BASE}, {3*TSTRIDE}")
I("s_waitcnt lgkmcnt(0)")

def tile(KX, VX, soff):
    I("s_waitcnt vmcnt(18)")
    x = 0 if KX == KA else 1
    for j in range(6):
        I(f"ds_read_b128 v[{KA+4*j}:{KA+4*j+3}], v{V_KRD} offset:{x*6144 + j*64}")
    I("s_waitcnt lgkmcnt(0)")
    load_k(KX, soff)
    for j in range(6):
        c = "0" if j == 0 else f"v[{D}:{D+3}]"
        I(f"v_mfma_f32_16x16x32_bf16 v[{D}:{D+3}], v[{KA+4*j}:{KA+4*j+3}], v[{QF+4*j}:{QF+4*j+3}], {c}")
    I("s_nop 7")
    t0, t1 = T2, T2 + 1
    s = [T2 + 2, T2 + 3, T2 + 4, T2 + 5]
    I(f"v_cvt_pk_bf16_f32 v{t0}, v{D}, v{D+1}")
    I(f"v_cvt_pk_bf16_f32 v{t1}, v{D+2}, v{D+3}")
    I(f"v_lshlrev_b32 v{s[0]}, 16, v{t0}")
    I(f"v_and_b32 v{s[1]}, 0xffff0000, v{t0}")
    I(f"v_lshlrev_b32 v{s[2]}, 16, v{t1}")
    I(f"v_and_b32 v{s[3]}, 0xffff0000, v{t1}")
    for r in range(4):
        I(f"v_mul_f32 v{s[r]}, s{S_SCALE}, v{s[r]}")
    I(f"v_cvt_pk_bf16_f32 v{t0}, v{s[0]}, v{s[1]}")
    I(f"v_cvt_pk_bf16_f32 v{t1}, v{s[2]}, v{s[3]}")
    I(f"v_lshlrev_b32 v{s[0]}, 16, v{t0}")
    I(f"v_and_b32 v{s[1]}, 0xffff0000, v{t0}")
    I(f"v_lshlrev_b32 v{s[2]}, 16, v{t1}")
    I(f"v_and_b32 v{s[3]}, 0xffff0000, v{t1}")
    for r in range(4):
        I(f"v_mul_f32 v{s[r]}, s{S_LOG2E}, v{s[r]}")
    mn, al = T2 + 6, T2 + 7
    I(f"v_max3_f32 v{mn}, v{s[0]}, v{s[1]}, v{s[2]}")
    I(f"v_max3_f32 v{mn}, v{mn}, v{s[3]}, v{VM}")
    I(f"v_sub_f32 v{al}, v{VM}, v{mn}")
    for r in range(4):
        I(f"v_sub_f32 v{P+r}, v{s[r]}, v{mn}")
    I(f"v_exp_f32 v{al}, v{al}")
    for r in range(4):
        I(f"v_exp_f32 v{P+r}, v{P+r}")
    I(f"v_mov_b32 v{VM}, v{mn}")
    for k in range(16):
        I(f"v_mul_f32 v{ACC+k}, v{al}, v{ACC+k}")
    I(f"v_add_f32 v{t0}, v{P}, v{P+1}")
    I(f"v_add_f32 v{t1}, v{P+2}, v{P+3}")
    I(f"v_add_f32 v{t0}, v{t0}, v{t1}")
    I(f"v_fma_f32 v{VL}, v{VL}, v{al}, v{t0}")
    pa, pb = T2 + 8, T2 + 9
    I(f"v_cndmask_b32 v{pa}, v{P}, v{P+1}, s[{S_MHI}:{S_MHI+1}]")
    I(f"v_cndmask_b32 v{pb}, v{P+2}, v{P+3}, s[{S_MHI}:{S_MHI+1}]")
    I("s_waitcnt vmcnt(18)")
    for r in range(4):
        fma_chunk(ACC, VX + 4 * r, P + r, T2 + 10)
    fma_chunk(ACC + 8, VX + 16, pa, T2 + 10)
    fma_chunk(ACC + 8, VX + 20, pb, T2 + 10)
    load_v(VX, soff)

e("L_loop:")
I(f"s_cmp_lt_u32 s{S_IT}, 3")
I(f"s_cselect_b32 s{S_T0}, s{S_NA}, {OOB}")
I(f"s_cselect_b32 s{S_T1}, s{S_NB}, {OOB}")
tile(KA, VA, S_T0)
tile(KB, VB, S_T1)
I(f"s_add_u32 s{S_NA}, s{S_NA}, {2*TSTRIDE}")
I(f"s_add_u32 s{S_NB}, s{S_NB}, {2*TSTRIDE}")
if "--stampL" in sys.argv:
    for k in range(3):
        I(f"s_cmp_lg_u32 s{S_IT}, {k}")
        I(f"s_cbranch_scc1 L_sl{k}")
        stamp("it")
        e(f"L_sl{k}:")
I(f"s_add_u32 s{S_IT}, s{S_IT}, 1")
I(f"s_cmp_lt_u32 s{S_IT}, 4")
I("s_cbranch_scc1 L_loop")
stamp("loop_end")

I(f"s_lshl_b32 s{S_T0}, s{S_W}, 2")
I(f"v_add_u32 v{a1}, s{S_T0}, v{V_G}")
I(f"v_mul_u32_u24 v{a1}, 1040, v{a1}")
I(f"v_lshl_add_u32 v{a2}, v{V_I}, 5, v{a1}")
I(f"ds_write_b128 v{a2}, v[{ACC}:{ACC+3}] offset:{L_PART}")
I(f"ds_write_b128 v{a2}, v[{ACC+4}:{ACC+7}] offset:{L_PART+16}")
I(f"ds_write_b128 v{a2}, v[{ACC+8}:{ACC+11}] offset:{L_PART+512}")
I(f"ds_write_b128 v{a2}, v[{ACC+12}:{ACC+15}] offset:{L_PART+528}")
I(f"v_cmp_eq_u32 vcc, 0, v{V_I}")
I(f"s_and_saveexec_b64 s[{S_EX}:{S_EX+1}], vcc")
I(f"ds_write_b64 v{a1}, v[{VM}:{VM+1}] offset:{L_PART+1024}")
unmask()
I(f"s_cmp_lg_u32 s{S_W}, 5")
I("s_cbranch_scc1 L_t3_done")
I(f"v_lshlrev_b32 v{a1}, 2, v{V_LANE}")
e("L_t3_poll:")
I(f"buffer_load_dword v{a2}, v{a1}, s[{SRD_DBG}:{SRD_DBG+3}], 0 offen sc1")
I("s_waitcnt vmcnt(0)")
I(f"v_cmp_gt_u32 vcc, 8, v{a2}")
I(f"v_cmp_gt_u32 s[{S_C1}:{S_C1+1}], 32, v{V_LANE}")
I("s_nop 4")
I(f"s_and_b64 s[{S_C1}:{S_C1+1}], s[{S_C1}:{S_C1+1}], vcc")
I("s_cbranch_scc0 L_t3_done")
I("s_sleep 4")
I("s_branch L_t3_poll")
e("L_t3_done:")
I("s_waitcnt vmcnt(0) lgkmcnt(0)")
I("s_barrier")
I(f"s_cmp_ge_u32 s{S_W}, 3")
I("s_cbranch_scc1 L_t_gu")
I(f"v_mov_b32 v{a1}, 0")
for p in range(32):
    I(f"ds_read_b64 v[{BIG+2*p}:{BIG+2*p+1}], v{a1} offset:{L_PART + p*1040 + 1024}")
I("s_waitcnt lgkmcnt(0)")
I(f"v_max3_f32 v{a2}, v{BIG}, v{BIG+2}, v{BIG+4}")
for p in range(3, 31, 2):
    I(f"v_max3_f32 v{a2}, v{a2}, v{BIG+2*p}, v{BIG+2*p+2}")
I(f"v_max_f32 v{a2}, v{a2}, v{BIG+62}")
for p in range(32):
    I(f"v_sub_f32 v{BIG+2*p}, v{BIG+2*p}, v{a2}")
for p in range(32):
    I(f"v_exp_f32 v{BIG+2*p}, v{BIG+2*p}")
I("s_nop 0")
I(f"v_mul_f32 v{a3}, v{BIG}, v{BIG+1}")
for p in range(1, 32):
    I(f"v_fmac_f32 v{a3}, v{BIG+2*p}, v{BIG+2*p+1}")
I(f"v_lshlrev_b32 v{a1}, 2, v{V_T}")
I(f"s_cmp_eq_u32 s{S_W}, 2")
I("s_cbranch_scc1 L_t2_hi")
for p in range(32):
    I(f"ds_read_b32 v{BIG+2*p+1}, v{a1} offset:{L_PART + p*1040}")
I("s_waitcnt lgkmcnt(0)")
I(f"v_mul_f32 v{a4}, v{BIG}, v{BIG+1}")
for p in range(1, 32):
    I(f"v_fmac_f32 v{a4}, v{BIG+2*p}, v{BIG+2*p+1}")
I("s_branch L_t2_pub")
e("L_t2_hi:")
for p in range(32):
    I(f"ds_read_b32 v{BIG+2*p+1}, v{a1} offset:{L_PART + p*1040}")
for p in range(32):
    I(f"ds_read_b32 v{BIG+64+p}, v{a1} offset:{L_PART + p*1040 + 256}")
I("s_waitcnt lgkmcnt(0)")
for p in range(32):
    I(f"v_add_f32 v{BIG+2*p+1}, v{BIG+2*p+1}, v{BIG+64+p}")
I(f"v_mul_f32 v{a4}, v{BIG}, v{BIG+1}")
for p in range(1, 32):
    I(f"v_fmac_f32 v{a4}, v{BIG+2*p}, v{BIG+2*p+1}")
e("L_t2_pub:")
canon(a4, a5)
I(f"v_add_u32 v{a1}, s{S_WSB}, v{a1}")
I(f"buffer_store_dword v{a4}, v{a1}, s[{SRD_WS}:{SRD_WS+3}], 0 offen offset:{OP_OFF} sc1")
canon(a2, a5)
canon(a3, a5)
I(f"v_cmp_eq_u32 vcc, 0, v{V_T}")
I(f"v_mov_b32 v{a5}, 0")
I("s_nop 0")
I(f"v_cndmask_b32 v{a5}, v{a5}, v{a2}, vcc")
I(f"v_cmp_eq_u32 vcc, 1, v{V_T}")
I("s_nop 1")
I(f"v_cndmask_b32 v{a5}, v{a5}, v{a3}, vcc")
I(f"v_cmp_gt_u32 vcc, 4, v{V_T}")
I(f"v_mov_b32 v{a6}, {OOB}")
I("s_nop 0")
I(f"v_cndmask_b32 v{a1}, v{a6}, v{a1}, vcc")
I(f"buffer_store_dword v{a5}, v{a1}, s[{SRD_WS}:{SRD_WS+3}], 0 offen offset:{OP_OFF+768} sc1")
e("L_t_gu:")
I(f"v_mov_b32 v{a6}, {OOB}")
divmod_const(a2, a3, V_T, 49, 1338)
I(f"v_lshlrev_b32 v{a2}, 17, v{a2}")
I(f"v_lshl_add_u32 v{a2}, v{a3}, 4, v{a2}")
I(f"v_cmp_gt_u32 vcc, 392, v{V_T}")
I(f"s_lshl_b32 s{S_T0}, s{S_H}, 12")
I("s_nop 0")
I(f"v_cndmask_b32 v{a2}, v{a6}, v{a2}, vcc")
I(f"s_cmp_eq_u32 s{S_W}, 7")
I("s_cbranch_scc1 L_op_skip")
e("L_op_poll:")
I(f"buffer_load_dwordx4 v[{BIG}:{BIG+3}], v{a2}, s[{SRD_WS}:{SRD_WS+3}], s{S_T0} offen offset:{OP_OFF} sc1")
I("s_waitcnt vmcnt(0)")
poll_check([BIG, BIG + 1, BIG + 2, BIG + 3], "L_op_poll" if "--fullpoll" in sys.argv else "L_op_light", "L_op_done", a4)
e("L_op_light:")
I(f"v_lshlrev_b32 v{a5}, 17, v{V_LANE}")
I(f"v_cmp_gt_u32 vcc, 8, v{V_LANE}")
I("s_nop 1")
I(f"v_cndmask_b32 v{a5}, v{a6}, v{a5}, vcc")
e("L_op_light2:")
I(f"buffer_load_dword v{a4}, v{a5}, s[{SRD_WS}:{SRD_WS+3}], s{S_T0} offen offset:{OP_OFF+768} sc1")
I("s_waitcnt vmcnt(0)")
I(f"v_cmp_eq_u32 vcc, -1, v{a4}")
I("s_nop 4")
I("s_cbranch_vccz L_op_poll")
I("s_sleep 16")
I("s_branch L_op_light2")
e("L_op_done:")
I(f"v_lshlrev_b32 v{a1}, 4, v{V_T}")
mask_lt(392)
I(f"ds_write_b128 v{a1}, v[{BIG}:{BIG+3}] offset:{L_OPR}")
unmask()
e("L_op_skip:")
I("s_waitcnt lgkmcnt(0)")
I("s_barrier")
stamp("b4")
I(f"s_cmp_gt_u32 s{S_W}, 3")
I("s_cbranch_scc1 L_t5b")
I(f"s_cmp_eq_u32 s{S_W}, 3")
I("s_cbranch_scc1 L_t5h")
I(f"v_mov_b32 v{a1}, 0")
I(f"v_lshlrev_b32 v{a5}, 2, v{V_T}")
for p in range(8):
    I(f"ds_read_b64 v[{BIG+2*p}:{BIG+2*p+1}], v{a1} offset:{L_OPR + p*784 + 768}")
for p in range(8):
    I(f"ds_read_b32 v{BIG+16+p}, v{a5} offset:{L_OPR + p*784}")
I("s_waitcnt lgkmcnt(0)")
I(f"v_max3_f32 v{a2}, v{BIG}, v{BIG+2}, v{BIG+4}")
I(f"v_max3_f32 v{a2}, v{a2}, v{BIG+6}, v{BIG+8}")
I(f"v_max3_f32 v{a2}, v{a2}, v{BIG+10}, v{BIG+12}")
I(f"v_max_f32 v{a2}, v{a2}, v{BIG+14}")
for p in range(8):
    I(f"v_sub_f32 v{BIG+2*p}, v{BIG+2*p}, v{a2}")
for p in range(8):
    I(f"v_exp_f32 v{BIG+2*p}, v{BIG+2*p}")
I("s_nop 0")
I(f"v_mul_f32 v{a3}, v{BIG}, v{BIG+1}")
I(f"v_mul_f32 v{a4}, v{BIG}, v{BIG+16}")
for p in range(1, 8):
    I(f"v_fmac_f32 v{a3}, v{BIG+2*p}, v{BIG+2*p+1}")
    I(f"v_fmac_f32 v{a4}, v{BIG+2*p}, v{BIG+16+p}")
I(f"v_rcp_f32 v{a3}, v{a3}")
I("s_nop 0")
I(f"v_mul_f32 v{a4}, v{a4}, v{a3}")
rbf(a4, a6)
I(f"ds_write_b32 v{a5}, v{a4} offset:{L_OF}")
I("s_branch L_t5b")
e("L_t5h:")
I(f"v_lshlrev_b32 v{a5}, 2, v{V_LANE}")
I(f"v_min_u32 v{a5}, 188, v{a5}")
I(f"ds_read_b32 v{a2}, v{a5} offset:{L_GUR}")
I(f"ds_read_b32 v{a3}, v{a5} offset:{L_GUR + 192}")
I("s_waitcnt lgkmcnt(0)")
I(f"v_mul_f32 v{a2}, v{a2}, v{a3}")
rbf(a2, a6)
I(f"v_cmp_gt_u32 vcc, 48, v{V_LANE}")
I(f"s_and_saveexec_b64 s[{S_EX}:{S_EX+1}], vcc")
I(f"ds_write_b32 v{a5}, v{a2} offset:{L_OF+768}")
unmask()
e("L_t5b:")
I("s_waitcnt lgkmcnt(0)")
I("s_barrier")
I(f"v_min_u32 v{a1}, 47, v{V_OW+1}")
I(f"v_lshlrev_b32 v{a1}, 2, v{a1}")
for i in range(4):
    I(f"ds_read_b32 v{BIG+i}, v{a1} offset:{L_OF + 192*i}")
I(f"ds_read_b32 v{BIG+4}, v{a1} offset:{L_OF + 768}")
I("s_waitcnt lgkmcnt(0)")
for i in range(4):
    fma_chunk(BIG + 8, WR + 4 * i, BIG + i, a2, first=(i == 0))
fma_chunk(BIG + 16, WR + 16, BIG + 4, a2, first=True)
I(f"v_lshlrev_b32 v{a1}, 6, v{V_T}")
I(f"s_mov_b64 s[{S_EX}:{S_EX+1}], exec")
I(f"s_mov_b64 exec, s[{S_M480}:{S_M480+1}]")
for k in range(4):
    I(f"ds_write_b128 v{a1}, v[{BIG+8+4*k}:{BIG+11+4*k}] offset:{L_RED + 16*k}")
unmask()
I("s_waitcnt lgkmcnt(0)")
I("s_barrier")
I(f"s_cmp_ge_u32 s{S_W}, 3")
I("s_cbranch_scc1 L_t6")
I(f"v_min_u32 v{a1}, 159, v{V_T}")
I(f"v_cmp_lt_u32 vcc, 79, v{a1}")
I(f"v_subrev_u32 v{a2}, 80, v{a1}")
I("s_nop 0")
I(f"v_cndmask_b32 v{a2}, v{a1}, v{a2}, vcc")
I(f"v_cndmask_b32 v{a3}, 0, 32, vcc")
I(f"v_lshrrev_b32 v{a4}, 3, v{a2}")
I(f"v_and_b32 v{a2}, 7, v{a2}")
I(f"v_lshl_add_u32 v{a3}, v{a4}, 6, v{a3}")
I(f"v_lshl_add_u32 v{a3}, v{a2}, 2, v{a3}")
for sl in range(48):
    I(f"ds_read_b32 v{BIG+sl}, v{a3} offset:{L_RED + sl*640}")
I("s_waitcnt lgkmcnt(0)")
for k in range(0, 48, 4):
    I(f"v_add_f32 v{BIG+k}, v{BIG+k}, v{BIG+k+1}")
    I(f"v_add_f32 v{BIG+k+2}, v{BIG+k+2}, v{BIG+k+3}")
    I(f"v_add_f32 v{BIG+k}, v{BIG+k}, v{BIG+k+2}")
for k in range(4, 48, 4):
    I(f"v_add_f32 v{BIG}, v{BIG}, v{BIG+k}")
canon(BIG, a5)
I(f"v_lshl_add_u32 v{a1}, v{V_T}, 2, s{S_WSB}")
I(f"v_cmp_gt_u32 vcc, 160, v{V_T}")
I(f"v_mov_b32 v{a6}, {OOB}")
I("s_nop 0")
I(f"v_cndmask_b32 v{a1}, v{a6}, v{a1}, vcc")
I(f"buffer_store_dword v{BIG}, v{a1}, s[{SRD_WS}:{SRD_WS+3}], 0 offen offset:{AP_OFF} sc1")
e("L_t6:")
stamp("t6")
I(f"s_cmp_lg_u32 s{S_H}, 0")
I("s_cbranch_scc1 L_fin")
I(f"s_cmp_eq_u32 s{S_W}, 7")
I("s_cbranch_scc1 L_gate")
I(f"s_cmp_ge_u32 s{S_W}, 5")
I("s_cbranch_scc1 L_fin_bar")
divmod_const(a2, a3, V_T, 40, 1639)
I(f"v_lshlrev_b32 v{a2}, 14, v{a2}")
I(f"v_lshl_add_u32 v{a2}, v{a3}, 4, v{a2}")
I(f"s_lshl_b32 s{S_T0}, s{S_S}, 17")
I(f"s_add_u32 s{S_T1}, s{S_T0}, 4096")
I(f"s_add_u32 s{S_T2}, s{S_T0}, 8192")
I(f"s_add_u32 s{S_T3}, s{S_T0}, 12288")
e("L_ap_poll:")
for k, sr in enumerate((S_T0, S_T1, S_T2, S_T3)):
    I(f"buffer_load_dwordx4 v[{BIG+4*k}:{BIG+4*k+3}], v{a2}, s[{SRD_WS}:{SRD_WS+3}], s{sr} offen offset:{AP_OFF} sc1")
I("s_waitcnt vmcnt(0)")
poll_check(list(range(BIG, BIG + 16)), "L_ap_poll", "L_ap_done", a4)
e("L_ap_light:")
I(f"v_lshlrev_b32 v{a5}, 12, v{V_LANE}")
I(f"v_cmp_gt_u32 vcc, 32, v{V_LANE}")
I(f"v_mov_b32 v{a6}, {OOB}")
I("s_nop 0")
I(f"v_cndmask_b32 v{a5}, v{a6}, v{a5}, vcc")
e("L_ap_light2:")
I(f"buffer_load_dword v{a4}, v{a5}, s[{SRD_WS}:{SRD_WS+3}], s{S_T0} offen offset:{AP_OFF} sc1")
I("s_waitcnt vmcnt(0)")
I(f"v_cmp_eq_u32 vcc, -1, v{a4}")
I("s_nop 4")
I("s_cbranch_vccz L_ap_poll")
I("s_sleep 8")
I("s_branch L_ap_light2")
e("L_ap_done:")
for k in range(4):
    I(f"v_add_f32 v{BIG+k}, v{BIG+k}, v{BIG+4+k}")
    I(f"v_add_f32 v{BIG+8+k}, v{BIG+8+k}, v{BIG+12+k}")
for k in range(4):
    I(f"v_add_f32 v{BIG+k}, v{BIG+k}, v{BIG+8+k}")
I(f"v_lshlrev_b32 v{a1}, 4, v{V_T}")
I(f"ds_write_b128 v{a1}, v[{BIG}:{BIG+3}] offset:{L_FR}")
I("s_branch L_fin_bar")
e("L_gate:")
I(f"v_lshlrev_b32 v{a1}, 5, v{V_LANE}")
I(f"buffer_load_dwordx4 v[{BIG}:{BIG+3}], v{a1}, s[{SRD_X}:{SRD_X+3}], 0 offen")
I(f"buffer_load_dwordx4 v[{BIG+4}:{BIG+7}], v{a1}, s[{SRD_X}:{SRD_X+3}], 0 offen offset:16")
I(f"buffer_load_dwordx4 v[{BIG+8}:{BIG+11}], v{a1}, s[{SRD_GW}:{SRD_GW+3}], 0 offen")
I(f"buffer_load_dwordx4 v[{BIG+12}:{BIG+15}], v{a1}, s[{SRD_GW}:{SRD_GW+3}], 0 offen offset:16")
I(f"v_mov_b32 v{a2}, 0")
I("s_waitcnt vmcnt(0)")
for k in range(8):
    I(f"v_lshlrev_b32 v{a3}, 16, v{BIG+k}")
    I(f"v_lshlrev_b32 v{a4}, 16, v{BIG+8+k}")
    I(f"v_and_b32 v{a5}, 0xffff0000, v{BIG+k}")
    I(f"v_and_b32 v{a6}, 0xffff0000, v{BIG+8+k}")
    I(f"v_mul_f32 v{a3}, v{a3}, v{a4}")
    I(f"v_mul_f32 v{a5}, v{a5}, v{a6}")
    I(f"v_cvt_pk_bf16_f32 v{a3}, v{a3}, v{a5}")
    I(f"v_lshlrev_b32 v{a4}, 16, v{a3}")
    I(f"v_and_b32 v{a5}, 0xffff0000, v{a3}")
    I(f"v_add_f32 v{a2}, v{a2}, v{a4}")
    I(f"v_add_f32 v{a2}, v{a2}, v{a5}")
I(f"v_lshlrev_b32 v{a1}, 2, v{V_LANE}")
for m in (1, 2, 4, 8, 16, 32):
    I(f"v_xor_b32 v{a3}, {4*m}, v{a1}")
    I(f"ds_bpermute_b32 v{a4}, v{a3}, v{a2}")
    I("s_waitcnt lgkmcnt(0)")
    I(f"v_add_f32 v{a2}, v{a2}, v{a4}")
rbf(a2, a6)
I(f"v_mul_f32 v{a2}, s{S_LOG2E}, v{a2}")
I(f"v_sub_f32 v{a2}, 0, v{a2}")
I(f"v_exp_f32 v{a2}, v{a2}")
I("s_nop 0")
I(f"v_add_f32 v{a2}, 1.0, v{a2}")
I(f"v_rcp_f32 v{a2}, v{a2}")
I("s_nop 0")
rbf(a2, a6)
I(f"v_mov_b32 v{a1}, 0")
I(f"ds_write_b32 v{a1}, v{a2} offset:{L_GATE}")
e("L_fin_bar:")
I("s_waitcnt lgkmcnt(0)")
I("s_barrier")
I(f"s_cmp_ge_u32 s{S_W}, 2")
I("s_cbranch_scc1 L_fin")
I(f"v_min_u32 v{a1}, 79, v{V_T}")
I(f"v_lshlrev_b32 v{a1}, 2, v{a1}")
I(f"v_mov_b32 v{a5}, 0")
for hg in range(8):
    I(f"ds_read_b32 v{BIG+hg}, v{a1} offset:{L_FR + hg*640}")
    I(f"ds_read_b32 v{BIG+8+hg}, v{a1} offset:{L_FR + hg*640 + 320}")
I(f"ds_read_b32 v{a7}, v{a5} offset:{L_GATE}")
I("s_waitcnt lgkmcnt(0)")
I(f"v_add_f32 v{a2}, v{BIG}, v{BIG+1}")
I(f"v_add_f32 v{a3}, v{BIG+8}, v{BIG+9}")
for p in range(2, 8):
    I(f"v_add_f32 v{a2}, v{a2}, v{BIG+p}")
    I(f"v_add_f32 v{a3}, v{a3}, v{BIG+8+p}")
rbf(a2, a6)
rbf(a3, a6)
I(f"v_sub_f32 v{a4}, 1.0, v{a7}")
rbf(a4, a6)
I(f"v_mul_f32 v{a2}, v{a7}, v{a2}")
I(f"v_mul_f32 v{a3}, v{a4}, v{a3}")
rbf(a2, a6)
rbf(a3, a6)
I(f"v_add_f32 v{a2}, v{a2}, v{a3}")
I(f"v_cvt_pk_bf16_f32 v{a2}, v{a2}, v{a2}")
I(f"s_mul_i32 s{S_T0}, s{S_S}, 160")
I(f"v_lshlrev_b32 v{a1}, 1, v{V_T}")
I(f"v_cmp_gt_u32 vcc, 80, v{V_T}")
I(f"v_mov_b32 v{a6}, {OOB}")
I("s_nop 0")
I(f"v_cndmask_b32 v{a1}, v{a6}, v{a1}, vcc")
I(f"buffer_store_short v{a2}, v{a1}, s[{SRD_OUT}:{SRD_OUT+3}], s{S_T0} offen")
e("L_fin:")
stamp("end")
dump_stamps()
e("L_end:")
I("s_endpgm")
e('.section .rodata,"a"')
e(".p2align 6")
e(f".amdhsa_kernel {NAME}_kernel")
e("  .amdhsa_next_free_vgpr 256")
e("  .amdhsa_next_free_sgpr 102")
e("  .amdhsa_accum_offset 256")
e("  .amdhsa_group_segment_fixed_size 0")
e("  .amdhsa_kernarg_size 104")
e("  .amdhsa_user_sgpr_count 2")
e("  .amdhsa_user_sgpr_kernarg_segment_ptr 1")
e("  .amdhsa_system_sgpr_workgroup_id_x 1")
e(".end_amdhsa_kernel")

open(OUTFILE, "w").write("\n".join(out) + "\n")
print("wrote", OUTFILE, len(out), "lines")
```

```python
import sys

NAME = "gated_mix__gqa_block_cached__glu_gated_bilinear__decode"
HEADER = open("cdna_kernels/%s.s.ref" % NAME).read().split("; Override launch geometry")[0]

out = []
def e(s=""):
    out.append(s)
def I(s):
    out.append("    " + s)

NT = " nt" if "--nt" in sys.argv else ""
STAMP = "--stamp" in sys.argv
DBGST = "--dbgstamp" in sys.argv
CNT_OFF = 128 if DBGST else 0
RR = "--rr" in sys.argv
WSTRIDE, TSTRIDE = (6144, 49152) if RR else (49152, 6144)
OUTFILE = "cdna_kernels/%s.s" % NAME
for a in sys.argv[1:]:
    if a.startswith("--out="):
        OUTFILE = a[6:]

KV_BYTES = 100663296
WQ_BYTES = 640 * 6144 * 2
WO_BYTES = 6144 * 640 * 2
WD_BYTES = 1536 * 640 * 2
WS_BYTES = 402653184
OOB = 0x7f000000
FLAG_OFF = 2688
QP_OFF, OP_OFF, AP_OFF = 0, 1152, 2048
L_FLAG = 51200
L_QR = 0
L_GR = 15360
L_PART = 0
L_QB = 34816
L_OPR = 35328
L_GUR = 41600
L_OF = 44672
L_GATE = 45632
L_RED = 0
L_FR = 46080
L_KR = 51712
LDS_BYTES = L_KR + 16 * 6144

S_WG = 2
S_H, S_S, S_W = 3, 62, 63
SRD_K, SRD_V, SRD_WQ, SRD_WO, SRD_WD, SRD_WS, SRD_X, SRD_DBG = 4, 8, 12, 16, 20, 24, 28, 32
KA0 = 36
S_MHI = 64
S_T0, S_T1, S_T2, S_T3 = 66, 67, 68, 69
S_EX = 70
S_BASE = 72
S_NA, S_NB = 73, 74
S_IT = 75
S_SCALE, S_LOG2E = 76, 77
S_WSB = 78
S_M480 = 80
S_C1 = 82
SRD_GW, SRD_OUT = 84, 88
S_WGP, S_WUP = 92, 94
S_ST = 96
S_KL = 79
S_T4 = 100
S_NV = 101

V_T, V_LANE, V_G, V_I, V_OK, V_OV1, V_OV2 = 0, 1, 2, 3, 4, 5, 6
A = [7, 8, 9, 10, 11, 12, 13, 14, 15]
KA, VA, KB, VB = 16, 40, 64, 88
VS = [40, 64, 88, 204]
STG = 64
XR = 192
GU = 208
XG = 216
AQ = 220
AG = 228
V_SL, V_C, V_SL2, V_C2 = 236, 237, 238, 239
V_NEG = 240
QF = 112
ACC = 136
WR = 152
D = 172
P = 176
VM, VL = 180, 181
T2 = 182
V_OW = 200
V_KRD = 202
BIG = 16


def srd(dst, lo, hi, nbytes):
    I(f"s_mov_b32 s{dst}, s{lo}")
    I(f"s_and_b32 s{dst+1}, s{hi}, 0xffff")
    I(f"s_mov_b32 s{dst+2}, {nbytes}")
    I(f"s_mov_b32 s{dst+3}, 0x00020000")


def divmod_const(vq, vr, vsrc, d, magic):
    I(f"v_mul_u32_u24 v{vq}, {magic}, v{vsrc}")
    I(f"v_lshrrev_b32 v{vq}, 16, v{vq}")
    I(f"v_mul_u32_u24 v{vr}, {d}, v{vq}")
    I(f"v_sub_u32 v{vr}, v{vsrc}, v{vr}")


stamp_n = [0]
def stamp(tag):
    if not STAMP:
        return
    n = stamp_n[0]; stamp_n[0] += 1
    assert n < 13
    I(f"s_memrealtime s[{KA0+2*n}:{KA0+2*n+1}]")
    I("s_waitcnt lgkmcnt(0)")


def dump_stamps():
    if not STAMP:
        return
    if DBGST:
        I(f"s_cmp_lg_u32 s{S_WG}, 0")
        I("s_cbranch_scc1 L_end")
        I(f"s_cmp_lg_u32 s{S_W}, 0")
        I("s_cbranch_scc1 L_end")
        I(f"v_mov_b32 v252, 0")
        I(f"v_cmp_eq_u32 vcc, 0, v{V_LANE}")
        I(f"s_and_saveexec_b64 s[{S_ST}:{S_ST+1}], vcc")
        for n in range(stamp_n[0]):
            I(f"s_sub_u32 s{S_ST+2}, s{KA0+2*n}, s{KA0}")
            I(f"v_mov_b32 v250, s{S_ST+2}")
            I(f"buffer_store_dword v250, v252, s[{SRD_DBG}:{SRD_DBG+3}], 0 offen offset:{4*n}")
            I("s_nop 2")
        return
    I(f"s_lshl_b32 s{S_ST}, s{S_WG}, 3")
    I(f"s_add_u32 s{S_ST}, s{S_ST}, s{S_W}")
    I(f"s_lshl_b32 s{S_ST}, s{S_ST}, 8")
    I(f"s_add_u32 s{S_ST}, s{S_ST}, {0x1000000}")
    I(f"v_mov_b32 v252, s{S_ST}")
    I(f"v_cmp_eq_u32 vcc, 0, v{V_LANE}")
    I(f"s_and_saveexec_b64 s[{S_ST}:{S_ST+1}], vcc")
    for n in range(stamp_n[0]):
        I(f"v_mov_b32 v250, s{KA0+2*n}")
        I(f"v_mov_b32 v251, s{KA0+2*n+1}")
        I(f"buffer_store_dwordx2 v[250:251], v252, s[{SRD_WS}:{SRD_WS+3}], 0 offen offset:{8*n}")
        I("s_nop 2")


def fma_chunk(acc, data, scal, tmp, first=False):
    for j in range(4):
        I(f"v_lshlrev_b32 v{tmp}, 16, v{data+j}")
        I(f"v_and_b32 v{tmp+1}, 0xffff0000, v{data+j}")
        op = "v_mul_f32" if first else "v_fmac_f32"
        I(f"{op} v{acc+2*j}, v{scal}, v{tmp}")
        I(f"{op} v{acc+2*j+1}, v{scal}, v{tmp+1}")


def canon(v, tmp):
    I(f"v_cmp_eq_u32 vcc, -1, v{v}")
    I(f"v_mov_b32 v{tmp}, 0x7fc00000")
    I("s_nop 1")
    I(f"v_cndmask_b32 v{v}, v{v}, v{tmp}, vcc")


def rbf(v, tmp):
    I(f"v_cvt_pk_bf16_f32 v{tmp}, v{v}, v{v}")
    I(f"v_lshlrev_b32 v{v}, 16, v{tmp}")


def load_k(slot, soff):
    x = 0 if slot == KA else 1
    I(f"s_add_u32 m0, s{S_KL}, {x*6144}")
    I(f"s_add_u32 s{S_T4}, s{soff}, 4096")
    for j in range(4):
        I(f"buffer_load_dwordx4 v{V_OK}, s[{SRD_K}:{SRD_K+3}], s{soff} offen offset:{j*1024}{NT} lds")
    I(f"s_add_u32 m0, s{S_KL}, {x*6144 + 4096}")
    I("s_nop 0")
    for j in range(2):
        I(f"buffer_load_dwordx4 v{V_OK}, s[{SRD_K}:{SRD_K+3}], s{S_T4} offen offset:{j*1024}{NT} lds")


def load_v(slot, soff):
    for r in range(4):
        I(f"buffer_load_dwordx4 v[{slot+4*r}:{slot+4*r+3}], v{V_OV1}, s[{SRD_V}:{SRD_V+3}], s{soff} offen offset:{r*384}{NT}")
    for r in range(2):
        I(f"buffer_load_dwordx4 v[{slot+16+4*r}:{slot+16+4*r+3}], v{V_OV2}, s[{SRD_V}:{SRD_V+3}], s{soff} offen offset:{r*768}{NT}")


def poll_check(regs, lab_retry, lab_done, tmp):
    cur = regs[0]
    rest = list(regs[1:])
    while rest:
        if len(rest) >= 2:
            I(f"v_max3_u32 v{tmp}, v{cur}, v{rest[0]}, v{rest[1]}")
            rest = rest[2:]
        else:
            I(f"v_max_u32 v{tmp}, v{cur}, v{rest[0]}")
            rest = rest[1:]
        cur = tmp
    I(f"v_cmp_eq_u32 vcc, -1, v{cur}")
    I("s_nop 4")
    I(f"s_cbranch_vccz {lab_done}")
    I("s_sleep 2")
    I(f"s_branch {lab_retry}")


def mask_lt(n, save=S_EX):
    I(f"v_cmp_gt_u32 vcc, {n}, v{V_T}")
    I(f"s_and_saveexec_b64 s[{save}:{save+1}], vcc")


def unmask(save=S_EX):
    I(f"s_mov_b64 exec, s[{save}:{save+1}]")


e(HEADER.rstrip("\n"))
e("; Override launch geometry by editing the next line (default: block=256,")
e(f"; @launch grid=(256,1,1) block=(512,1,1) lds={LDS_BYTES}")
e('.amdgcn_target "amdgcn-amd-amdhsa--gfx950"')
e(".text")
e(f".globl {NAME}_kernel")
e(".p2align 8")
e(f".type {NAME}_kernel,@function")
e(f"{NAME}_kernel:")
I(f"s_cmp_ge_u32 s{S_WG}, 256")
I("s_cbranch_scc1 L_end")
I(f"s_load_dwordx16 s[{KA0}:{KA0+15}], s[0:1], 0")
I(f"s_load_dwordx8 s[{KA0+16}:{KA0+23}], s[0:1], 64")
I(f"s_load_dwordx2 s[{KA0+24}:{KA0+25}], s[0:1], 96")
a0, a1, a2, a3, a4, a5, a6, a7, a8 = A
I(f"v_and_b32 v{V_LANE}, 63, v{V_T}")
I(f"v_lshrrev_b32 v{a0}, 6, v{V_T}")
I(f"v_lshrrev_b32 v{V_G}, 4, v{V_LANE}")
I(f"v_and_b32 v{V_I}, 15, v{V_LANE}")
I(f"v_readfirstlane_b32 s{S_W}, v{a0}")
I(f"s_and_b32 s{S_H}, s{S_WG}, 31")
I(f"s_lshr_b32 s{S_S}, s{S_WG}, 5")
I(f"s_lshl_b32 s{S_WSB}, s{S_WG}, 12")
I(f"v_mul_u32_u24 v{V_KRD}, 384, v{V_I}")
I(f"v_lshl_add_u32 v{V_KRD}, v{V_G}, 4, v{V_KRD}")
I(f"v_lshlrev_b32 v{V_OK}, 4, v{V_LANE}")
I(f"s_mul_i32 s{S_KL}, s{S_W}, 12288")
I(f"s_add_u32 s{S_KL}, s{S_KL}, {L_KR}")
I(f"v_add_u32 v{V_KRD}, s{S_KL}, v{V_KRD}")
I(f"v_mul_u32_u24 v{a1}, 1536, v{V_G}")
I(f"v_lshl_add_u32 v{V_OV1}, v{V_I}, 4, v{a1}")
I(f"v_lshrrev_b32 v{a2}, 3, v{V_I}")
I(f"v_mul_u32_u24 v{a2}, 384, v{a2}")
I(f"v_and_b32 v{a3}, 7, v{V_I}")
I(f"v_lshlrev_b32 v{a3}, 4, v{a3}")
I(f"v_add3_u32 v{V_OV2}, v{a1}, v{a2}, v{a3}")
I(f"v_add_u32 v{V_OV2}, 256, v{V_OV2}")
I(f"v_cmp_lt_u32 s[{S_MHI}:{S_MHI+1}], 7, v{V_I}")
I(f"v_cmp_gt_u32 vcc, 480, v{V_T}")
I(f"s_mov_b64 s[{S_M480}:{S_M480+1}], vcc")
I(f"s_mov_b32 s{S_SCALE}, 0x3d93cd3a")
I(f"s_mov_b32 s{S_LOG2E}, 0x3fb8aa3b")
divmod_const(V_SL, V_C, V_T, 24, 2731)
divmod_const(V_SL2, V_C2, V_T, 12, 5462)
for k in range(4):
    I(f"v_mov_b32 v{V_NEG+k}, -1")
I("s_waitcnt lgkmcnt(0)")
kp = lambda n: (KA0 + 2 * n, KA0 + 2 * n + 1)
srd(SRD_WS, *kp(12), WS_BYTES)
srd(SRD_X, *kp(0), 1280)
srd(SRD_WQ, *kp(3), WQ_BYTES)
srd(SRD_K, *kp(1), KV_BYTES)
srd(SRD_V, *kp(2), KV_BYTES)
srd(SRD_WO, *kp(4), WO_BYTES)
srd(SRD_WD, *kp(8), WD_BYTES)
srd(SRD_GW, *kp(9), 1280)
srd(SRD_OUT, *kp(10), 1280)
srd(SRD_DBG, *kp(11), 256)
I(f"s_mov_b64 s[{S_WGP}:{S_WGP+1}], s[{kp(6)[0]}:{kp(6)[1]}]")
I(f"s_mov_b64 s[{S_WUP}:{S_WUP+1}], s[{kp(7)[0]}:{kp(7)[1]}]")
stamp("start")
I(f"s_mul_i32 s{S_BASE}, s{S_H}, 3145728")
I(f"s_mul_i32 s{S_T0}, s{S_S}, 393216")
I(f"s_add_u32 s{S_BASE}, s{S_BASE}, s{S_T0}")
I(f"s_mul_i32 s{S_T0}, s{S_W}, {WSTRIDE}")
I(f"s_add_u32 s{S_BASE}, s{S_BASE}, s{S_T0}")

if "--codepf" in sys.argv:
    I(f"s_cmp_lg_u32 s{S_W}, 7")
    I("s_cbranch_scc1 L_nopf")
    I(f"s_getpc_b64 s[{S_C1}:{S_C1+1}]")
    I(f"v_lshlrev_b32 v{a0}, 4, v{V_LANE}")
    for k in range(11):
        if k % 4 == 0 and k:
            I(f"v_add_u32 v{a0}, 4096, v{a0}")
        I(f"global_load_dwordx4 v[{112+4*k}:{115+4*k}], v{a0}, s[{S_C1}:{S_C1+1}] offset:{(k%4)*1024}")
    e("L_nopf:")
I(f"v_mov_b32 v{a8}, {OOB}")
I(f"v_lshl_add_u32 v{a0}, v{V_T}, 4, s{S_WSB}")
I(f"v_cmp_gt_u32 vcc, 97, v{V_T}")
I(f"v_mov_b32 v{a2}, 0")
I(f"v_mov_b32 v{a3}, 0")
I(f"v_cndmask_b32 v{a0}, v{a8}, v{a0}, vcc")
I(f"buffer_store_dwordx4 v[{V_NEG}:{V_NEG+3}], v{a0}, s[{SRD_WS}:{SRD_WS+3}], 0 offen offset:{OP_OFF} sc1")
I(f"v_mov_b32 v{a1}, {L_FLAG}")
I(f"ds_write_b64 v{a1}, v[{a2}:{a3}]") if a2 % 2 == 0 else (I(f"ds_write_b32 v{a1}, v{a2}"), I(f"ds_write_b32 v{a1}, v{a2} offset:4"))
I(f"s_mul_i32 s{S_T0}, s{S_S}, 160")
I(f"v_lshlrev_b32 v{a1}, 3, v{V_SL}")
I(f"v_cndmask_b32 v{a1}, v{a8}, v{a1}, s[{S_M480}:{S_M480+1}]")
I(f"buffer_load_dwordx2 v[{XR}:{XR+1}], v{a1}, s[{SRD_X}:{SRD_X+3}], s{S_T0} offen")
I(f"v_lshlrev_b32 v{a2}, 2, v{V_SL2}")
I(f"v_cndmask_b32 v{a2}, v{a8}, v{a2}, s[{S_M480}:{S_M480+1}]")
I(f"buffer_load_dword v{XG}, v{a2}, s[{SRD_X}:{SRD_X+3}], s{S_T0} offen")
I(f"v_mul_u32_u24 v{a0}, {4*12288 // 16}, v{V_SL}")
I(f"v_add_u32 v{a0}, v{a0}, v{V_C}")
I(f"v_lshlrev_b32 v{a0}, 4, v{a0}")
I(f"v_cndmask_b32 v{a0}, v{a8}, v{a0}, s[{S_M480}:{S_M480+1}]")
I(f"s_mul_i32 s{S_T0}, s{S_H}, 384")
I(f"s_mul_i32 s{S_T1}, s{S_S}, {80*12288}")
I(f"s_add_u32 s{S_T0}, s{S_T0}, s{S_T1}")
for k in range(4):
    I(f"buffer_load_dwordx4 v[{STG+4*k}:{STG+4*k+3}], v{a0}, s[{SRD_WQ}:{SRD_WQ+3}], s{S_T0} offen")
    if k != 3:
        I(f"s_add_u32 s{S_T0}, s{S_T0}, 12288")
I(f"v_min_u32 v{a3}, 39, v{V_SL2}")
I(f"v_cmp_gt_u32 vcc, 6, v{V_C2}")
I(f"v_subrev_u32 v{a4}, 6, v{V_C2}")
I(f"v_mov_b32 v{a5}, s{S_WUP}")
I(f"v_mov_b32 v{a6}, s{S_WUP+1}")
I(f"v_cndmask_b32 v{a4}, v{a4}, v{V_C2}, vcc")
I(f"v_mov_b32 v{a0}, s{S_WGP}")
I(f"v_mov_b32 v{a1}, s{S_WGP+1}")
I(f"v_cndmask_b32 v{a5}, v{a5}, v{a0}, vcc")
I(f"v_cndmask_b32 v{a6}, v{a6}, v{a1}, vcc")
I(f"s_mul_i32 s{S_T0}, s{S_S}, {80*3072}")
I(f"s_mul_i32 s{S_T1}, s{S_H}, 96")
I(f"s_add_u32 s{S_T0}, s{S_T0}, s{S_T1}")
I(f"v_mul_u32_u24 v{a3}, 6144, v{a3}")
I(f"v_lshl_add_u32 v{a3}, v{a4}, 4, v{a3}")
I(f"v_add_u32 v{a3}, s{S_T0}, v{a3}")
I(f"v_add_co_u32 v244, vcc, v{a5}, v{a3}")
I("s_nop 1")
I(f"v_addc_co_u32 v245, vcc, 0, v{a6}, vcc")
I(f"global_load_dwordx4 v[{GU}:{GU+3}], v[244:245], off")
I(f"global_load_dwordx4 v[{GU+4}:{GU+7}], v[244:245], off offset:3072")
divmod_const(V_OW + 1, a3, V_T, 10, 6554)
I(f"v_mul_u32_u24 v{V_OW}, 1280, v{V_OW+1}")
I(f"v_lshl_add_u32 v{V_OW}, v{a3}, 4, v{V_OW}")
I(f"v_cndmask_b32 v{V_OW}, v{a8}, v{V_OW}, s[{S_M480}:{S_M480+1}]")
I(f"s_add_u32 s{S_NA}, s{S_BASE}, {TSTRIDE}")
I(f"s_add_u32 s{S_NB}, s{S_BASE}, {2*TSTRIDE}")
I(f"s_add_u32 s{S_NV}, s{S_BASE}, {3*TSTRIDE}")
def load_w():
    I(f"s_mul_i32 s{S_T0}, s{S_H}, {192*1280}")
    I(f"s_mul_i32 s{S_T1}, s{S_S}, 160")
    I(f"s_add_u32 s{S_T0}, s{S_T0}, s{S_T1}")
    for i in range(4):
        I(f"buffer_load_dwordx4 v[{WR+4*i}:{WR+4*i+3}], v{V_OW}, s[{SRD_WO}:{SRD_WO+3}], s{S_T0} offen")
        if i != 3:
            I(f"s_add_u32 s{S_T0}, s{S_T0}, {48*1280}")
    I(f"s_mul_i32 s{S_T0}, s{S_H}, {48*1280}")
    I(f"s_add_u32 s{S_T0}, s{S_T0}, s{S_T1}")
    I(f"buffer_load_dwordx4 v[{WR+16}:{WR+19}], v{V_OW}, s[{SRD_WD}:{SRD_WD+3}], s{S_T0} offen")
I("s_waitcnt vmcnt(0)")
load_k(KA, S_BASE)
for k in range(4):
    xs = XR + k // 2
    if k % 2 == 0:
        I(f"v_lshlrev_b32 v{a1}, 16, v{xs}")
    else:
        I(f"v_and_b32 v{a1}, 0xffff0000, v{xs}")
    fma_chunk(AQ, STG + 4 * k, a1, a2, first=(k == 0))
I(f"v_lshlrev_b32 v{a1}, 16, v{XG}")
fma_chunk(AG, GU, a1, a2, first=True)
I(f"v_and_b32 v{a1}, 0xffff0000, v{XG}")
fma_chunk(AG, GU + 4, a1, a2)
I(f"v_mul_u32_u24 v{a1}, 768, v{V_SL}")
I(f"v_lshl_add_u32 v{a1}, v{V_C}, 5, v{a1}")
I(f"v_mul_u32_u24 v{a2}, 384, v{V_SL2}")
I(f"v_lshl_add_u32 v{a2}, v{V_C2}, 5, v{a2}")
I(f"s_mov_b64 s[{S_EX}:{S_EX+1}], exec")
I(f"s_mov_b64 exec, s[{S_M480}:{S_M480+1}]")
I(f"ds_write_b128 v{a1}, v[{AQ}:{AQ+3}] offset:{L_QR}")
I(f"ds_write_b128 v{a1}, v[{AQ+4}:{AQ+7}] offset:{L_QR+16}")
I(f"ds_write_b128 v{a2}, v[{AG}:{AG+3}] offset:{L_GR}")
I(f"ds_write_b128 v{a2}, v[{AG+4}:{AG+7}] offset:{L_GR+16}")
unmask()
I("s_waitcnt lgkmcnt(0)")
I("s_barrier")
stamp("b1")
I(f"s_cmp_lt_u32 s{S_W}, 5")
I("s_cbranch_scc1 L_a_wave")
load_v(VS[0], S_BASE)
load_k(KB, S_NA)
load_v(VS[1], S_NA)
load_v(VS[2], S_NB)
load_v(VS[3], S_NV)
I("s_branch L_a_done")
e("L_a_wave:")
qregs = [T2 + sl if sl < 18 else 244 + sl - 18 for sl in range(20)]
I(f"v_lshlrev_b32 v{a1}, 2, v{V_T}")
I(f"s_cmp_ge_u32 s{S_W}, 3")
I("s_cbranch_scc1 L_a_notq")
for sl in range(20):
    I(f"ds_read_b32 v{qregs[sl]}, v{a1} offset:{L_QR + sl*768}")
I("s_waitcnt lgkmcnt(0)")
I(f"v_add_f32 v{a2}, v{qregs[0]}, v{qregs[1]}")
for r in qregs[2:]:
    I(f"v_add_f32 v{a2}, v{a2}, v{r}")
I("s_branch L_a_pub")
e("L_a_notq:")
I(f"v_subrev_u32 v{a3}, 768, v{a1}")
I(f"v_min_u32 v{a3}, 380, v{a3}")
for half in range(2):
    for sl in range(20):
        I(f"ds_read_b32 v{qregs[sl]}, v{a3} offset:{L_GR + (half*20+sl)*384}")
    I("s_waitcnt lgkmcnt(0)")
    if half == 0:
        I(f"v_add_f32 v{a2}, v{qregs[0]}, v{qregs[1]}")
        rest = qregs[2:]
    else:
        rest = qregs
    for r in rest:
        I(f"v_add_f32 v{a2}, v{a2}, v{r}")
e("L_a_pub:")
I(f"v_cmp_gt_u32 vcc, 288, v{V_T}")
I(f"v_add_u32 v{a3}, s{S_WSB}, v{a1}")
I("s_nop 0")
I(f"v_cndmask_b32 v{a3}, v{a8}, v{a3}, vcc")
I(f"v_cndmask_b32 v{a5}, v{a8}, v{a1}, vcc")
I(f"buffer_store_dword v{a2}, v{a3}, s[{SRD_WS}:{SRD_WS+3}], 0 offen offset:{QP_OFF} sc1")
I(f"v_mov_b32 v{a1}, {L_FLAG}")
I(f"v_mov_b32 v{a2}, 1")
I(f"s_lshl_b32 s{S_T1}, s{S_H}, 2")
I(f"v_mov_b32 v{a4}, s{S_T1}")
I("s_waitcnt vmcnt(0)")
stamp("ack")
I(f"v_cmp_eq_u32 vcc, 0, v{V_LANE}")
I(f"s_and_saveexec_b64 s[{S_EX}:{S_EX+1}], vcc")
I(f"ds_add_rtn_u32 v{a3}, v{a1}, v{a2}")
I("s_waitcnt lgkmcnt(0)")
I(f"v_readfirstlane_b32 s{S_T0}, v{a3}")
I(f"s_cmp_lg_u32 s{S_T0}, 4")
I("s_cbranch_scc1 L_a_noatom")
I(f"v_mov_b32 v{a3}, 1")
I(f"buffer_atomic_add v{a3}, v{a4}, s[{SRD_DBG}:{SRD_DBG+3}], 0 offen offset:{CNT_OFF} sc0 sc1")
I("s_waitcnt vmcnt(0)")
I(f"v_readfirstlane_b32 s{S_T0}, v{a3}")
I(f"s_cmp_lg_u32 s{S_T0}, 7")
I("s_cbranch_scc1 L_a_noatom")
I(f"s_mov_b64 exec, 0xff")
I(f"s_lshl_b32 s{S_T0}, s{S_H}, 12")
I(f"v_lshlrev_b32 v{a3}, 17, v{V_LANE}")
I(f"buffer_store_dword v{a2}, v{a3}, s[{SRD_WS}:{SRD_WS+3}], s{S_T0} offen offset:{FLAG_OFF} sc1")
e("L_a_noatom:")
unmask()
I(f"s_cmp_lg_u32 s{S_W}, 0")
I("s_cbranch_scc1 L_a_others")
I(f"v_mov_b32 v{a4}, s{S_WSB}")
e("L_a_gpoll:")
I(f"buffer_load_dword v{a3}, v{a4}, s[{SRD_WS}:{SRD_WS+3}], 0 offen offset:{FLAG_OFF} sc1")
I("s_waitcnt vmcnt(0)")
I(f"v_readfirstlane_b32 s{S_T0}, v{a3}")
I(f"s_cmp_eq_u32 s{S_T0}, 1")
I("s_cbranch_scc1 L_a_gok")
I("s_sleep 2")
I("s_branch L_a_gpoll")
e("L_a_gok:")
I(f"ds_write_b32 v{a1}, v{a2} offset:4")
I("s_branch L_a_gather")
e("L_a_others:")
load_v(VS[0], S_BASE)
load_k(KB, S_NA)
load_v(VS[1], S_NA)
e("L_a_lspin:")
I(f"ds_read_b32 v{a3}, v{a1} offset:4")
I("s_waitcnt lgkmcnt(0)")
I(f"v_readfirstlane_b32 s{S_T0}, v{a3}")
I(f"s_cmp_lg_u32 s{S_T0}, 0")
I("s_cbranch_scc1 L_a_gather")
I("s_sleep 1")
I("s_branch L_a_lspin")
e("L_a_gather:")
stamp("flag")
I(f"s_lshl_b32 s{S_T0}, s{S_H}, 12")
for p in range(8):
    I(f"buffer_load_dword v{T2+p}, v{a5}, s[{SRD_WS}:{SRD_WS+3}], s{S_T0} offen offset:{QP_OFF} sc1")
    if p != 7:
        I(f"s_add_u32 s{S_T0}, s{S_T0}, {32*4096}")
I(f"s_cmp_lg_u32 s{S_W}, 0")
I("s_cbranch_scc1 L_a_g2")
load_v(VS[0], S_BASE)
load_k(KB, S_NA)
load_v(VS[1], S_NA)
load_v(VS[2], S_NB)
load_v(VS[3], S_NV)
I("s_waitcnt vmcnt(30)")
I("s_branch L_a_g3")
e("L_a_g2:")
load_v(VS[2], S_NB)
load_v(VS[3], S_NV)
I("s_waitcnt vmcnt(12)")
e("L_a_g3:")
I(f"v_add_f32 v{a2}, v{T2}, v{T2+1}")
for p in range(2, 8):
    I(f"v_add_f32 v{a2}, v{a2}, v{T2+p}")
I(f"v_cvt_pk_bf16_f32 v{a2}, v{a2}, v{a2}")
I(f"s_cmp_ge_u32 s{S_W}, 3")
I("s_cbranch_scc1 L_a_gus")
I(f"v_lshlrev_b32 v{a3}, 1, v{V_T}")
I(f"ds_write_b16 v{a3}, v{a2} offset:{L_QB}")
I("s_branch L_a_done")
e("L_a_gus:")
I(f"v_lshlrev_b32 v{a2}, 16, v{a2}")
I(f"v_lshlrev_b32 v{a3}, 2, v{V_T}")
I(f"v_cmp_gt_u32 vcc, 288, v{V_T}")
I(f"s_and_saveexec_b64 s[{S_EX}:{S_EX+1}], vcc")
I(f"ds_write_b32 v{a3}, v{a2} offset:{L_GUR - 768}")
unmask()
e("L_a_done:")
I("s_waitcnt lgkmcnt(0)")
I("s_barrier")
stamp("b2")
I(f"v_lshlrev_b32 v{a1}, 4, v{V_G}")
for j in range(6):
    I(f"ds_read_b128 v[{QF+4*j}:{QF+4*j+3}], v{a1} offset:{L_QB + 64*j}")
for k in range(16):
    I(f"v_mov_b32 v{ACC+k}, 0")
I(f"v_mov_b32 v{VM}, 0xff7fffff")
I(f"v_mov_b32 v{VL}, 0")
I(f"s_mov_b32 s{S_IT}, 0")
I(f"s_add_u32 s{S_NA}, s{S_BASE}, {2*TSTRIDE}")
I(f"s_add_u32 s{S_NV}, s{S_BASE}, {4*TSTRIDE}")
I("s_waitcnt lgkmcnt(0)")

def tile(KX, VX, soff, soffv):
    I("s_waitcnt vmcnt(18)")
    x = 0 if KX == KA else 1
    for j in range(6):
        I(f"ds_read_b128 v[{KA+4*j}:{KA+4*j+3}], v{V_KRD} offset:{x*6144 + j*64}")
    I("s_waitcnt lgkmcnt(0)")
    load_k(KX, soff)
    for j in range(6):
        c = "0" if j == 0 else f"v[{D}:{D+3}]"
        I(f"v_mfma_f32_16x16x32_bf16 v[{D}:{D+3}], v[{KA+4*j}:{KA+4*j+3}], v[{QF+4*j}:{QF+4*j+3}], {c}")
    I("s_nop 7")
    t0, t1 = T2, T2 + 1
    s = [T2 + 2, T2 + 3, T2 + 4, T2 + 5]
    I(f"v_cvt_pk_bf16_f32 v{t0}, v{D}, v{D+1}")
    I(f"v_cvt_pk_bf16_f32 v{t1}, v{D+2}, v{D+3}")
    I(f"v_lshlrev_b32 v{s[0]}, 16, v{t0}")
    I(f"v_and_b32 v{s[1]}, 0xffff0000, v{t0}")
    I(f"v_lshlrev_b32 v{s[2]}, 16, v{t1}")
    I(f"v_and_b32 v{s[3]}, 0xffff0000, v{t1}")
    for r in range(4):
        I(f"v_mul_f32 v{s[r]}, s{S_SCALE}, v{s[r]}")
    I(f"v_cvt_pk_bf16_f32 v{t0}, v{s[0]}, v{s[1]}")
    I(f"v_cvt_pk_bf16_f32 v{t1}, v{s[2]}, v{s[3]}")
    I(f"v_lshlrev_b32 v{s[0]}, 16, v{t0}")
    I(f"v_and_b32 v{s[1]}, 0xffff0000, v{t0}")
    I(f"v_lshlrev_b32 v{s[2]}, 16, v{t1}")
    I(f"v_and_b32 v{s[3]}, 0xffff0000, v{t1}")
    for r in range(4):
        I(f"v_mul_f32 v{s[r]}, s{S_LOG2E}, v{s[r]}")
    mn, al = T2 + 6, T2 + 7
    I(f"v_max3_f32 v{mn}, v{s[0]}, v{s[1]}, v{s[2]}")
    I(f"v_max3_f32 v{mn}, v{mn}, v{s[3]}, v{VM}")
    I(f"v_sub_f32 v{al}, v{VM}, v{mn}")
    for r in range(4):
        I(f"v_sub_f32 v{P+r}, v{s[r]}, v{mn}")
    I(f"v_exp_f32 v{al}, v{al}")
    for r in range(4):
        I(f"v_exp_f32 v{P+r}, v{P+r}")
    I(f"v_mov_b32 v{VM}, v{mn}")
    for k in range(16):
        I(f"v_mul_f32 v{ACC+k}, v{al}, v{ACC+k}")
    I(f"v_add_f32 v{t0}, v{P}, v{P+1}")
    I(f"v_add_f32 v{t1}, v{P+2}, v{P+3}")
    I(f"v_add_f32 v{t0}, v{t0}, v{t1}")
    I(f"v_fma_f32 v{VL}, v{VL}, v{al}, v{t0}")
    pa, pb = T2 + 8, T2 + 9
    I(f"v_cndmask_b32 v{pa}, v{P}, v{P+1}, s[{S_MHI}:{S_MHI+1}]")
    I(f"v_cndmask_b32 v{pb}, v{P+2}, v{P+3}, s[{S_MHI}:{S_MHI+1}]")
    I("s_waitcnt vmcnt(18)")
    for r in range(4):
        fma_chunk(ACC, VX + 4 * r, P + r, T2 + 10)
    fma_chunk(ACC + 8, VX + 16, pa, T2 + 10)
    fma_chunk(ACC + 8, VX + 20, pb, T2 + 10)
    load_v(VX, soffv)

e("L_loop:")
for u in range(4):
    I(f"s_cmp_eq_u32 s{S_IT}, 0")
    if u < 2:
        I(f"s_mov_b32 s{S_T0}, s{S_NA}")
    else:
        I(f"s_cselect_b32 s{S_T0}, s{S_NA}, {OOB}")
    I(f"s_cselect_b32 s{S_T1}, s{S_NV}, {OOB}")
    tile(KA if u % 2 == 0 else KB, VS[u], S_T0, S_T1)
    I(f"s_add_u32 s{S_NA}, s{S_NA}, {TSTRIDE}")
    I(f"s_add_u32 s{S_NV}, s{S_NV}, {TSTRIDE}")
I(f"s_add_u32 s{S_IT}, s{S_IT}, 1")
I(f"s_cmp_lt_u32 s{S_IT}, 2")
I("s_cbranch_scc1 L_loop")
stamp("loop_end")

I(f"s_lshl_b32 s{S_T0}, s{S_W}, 2")
I(f"v_add_u32 v{a1}, s{S_T0}, v{V_G}")
I(f"v_mul_u32_u24 v{a1}, 1040, v{a1}")
I(f"v_lshl_add_u32 v{a2}, v{V_I}, 5, v{a1}")
I(f"ds_write_b128 v{a2}, v[{ACC}:{ACC+3}] offset:{L_PART}")
I(f"ds_write_b128 v{a2}, v[{ACC+4}:{ACC+7}] offset:{L_PART+16}")
I(f"ds_write_b128 v{a2}, v[{ACC+8}:{ACC+11}] offset:{L_PART+512}")
I(f"ds_write_b128 v{a2}, v[{ACC+12}:{ACC+15}] offset:{L_PART+528}")
I(f"v_cmp_eq_u32 vcc, 0, v{V_I}")
I(f"s_and_saveexec_b64 s[{S_EX}:{S_EX+1}], vcc")
I(f"ds_write_b64 v{a1}, v[{VM}:{VM+1}] offset:{L_PART+1024}")
unmask()
I(f"s_cmp_lg_u32 s{S_W}, 5")
I("s_cbranch_scc1 L_t3_done")
I(f"v_lshlrev_b32 v{a1}, 2, v{V_LANE}")
e("L_t3_poll:")
I(f"buffer_load_dword v{a2}, v{a1}, s[{SRD_DBG}:{SRD_DBG+3}], 0 offen offset:{CNT_OFF} sc1")
I("s_waitcnt vmcnt(0)")
I(f"v_cmp_gt_u32 vcc, 8, v{a2}")
I(f"v_cmp_gt_u32 s[{S_C1}:{S_C1+1}], 32, v{V_LANE}")
I("s_nop 4")
I(f"s_and_b64 s[{S_C1}:{S_C1+1}], s[{S_C1}:{S_C1+1}], vcc")
I("s_cbranch_scc0 L_t3_done")
I("s_sleep 4")
I("s_branch L_t3_poll")
e("L_t3_done:")
I("s_waitcnt vmcnt(0) lgkmcnt(0)")
I("s_barrier")
stamp("b3")
load_w()
I(f"s_cmp_ge_u32 s{S_W}, 3")
I("s_cbranch_scc1 L_t_gu")
I(f"v_mov_b32 v{a1}, 0")
for p in range(32):
    I(f"ds_read_b64 v[{BIG+2*p}:{BIG+2*p+1}], v{a1} offset:{L_PART + p*1040 + 1024}")
I("s_waitcnt lgkmcnt(0)")
I(f"v_max3_f32 v{a2}, v{BIG}, v{BIG+2}, v{BIG+4}")
for p in range(3, 31, 2):
    I(f"v_max3_f32 v{a2}, v{a2}, v{BIG+2*p}, v{BIG+2*p+2}")
I(f"v_max_f32 v{a2}, v{a2}, v{BIG+62}")
for p in range(32):
    I(f"v_sub_f32 v{BIG+2*p}, v{BIG+2*p}, v{a2}")
for p in range(32):
    I(f"v_exp_f32 v{BIG+2*p}, v{BIG+2*p}")
I("s_nop 0")
I(f"v_mul_f32 v{a3}, v{BIG}, v{BIG+1}")
for p in range(1, 32):
    I(f"v_fmac_f32 v{a3}, v{BIG+2*p}, v{BIG+2*p+1}")
I(f"v_lshlrev_b32 v{a1}, 2, v{V_T}")
I(f"s_cmp_eq_u32 s{S_W}, 2")
I("s_cbranch_scc1 L_t2_hi")
for p in range(32):
    I(f"ds_read_b32 v{BIG+2*p+1}, v{a1} offset:{L_PART + p*1040}")
I("s_waitcnt lgkmcnt(0)")
I(f"v_mul_f32 v{a4}, v{BIG}, v{BIG+1}")
for p in range(1, 32):
    I(f"v_fmac_f32 v{a4}, v{BIG+2*p}, v{BIG+2*p+1}")
I("s_branch L_t2_pub")
e("L_t2_hi:")
for p in range(32):
    I(f"ds_read_b32 v{BIG+2*p+1}, v{a1} offset:{L_PART + p*1040}")
for p in range(32):
    I(f"ds_read_b32 v{BIG+64+p}, v{a1} offset:{L_PART + p*1040 + 256}")
I("s_waitcnt lgkmcnt(0)")
for p in range(32):
    I(f"v_add_f32 v{BIG+2*p+1}, v{BIG+2*p+1}, v{BIG+64+p}")
I(f"v_mul_f32 v{a4}, v{BIG}, v{BIG+1}")
for p in range(1, 32):
    I(f"v_fmac_f32 v{a4}, v{BIG+2*p}, v{BIG+2*p+1}")
e("L_t2_pub:")
canon(a4, a5)
I(f"v_add_u32 v{a1}, s{S_WSB}, v{a1}")
I(f"buffer_store_dword v{a4}, v{a1}, s[{SRD_WS}:{SRD_WS+3}], 0 offen offset:{OP_OFF} sc1")
canon(a2, a5)
canon(a3, a5)
I(f"v_cmp_eq_u32 vcc, 0, v{V_T}")
I(f"v_mov_b32 v{a5}, 0")
I("s_nop 0")
I(f"v_cndmask_b32 v{a5}, v{a5}, v{a2}, vcc")
I(f"v_cmp_eq_u32 vcc, 1, v{V_T}")
I("s_nop 1")
I(f"v_cndmask_b32 v{a5}, v{a5}, v{a3}, vcc")
I(f"v_cmp_gt_u32 vcc, 4, v{V_T}")
I(f"v_mov_b32 v{a6}, {OOB}")
I("s_nop 0")
I(f"v_cndmask_b32 v{a1}, v{a6}, v{a1}, vcc")
I(f"buffer_store_dword v{a5}, v{a1}, s[{SRD_WS}:{SRD_WS+3}], 0 offen offset:{OP_OFF+768} sc1")
e("L_t_gu:")
I(f"v_mov_b32 v{a6}, {OOB}")
divmod_const(a2, a3, V_T, 49, 1338)
I(f"v_lshlrev_b32 v{a2}, 17, v{a2}")
I(f"v_lshl_add_u32 v{a2}, v{a3}, 4, v{a2}")
I(f"v_cmp_gt_u32 vcc, 392, v{V_T}")
I(f"s_lshl_b32 s{S_T0}, s{S_H}, 12")
I("s_nop 0")
I(f"v_cndmask_b32 v{a2}, v{a6}, v{a2}, vcc")
I(f"s_cmp_eq_u32 s{S_W}, 7")
I("s_cbranch_scc1 L_op_skip")
e("L_op_poll:")
I(f"buffer_load_dwordx4 v[{BIG}:{BIG+3}], v{a2}, s[{SRD_WS}:{SRD_WS+3}], s{S_T0} offen offset:{OP_OFF} sc1")
I("s_waitcnt vmcnt(0)")
poll_check([BIG, BIG + 1, BIG + 2, BIG + 3], "L_op_poll" if "--fullpoll" in sys.argv else "L_op_light", "L_op_done", a4)
e("L_op_light:")
I(f"v_lshlrev_b32 v{a5}, 17, v{V_LANE}")
I(f"v_cmp_gt_u32 vcc, 8, v{V_LANE}")
I("s_nop 1")
I(f"v_cndmask_b32 v{a5}, v{a6}, v{a5}, vcc")
e("L_op_light2:")
I(f"buffer_load_dword v{a4}, v{a5}, s[{SRD_WS}:{SRD_WS+3}], s{S_T0} offen offset:{OP_OFF+768} sc1")
I("s_waitcnt vmcnt(0)")
I(f"v_cmp_eq_u32 vcc, -1, v{a4}")
I("s_nop 4")
I("s_cbranch_vccz L_op_poll")
I("s_sleep 16")
I("s_branch L_op_light2")
e("L_op_done:")
I(f"v_lshlrev_b32 v{a1}, 4, v{V_T}")
mask_lt(392)
I(f"ds_write_b128 v{a1}, v[{BIG}:{BIG+3}] offset:{L_OPR}")
unmask()
e("L_op_skip:")
I("s_waitcnt lgkmcnt(0)")
I("s_barrier")
stamp("b4")
I(f"s_cmp_gt_u32 s{S_W}, 3")
I("s_cbranch_scc1 L_t5b")
I(f"s_cmp_eq_u32 s{S_W}, 3")
I("s_cbranch_scc1 L_t5h")
I(f"v_mov_b32 v{a1}, 0")
I(f"v_lshlrev_b32 v{a5}, 2, v{V_T}")
for p in range(8):
    I(f"ds_read_b64 v[{BIG+2*p}:{BIG+2*p+1}], v{a1} offset:{L_OPR + p*784 + 768}")
for p in range(8):
    I(f"ds_read_b32 v{BIG+16+p}, v{a5} offset:{L_OPR + p*784}")
I("s_waitcnt lgkmcnt(0)")
I(f"v_max3_f32 v{a2}, v{BIG}, v{BIG+2}, v{BIG+4}")
I(f"v_max3_f32 v{a2}, v{a2}, v{BIG+6}, v{BIG+8}")
I(f"v_max3_f32 v{a2}, v{a2}, v{BIG+10}, v{BIG+12}")
I(f"v_max_f32 v{a2}, v{a2}, v{BIG+14}")
for p in range(8):
    I(f"v_sub_f32 v{BIG+2*p}, v{BIG+2*p}, v{a2}")
for p in range(8):
    I(f"v_exp_f32 v{BIG+2*p}, v{BIG+2*p}")
I("s_nop 0")
I(f"v_mul_f32 v{a3}, v{BIG}, v{BIG+1}")
I(f"v_mul_f32 v{a4}, v{BIG}, v{BIG+16}")
for p in range(1, 8):
    I(f"v_fmac_f32 v{a3}, v{BIG+2*p}, v{BIG+2*p+1}")
    I(f"v_fmac_f32 v{a4}, v{BIG+2*p}, v{BIG+16+p}")
I(f"v_rcp_f32 v{a3}, v{a3}")
I("s_nop 0")
I(f"v_mul_f32 v{a4}, v{a4}, v{a3}")
rbf(a4, a6)
I(f"ds_write_b32 v{a5}, v{a4} offset:{L_OF}")
I("s_branch L_t5b")
e("L_t5h:")
I(f"v_lshlrev_b32 v{a5}, 2, v{V_LANE}")
I(f"v_min_u32 v{a5}, 188, v{a5}")
I(f"ds_read_b32 v{a2}, v{a5} offset:{L_GUR}")
I(f"ds_read_b32 v{a3}, v{a5} offset:{L_GUR + 192}")
I("s_waitcnt lgkmcnt(0)")
I(f"v_mul_f32 v{a2}, v{a2}, v{a3}")
rbf(a2, a6)
I(f"v_cmp_gt_u32 vcc, 48, v{V_LANE}")
I(f"s_and_saveexec_b64 s[{S_EX}:{S_EX+1}], vcc")
I(f"ds_write_b32 v{a5}, v{a2} offset:{L_OF+768}")
unmask()
e("L_t5b:")
I("s_waitcnt lgkmcnt(0)")
I("s_barrier")
stamp("b5")
I(f"v_min_u32 v{a1}, 47, v{V_OW+1}")
I(f"v_lshlrev_b32 v{a1}, 2, v{a1}")
for i in range(4):
    I(f"ds_read_b32 v{BIG+i}, v{a1} offset:{L_OF + 192*i}")
I(f"ds_read_b32 v{BIG+4}, v{a1} offset:{L_OF + 768}")
I("s_waitcnt vmcnt(0) lgkmcnt(0)")
for i in range(4):
    fma_chunk(BIG + 8, WR + 4 * i, BIG + i, a2, first=(i == 0))
fma_chunk(BIG + 16, WR + 16, BIG + 4, a2, first=True)
I(f"v_lshlrev_b32 v{a1}, 6, v{V_T}")
I(f"s_mov_b64 s[{S_EX}:{S_EX+1}], exec")
I(f"s_mov_b64 exec, s[{S_M480}:{S_M480+1}]")
for k in range(4):
    I(f"ds_write_b128 v{a1}, v[{BIG+8+4*k}:{BIG+11+4*k}] offset:{L_RED + 16*k}")
unmask()
I("s_waitcnt lgkmcnt(0)")
I("s_barrier")
stamp("b6")
I(f"s_cmp_ge_u32 s{S_W}, 3")
I("s_cbranch_scc1 L_t6")
I(f"v_min_u32 v{a1}, 159, v{V_T}")
I(f"v_cmp_lt_u32 vcc, 79, v{a1}")
I(f"v_subrev_u32 v{a2}, 80, v{a1}")
I("s_nop 0")
I(f"v_cndmask_b32 v{a2}, v{a1}, v{a2}, vcc")
I(f"v_cndmask_b32 v{a3}, 0, 32, vcc")
I(f"v_lshrrev_b32 v{a4}, 3, v{a2}")
I(f"v_and_b32 v{a2}, 7, v{a2}")
I(f"v_lshl_add_u32 v{a3}, v{a4}, 6, v{a3}")
I(f"v_lshl_add_u32 v{a3}, v{a2}, 2, v{a3}")
for sl in range(48):
    I(f"ds_read_b32 v{BIG+sl}, v{a3} offset:{L_RED + sl*640}")
I("s_waitcnt lgkmcnt(0)")
for k in range(0, 48, 4):
    I(f"v_add_f32 v{BIG+k}, v{BIG+k}, v{BIG+k+1}")
    I(f"v_add_f32 v{BIG+k+2}, v{BIG+k+2}, v{BIG+k+3}")
    I(f"v_add_f32 v{BIG+k}, v{BIG+k}, v{BIG+k+2}")
for k in range(4, 48, 4):
    I(f"v_add_f32 v{BIG}, v{BIG}, v{BIG+k}")
canon(BIG, a5)
I(f"v_lshl_add_u32 v{a1}, v{V_T}, 2, s{S_WSB}")
I(f"v_cmp_gt_u32 vcc, 160, v{V_T}")
I(f"v_mov_b32 v{a6}, {OOB}")
I("s_nop 0")
I(f"v_cndmask_b32 v{a1}, v{a6}, v{a1}, vcc")
I(f"buffer_store_dword v{BIG}, v{a1}, s[{SRD_WS}:{SRD_WS+3}], 0 offen offset:{AP_OFF} sc1")
e("L_t6:")
stamp("t6")
I(f"s_cmp_lg_u32 s{S_H}, 0")
I("s_cbranch_scc1 L_fin")
I(f"s_cmp_eq_u32 s{S_W}, 7")
I("s_cbranch_scc1 L_gate")
I(f"s_cmp_ge_u32 s{S_W}, 5")
I("s_cbranch_scc1 L_fin_bar")
divmod_const(a2, a3, V_T, 40, 1639)
I(f"v_lshlrev_b32 v{a2}, 14, v{a2}")
I(f"v_lshl_add_u32 v{a2}, v{a3}, 4, v{a2}")
I(f"s_lshl_b32 s{S_T0}, s{S_S}, 17")
I(f"s_add_u32 s{S_T1}, s{S_T0}, 4096")
I(f"s_add_u32 s{S_T2}, s{S_T0}, 8192")
I(f"s_add_u32 s{S_T3}, s{S_T0}, 12288")
e("L_ap_poll:")
for k, sr in enumerate((S_T0, S_T1, S_T2, S_T3)):
    I(f"buffer_load_dwordx4 v[{BIG+4*k}:{BIG+4*k+3}], v{a2}, s[{SRD_WS}:{SRD_WS+3}], s{sr} offen offset:{AP_OFF} sc1")
I("s_waitcnt vmcnt(0)")
poll_check(list(range(BIG, BIG + 16)), "L_ap_poll", "L_ap_done", a4)
e("L_ap_light:")
I(f"v_lshlrev_b32 v{a5}, 12, v{V_LANE}")
I(f"v_cmp_gt_u32 vcc, 32, v{V_LANE}")
I(f"v_mov_b32 v{a6}, {OOB}")
I("s_nop 0")
I(f"v_cndmask_b32 v{a5}, v{a6}, v{a5}, vcc")
e("L_ap_light2:")
I(f"buffer_load_dword v{a4}, v{a5}, s[{SRD_WS}:{SRD_WS+3}], s{S_T0} offen offset:{AP_OFF} sc1")
I("s_waitcnt vmcnt(0)")
I(f"v_cmp_eq_u32 vcc, -1, v{a4}")
I("s_nop 4")
I("s_cbranch_vccz L_ap_poll")
I("s_sleep 8")
I("s_branch L_ap_light2")
e("L_ap_done:")
for k in range(4):
    I(f"v_add_f32 v{BIG+k}, v{BIG+k}, v{BIG+4+k}")
    I(f"v_add_f32 v{BIG+8+k}, v{BIG+8+k}, v{BIG+12+k}")
for k in range(4):
    I(f"v_add_f32 v{BIG+k}, v{BIG+k}, v{BIG+8+k}")
I(f"v_lshlrev_b32 v{a1}, 4, v{V_T}")
I(f"ds_write_b128 v{a1}, v[{BIG}:{BIG+3}] offset:{L_FR}")
I("s_branch L_fin_bar")
e("L_gate:")
I(f"v_lshlrev_b32 v{a1}, 5, v{V_LANE}")
I(f"buffer_load_dwordx4 v[{BIG}:{BIG+3}], v{a1}, s[{SRD_X}:{SRD_X+3}], 0 offen")
I(f"buffer_load_dwordx4 v[{BIG+4}:{BIG+7}], v{a1}, s[{SRD_X}:{SRD_X+3}], 0 offen offset:16")
I(f"buffer_load_dwordx4 v[{BIG+8}:{BIG+11}], v{a1}, s[{SRD_GW}:{SRD_GW+3}], 0 offen")
I(f"buffer_load_dwordx4 v[{BIG+12}:{BIG+15}], v{a1}, s[{SRD_GW}:{SRD_GW+3}], 0 offen offset:16")
I(f"v_mov_b32 v{a2}, 0")
I("s_waitcnt vmcnt(0)")
for k in range(8):
    I(f"v_lshlrev_b32 v{a3}, 16, v{BIG+k}")
    I(f"v_lshlrev_b32 v{a4}, 16, v{BIG+8+k}")
    I(f"v_and_b32 v{a5}, 0xffff0000, v{BIG+k}")
    I(f"v_and_b32 v{a6}, 0xffff0000, v{BIG+8+k}")
    I(f"v_mul_f32 v{a3}, v{a3}, v{a4}")
    I(f"v_mul_f32 v{a5}, v{a5}, v{a6}")
    I(f"v_cvt_pk_bf16_f32 v{a3}, v{a3}, v{a5}")
    I(f"v_lshlrev_b32 v{a4}, 16, v{a3}")
    I(f"v_and_b32 v{a5}, 0xffff0000, v{a3}")
    I(f"v_add_f32 v{a2}, v{a2}, v{a4}")
    I(f"v_add_f32 v{a2}, v{a2}, v{a5}")
I(f"v_lshlrev_b32 v{a1}, 2, v{V_LANE}")
for m in (1, 2, 4, 8, 16, 32):
    I(f"v_xor_b32 v{a3}, {4*m}, v{a1}")
    I(f"ds_bpermute_b32 v{a4}, v{a3}, v{a2}")
    I("s_waitcnt lgkmcnt(0)")
    I(f"v_add_f32 v{a2}, v{a2}, v{a4}")
rbf(a2, a6)
I(f"v_mul_f32 v{a2}, s{S_LOG2E}, v{a2}")
I(f"v_sub_f32 v{a2}, 0, v{a2}")
I(f"v_exp_f32 v{a2}, v{a2}")
I("s_nop 0")
I(f"v_add_f32 v{a2}, 1.0, v{a2}")
I(f"v_rcp_f32 v{a2}, v{a2}")
I("s_nop 0")
rbf(a2, a6)
I(f"v_mov_b32 v{a1}, 0")
I(f"ds_write_b32 v{a1}, v{a2} offset:{L_GATE}")
e("L_fin_bar:")
I("s_waitcnt lgkmcnt(0)")
I("s_barrier")
I(f"s_cmp_ge_u32 s{S_W}, 2")
I("s_cbranch_scc1 L_fin")
I(f"v_min_u32 v{a1}, 79, v{V_T}")
I(f"v_lshlrev_b32 v{a1}, 2, v{a1}")
I(f"v_mov_b32 v{a5}, 0")
for hg in range(8):
    I(f"ds_read_b32 v{BIG+hg}, v{a1} offset:{L_FR + hg*640}")
    I(f"ds_read_b32 v{BIG+8+hg}, v{a1} offset:{L_FR + hg*640 + 320}")
I(f"ds_read_b32 v{a7}, v{a5} offset:{L_GATE}")
I("s_waitcnt lgkmcnt(0)")
I(f"v_add_f32 v{a2}, v{BIG}, v{BIG+1}")
I(f"v_add_f32 v{a3}, v{BIG+8}, v{BIG+9}")
for p in range(2, 8):
    I(f"v_add_f32 v{a2}, v{a2}, v{BIG+p}")
    I(f"v_add_f32 v{a3}, v{a3}, v{BIG+8+p}")
rbf(a2, a6)
rbf(a3, a6)
I(f"v_sub_f32 v{a4}, 1.0, v{a7}")
rbf(a4, a6)
I(f"v_mul_f32 v{a2}, v{a7}, v{a2}")
I(f"v_mul_f32 v{a3}, v{a4}, v{a3}")
rbf(a2, a6)
rbf(a3, a6)
I(f"v_add_f32 v{a2}, v{a2}, v{a3}")
I(f"v_cvt_pk_bf16_f32 v{a2}, v{a2}, v{a2}")
I(f"s_mul_i32 s{S_T0}, s{S_S}, 160")
I(f"v_lshlrev_b32 v{a1}, 1, v{V_T}")
I(f"v_cmp_gt_u32 vcc, 80, v{V_T}")
I(f"v_mov_b32 v{a6}, {OOB}")
I("s_nop 0")
I(f"v_cndmask_b32 v{a1}, v{a6}, v{a1}, vcc")
I(f"buffer_store_short v{a2}, v{a1}, s[{SRD_OUT}:{SRD_OUT+3}], s{S_T0} offen")
e("L_fin:")
stamp("end")
dump_stamps()
e("L_end:")
I("s_endpgm")
e('.section .rodata,"a"')
e(".p2align 6")
e(f".amdhsa_kernel {NAME}_kernel")
e("  .amdhsa_next_free_vgpr 256")
e("  .amdhsa_next_free_sgpr 102")
e("  .amdhsa_accum_offset 256")
e("  .amdhsa_group_segment_fixed_size 0")
e("  .amdhsa_kernarg_size 104")
e("  .amdhsa_user_sgpr_count 2")
e("  .amdhsa_user_sgpr_kernarg_segment_ptr 1")
e("  .amdhsa_system_sgpr_workgroup_id_x 1")
e(".end_amdhsa_kernel")

open(OUTFILE, "w").write("\n".join(out) + "\n")
print("wrote", OUTFILE, len(out), "lines")
```

```python
import sys

NAME = "gated_mix__gqa_block_cached__glu_gated_bilinear__decode"
HEADER = open("cdna_kernels/%s.s.ref" % NAME).read().split("; Override launch geometry")[0]

out = []
def e(s=""):
    out.append(s)
def I(s):
    out.append("    " + s)

NT = " nt" if "--nt" in sys.argv else ""
STAMP = "--stamp" in sys.argv
DBGST = "--dbgstamp" in sys.argv
CNT_OFF = 128 if DBGST else 0
RR = "--rr" in sys.argv
PACE = 0
for a_ in sys.argv:
    if a_.startswith("--pace="): PACE = int(a_[7:])
WSTRIDE, TSTRIDE = (6144, 49152) if RR else (49152, 6144)
OUTFILE = "cdna_kernels/%s.s" % NAME
for a in sys.argv[1:]:
    if a.startswith("--out="):
        OUTFILE = a[6:]

KV_BYTES = 100663296
WQ_BYTES = 640 * 6144 * 2
WO_BYTES = 6144 * 640 * 2
WD_BYTES = 1536 * 640 * 2
WS_BYTES = 402653184
OOB = 0x7f000000
FLAG_OFF = 2688
QP_OFF, OP_OFF, AP_OFF = 0, 1152, 2048
L_FLAG = 51200
L_QR = 0
L_GR = 15360
L_PART = 0
L_QB = 34816
L_OPR = 35328
L_GUR = 41600
L_OF = 44672
L_GATE = 45632
L_RED = 0
L_FR = 46080
L_KR = 51712
LDS_BYTES = L_KR + 16 * 6144

S_WG = 2
S_H, S_S, S_W = 3, 62, 63
SRD_K, SRD_V, SRD_WQ, SRD_WO, SRD_WD, SRD_WS, SRD_X, SRD_DBG = 4, 8, 12, 16, 20, 24, 28, 32
KA0 = 36
S_MHI = 64
S_T0, S_T1, S_T2, S_T3 = 66, 67, 68, 69
S_EX = 70
S_BASE = 72
S_NA, S_NB = 73, 74
S_IT = 75
S_SCALE, S_LOG2E = 76, 77
S_WSB = 78
S_M480 = 80
S_C1 = 82
SRD_GW, SRD_OUT = 84, 88
S_WGP, S_WUP = 92, 94
S_ST = 96
S_KL = 79
S_T4 = 100
S_NV = 101

V_T, V_LANE, V_G, V_I, V_OK, V_OV1, V_OV2 = 0, 1, 2, 3, 4, 5, 6
A = [7, 8, 9, 10, 11, 12, 13, 14, 15]
KA, VA, KB, VB = 16, 40, 64, 88
VS = [40, 64, 88, 204]
STG = 64
XR = 192
GU = 208
XG = 216
AQ = 220
AG = 228
V_SL, V_C, V_SL2, V_C2 = 236, 237, 238, 239
V_NEG = 240
QF = 112
ACC = 136
WR = 152
D = 172
P = 176
VM, VL = 180, 181
T2 = 182
V_OW = 200
V_KRD = 202
BIG = 16


def srd(dst, lo, hi, nbytes):
    I(f"s_mov_b32 s{dst}, s{lo}")
    I(f"s_and_b32 s{dst+1}, s{hi}, 0xffff")
    I(f"s_mov_b32 s{dst+2}, {nbytes}")
    I(f"s_mov_b32 s{dst+3}, 0x00020000")


def divmod_const(vq, vr, vsrc, d, magic):
    I(f"v_mul_u32_u24 v{vq}, {magic}, v{vsrc}")
    I(f"v_lshrrev_b32 v{vq}, 16, v{vq}")
    I(f"v_mul_u32_u24 v{vr}, {d}, v{vq}")
    I(f"v_sub_u32 v{vr}, v{vsrc}, v{vr}")


stamp_n = [0]
def stamp(tag):
    if not STAMP:
        return
    n = stamp_n[0]; stamp_n[0] += 1
    assert n < 13
    I(f"s_memrealtime s[{KA0+2*n}:{KA0+2*n+1}]")
    I("s_waitcnt lgkmcnt(0)")


def dump_stamps():
    if not STAMP:
        return
    if DBGST:
        I(f"s_cmp_lg_u32 s{S_WG}, 0")
        I("s_cbranch_scc1 L_end")
        I(f"s_cmp_lg_u32 s{S_W}, 0")
        I("s_cbranch_scc1 L_end")
        I(f"v_mov_b32 v252, 0")
        I(f"v_cmp_eq_u32 vcc, 0, v{V_LANE}")
        I(f"s_and_saveexec_b64 s[{S_ST}:{S_ST+1}], vcc")
        for n in range(stamp_n[0]):
            I(f"s_sub_u32 s{S_ST+2}, s{KA0+2*n}, s{KA0}")
            I(f"v_mov_b32 v250, s{S_ST+2}")
            I(f"buffer_store_dword v250, v252, s[{SRD_DBG}:{SRD_DBG+3}], 0 offen offset:{4*n}")
            I("s_nop 2")
        return
    I(f"s_lshl_b32 s{S_ST}, s{S_WG}, 3")
    I(f"s_add_u32 s{S_ST}, s{S_ST}, s{S_W}")
    I(f"s_lshl_b32 s{S_ST}, s{S_ST}, 8")
    I(f"s_add_u32 s{S_ST}, s{S_ST}, {0x1000000}")
    I(f"v_mov_b32 v252, s{S_ST}")
    I(f"v_cmp_eq_u32 vcc, 0, v{V_LANE}")
    I(f"s_and_saveexec_b64 s[{S_ST}:{S_ST+1}], vcc")
    for n in range(stamp_n[0]):
        I(f"v_mov_b32 v250, s{KA0+2*n}")
        I(f"v_mov_b32 v251, s{KA0+2*n+1}")
        I(f"buffer_store_dwordx2 v[250:251], v252, s[{SRD_WS}:{SRD_WS+3}], 0 offen offset:{8*n}")
        I("s_nop 2")


def fma_chunk(acc, data, scal, tmp, first=False):
    for j in range(4):
        I(f"v_lshlrev_b32 v{tmp}, 16, v{data+j}")
        I(f"v_and_b32 v{tmp+1}, 0xffff0000, v{data+j}")
        op = "v_mul_f32" if first else "v_fmac_f32"
        I(f"{op} v{acc+2*j}, v{scal}, v{tmp}")
        I(f"{op} v{acc+2*j+1}, v{scal}, v{tmp+1}")


def canon(v, tmp):
    I(f"v_cmp_eq_u32 vcc, -1, v{v}")
    I(f"v_mov_b32 v{tmp}, 0x7fc00000")
    I("s_nop 1")
    I(f"v_cndmask_b32 v{v}, v{v}, v{tmp}, vcc")


def rbf(v, tmp):
    I(f"v_cvt_pk_bf16_f32 v{tmp}, v{v}, v{v}")
    I(f"v_lshlrev_b32 v{v}, 16, v{tmp}")


def load_k(slot, soff):
    x = 0 if slot == KA else 1
    I(f"s_add_u32 m0, s{S_KL}, {x*6144}")
    I(f"s_add_u32 s{S_T4}, s{soff}, 4096")
    for j in range(4):
        I(f"buffer_load_dwordx4 v{V_OK}, s[{SRD_K}:{SRD_K+3}], s{soff} offen offset:{j*1024}{NT} lds")
    I(f"s_add_u32 m0, s{S_KL}, {x*6144 + 4096}")
    I("s_nop 0")
    for j in range(2):
        I(f"buffer_load_dwordx4 v{V_OK}, s[{SRD_K}:{SRD_K+3}], s{S_T4} offen offset:{j*1024}{NT} lds")


def load_v(slot, soff):
    for r in range(4):
        I(f"buffer_load_dwordx4 v[{slot+4*r}:{slot+4*r+3}], v{V_OV1}, s[{SRD_V}:{SRD_V+3}], s{soff} offen offset:{r*384}{NT}")
    for r in range(2):
        I(f"buffer_load_dwordx4 v[{slot+16+4*r}:{slot+16+4*r+3}], v{V_OV2}, s[{SRD_V}:{SRD_V+3}], s{soff} offen offset:{r*768}{NT}")


def poll_check(regs, lab_retry, lab_done, tmp):
    cur = regs[0]
    rest = list(regs[1:])
    while rest:
        if len(rest) >= 2:
            I(f"v_max3_u32 v{tmp}, v{cur}, v{rest[0]}, v{rest[1]}")
            rest = rest[2:]
        else:
            I(f"v_max_u32 v{tmp}, v{cur}, v{rest[0]}")
            rest = rest[1:]
        cur = tmp
    I(f"v_cmp_eq_u32 vcc, -1, v{cur}")
    I("s_nop 4")
    I(f"s_cbranch_vccz {lab_done}")
    I("s_sleep 2")
    I(f"s_branch {lab_retry}")


def mask_lt(n, save=S_EX):
    I(f"v_cmp_gt_u32 vcc, {n}, v{V_T}")
    I(f"s_and_saveexec_b64 s[{save}:{save+1}], vcc")


def unmask(save=S_EX):
    I(f"s_mov_b64 exec, s[{save}:{save+1}]")


e(HEADER.rstrip("\n"))
e("; Override launch geometry by editing the next line (default: block=256,")
e(f"; @launch grid=(256,1,1) block=(512,1,1) lds={LDS_BYTES}")
e('.amdgcn_target "amdgcn-amd-amdhsa--gfx950"')
e(".text")
e(f".globl {NAME}_kernel")
e(".p2align 8")
e(f".type {NAME}_kernel,@function")
e(f"{NAME}_kernel:")
I(f"s_cmp_ge_u32 s{S_WG}, 256")
I("s_cbranch_scc1 L_end")
I(f"s_load_dwordx16 s[{KA0}:{KA0+15}], s[0:1], 0")
I(f"s_load_dwordx8 s[{KA0+16}:{KA0+23}], s[0:1], 64")
I(f"s_load_dwordx2 s[{KA0+24}:{KA0+25}], s[0:1], 96")
a0, a1, a2, a3, a4, a5, a6, a7, a8 = A
I(f"v_and_b32 v{V_LANE}, 63, v{V_T}")
I(f"v_lshrrev_b32 v{a0}, 6, v{V_T}")
I(f"v_lshrrev_b32 v{V_G}, 4, v{V_LANE}")
I(f"v_and_b32 v{V_I}, 15, v{V_LANE}")
I(f"v_readfirstlane_b32 s{S_W}, v{a0}")
if "--shift" in sys.argv:
    I(f"s_xor_b32 s{S_WG}, s{S_WG}, 1")
I(f"s_and_b32 s{S_H}, s{S_WG}, 31")
I(f"s_lshr_b32 s{S_S}, s{S_WG}, 5")
I(f"s_lshl_b32 s{S_WSB}, s{S_WG}, 12")
I(f"v_mul_u32_u24 v{V_KRD}, 384, v{V_I}")
I(f"v_lshl_add_u32 v{V_KRD}, v{V_G}, 4, v{V_KRD}")
I(f"v_lshlrev_b32 v{V_OK}, 4, v{V_LANE}")
I(f"s_mul_i32 s{S_KL}, s{S_W}, 12288")
I(f"s_add_u32 s{S_KL}, s{S_KL}, {L_KR}")
I(f"v_add_u32 v{V_KRD}, s{S_KL}, v{V_KRD}")
I(f"v_mul_u32_u24 v{a1}, 1536, v{V_G}")
I(f"v_lshl_add_u32 v{V_OV1}, v{V_I}, 4, v{a1}")
I(f"v_lshrrev_b32 v{a2}, 3, v{V_I}")
I(f"v_mul_u32_u24 v{a2}, 384, v{a2}")
I(f"v_and_b32 v{a3}, 7, v{V_I}")
I(f"v_lshlrev_b32 v{a3}, 4, v{a3}")
I(f"v_add3_u32 v{V_OV2}, v{a1}, v{a2}, v{a3}")
I(f"v_add_u32 v{V_OV2}, 256, v{V_OV2}")
I(f"v_cmp_lt_u32 s[{S_MHI}:{S_MHI+1}], 7, v{V_I}")
I(f"v_cmp_gt_u32 vcc, 480, v{V_T}")
I(f"s_mov_b64 s[{S_M480}:{S_M480+1}], vcc")
I(f"s_mov_b32 s{S_SCALE}, 0x3d93cd3a")
I(f"s_mov_b32 s{S_LOG2E}, 0x3fb8aa3b")
divmod_const(V_SL, V_C, V_T, 24, 2731)
divmod_const(V_SL2, V_C2, V_T, 12, 5462)
for k in range(4):
    I(f"v_mov_b32 v{V_NEG+k}, -1")
I("s_waitcnt lgkmcnt(0)")
kp = lambda n: (KA0 + 2 * n, KA0 + 2 * n + 1)
srd(SRD_WS, *kp(12), WS_BYTES)
srd(SRD_X, *kp(0), 1280)
srd(SRD_WQ, *kp(3), WQ_BYTES)
srd(SRD_K, *kp(1), KV_BYTES)
srd(SRD_V, *kp(2), KV_BYTES)
srd(SRD_WO, *kp(4), WO_BYTES)
srd(SRD_WD, *kp(8), WD_BYTES)
srd(SRD_GW, *kp(9), 1280)
srd(SRD_OUT, *kp(10), 1280)
srd(SRD_DBG, *kp(11), 256)
I(f"s_mov_b64 s[{S_WGP}:{S_WGP+1}], s[{kp(6)[0]}:{kp(6)[1]}]")
I(f"s_mov_b64 s[{S_WUP}:{S_WUP+1}], s[{kp(7)[0]}:{kp(7)[1]}]")
stamp("start")
I(f"s_mul_i32 s{S_BASE}, s{S_H}, 3145728")
I(f"s_mul_i32 s{S_T0}, s{S_S}, 393216")
I(f"s_add_u32 s{S_BASE}, s{S_BASE}, s{S_T0}")
I(f"s_mul_i32 s{S_T0}, s{S_W}, {WSTRIDE}")
I(f"s_add_u32 s{S_BASE}, s{S_BASE}, s{S_T0}")

if "--codepf" in sys.argv:
    I(f"s_cmp_lg_u32 s{S_W}, 7")
    I("s_cbranch_scc1 L_nopf")
    I(f"s_getpc_b64 s[{S_C1}:{S_C1+1}]")
    I(f"v_lshlrev_b32 v{a0}, 4, v{V_LANE}")
    for k in range(11):
        if k % 4 == 0 and k:
            I(f"v_add_u32 v{a0}, 4096, v{a0}")
        I(f"global_load_dwordx4 v[{112+4*k}:{115+4*k}], v{a0}, s[{S_C1}:{S_C1+1}] offset:{(k%4)*1024}")
    e("L_nopf:")
I(f"v_mov_b32 v{a8}, {OOB}")
I(f"v_lshl_add_u32 v{a0}, v{V_T}, 4, s{S_WSB}")
I(f"v_cmp_gt_u32 vcc, 97, v{V_T}")
I(f"v_mov_b32 v{a2}, 0")
I(f"v_mov_b32 v{a3}, 0")
I(f"v_cndmask_b32 v{a0}, v{a8}, v{a0}, vcc")
I(f"buffer_store_dwordx4 v[{V_NEG}:{V_NEG+3}], v{a0}, s[{SRD_WS}:{SRD_WS+3}], 0 offen offset:{OP_OFF} sc1")
I(f"v_mov_b32 v{a1}, {L_FLAG}")
I(f"ds_write_b64 v{a1}, v[{a2}:{a3}]") if a2 % 2 == 0 else (I(f"ds_write_b32 v{a1}, v{a2}"), I(f"ds_write_b32 v{a1}, v{a2} offset:4"))
I(f"s_mul_i32 s{S_T0}, s{S_S}, 160")
I(f"v_lshlrev_b32 v{a1}, 3, v{V_SL}")
I(f"v_cndmask_b32 v{a1}, v{a8}, v{a1}, s[{S_M480}:{S_M480+1}]")
I(f"buffer_load_dwordx2 v[{XR}:{XR+1}], v{a1}, s[{SRD_X}:{SRD_X+3}], s{S_T0} offen")
I(f"v_lshlrev_b32 v{a2}, 2, v{V_SL2}")
I(f"v_cndmask_b32 v{a2}, v{a8}, v{a2}, s[{S_M480}:{S_M480+1}]")
I(f"buffer_load_dword v{XG}, v{a2}, s[{SRD_X}:{SRD_X+3}], s{S_T0} offen")
I(f"v_mul_u32_u24 v{a0}, {4*12288 // 16}, v{V_SL}")
I(f"v_add_u32 v{a0}, v{a0}, v{V_C}")
I(f"v_lshlrev_b32 v{a0}, 4, v{a0}")
I(f"v_cndmask_b32 v{a0}, v{a8}, v{a0}, s[{S_M480}:{S_M480+1}]")
I(f"s_mul_i32 s{S_T0}, s{S_H}, 384")
I(f"s_mul_i32 s{S_T1}, s{S_S}, {80*12288}")
I(f"s_add_u32 s{S_T0}, s{S_T0}, s{S_T1}")
for k in range(4):
    I(f"buffer_load_dwordx4 v[{STG+4*k}:{STG+4*k+3}], v{a0}, s[{SRD_WQ}:{SRD_WQ+3}], s{S_T0} offen")
    if k != 3:
        I(f"s_add_u32 s{S_T0}, s{S_T0}, 12288")
I(f"v_min_u32 v{a3}, 39, v{V_SL2}")
I(f"v_cmp_gt_u32 vcc, 6, v{V_C2}")
I(f"v_subrev_u32 v{a4}, 6, v{V_C2}")
I(f"v_mov_b32 v{a5}, s{S_WUP}")
I(f"v_mov_b32 v{a6}, s{S_WUP+1}")
I(f"v_cndmask_b32 v{a4}, v{a4}, v{V_C2}, vcc")
I(f"v_mov_b32 v{a0}, s{S_WGP}")
I(f"v_mov_b32 v{a1}, s{S_WGP+1}")
I(f"v_cndmask_b32 v{a5}, v{a5}, v{a0}, vcc")
I(f"v_cndmask_b32 v{a6}, v{a6}, v{a1}, vcc")
I(f"s_mul_i32 s{S_T0}, s{S_S}, {80*3072}")
I(f"s_mul_i32 s{S_T1}, s{S_H}, 96")
I(f"s_add_u32 s{S_T0}, s{S_T0}, s{S_T1}")
I(f"v_mul_u32_u24 v{a3}, 6144, v{a3}")
I(f"v_lshl_add_u32 v{a3}, v{a4}, 4, v{a3}")
I(f"v_add_u32 v{a3}, s{S_T0}, v{a3}")
I(f"v_add_co_u32 v244, vcc, v{a5}, v{a3}")
I("s_nop 1")
I(f"v_addc_co_u32 v245, vcc, 0, v{a6}, vcc")
I(f"global_load_dwordx4 v[{GU}:{GU+3}], v[244:245], off")
I(f"global_load_dwordx4 v[{GU+4}:{GU+7}], v[244:245], off offset:3072")
divmod_const(V_OW + 1, a3, V_T, 10, 6554)
I(f"v_mul_u32_u24 v{V_OW}, 1280, v{V_OW+1}")
I(f"v_lshl_add_u32 v{V_OW}, v{a3}, 4, v{V_OW}")
I(f"v_cndmask_b32 v{V_OW}, v{a8}, v{V_OW}, s[{S_M480}:{S_M480+1}]")
I(f"s_add_u32 s{S_NA}, s{S_BASE}, {TSTRIDE}")
I(f"s_add_u32 s{S_NB}, s{S_BASE}, {2*TSTRIDE}")
I(f"s_add_u32 s{S_NV}, s{S_BASE}, {3*TSTRIDE}")
def load_w():
    I(f"s_mul_i32 s{S_T0}, s{S_H}, {192*1280}")
    I(f"s_mul_i32 s{S_T1}, s{S_S}, 160")
    I(f"s_add_u32 s{S_T0}, s{S_T0}, s{S_T1}")
    for i in range(4):
        I(f"buffer_load_dwordx4 v[{WR+4*i}:{WR+4*i+3}], v{V_OW}, s[{SRD_WO}:{SRD_WO+3}], s{S_T0} offen")
        if i != 3:
            I(f"s_add_u32 s{S_T0}, s{S_T0}, {48*1280}")
    I(f"s_mul_i32 s{S_T0}, s{S_H}, {48*1280}")
    I(f"s_add_u32 s{S_T0}, s{S_T0}, s{S_T1}")
    I(f"buffer_load_dwordx4 v[{WR+16}:{WR+19}], v{V_OW}, s[{SRD_WD}:{SRD_WD+3}], s{S_T0} offen")
I("s_waitcnt vmcnt(0)")
load_k(KA, S_BASE)
for k in range(4):
    xs = XR + k // 2
    if k % 2 == 0:
        I(f"v_lshlrev_b32 v{a1}, 16, v{xs}")
    else:
        I(f"v_and_b32 v{a1}, 0xffff0000, v{xs}")
    fma_chunk(AQ, STG + 4 * k, a1, a2, first=(k == 0))
I(f"v_lshlrev_b32 v{a1}, 16, v{XG}")
fma_chunk(AG, GU, a1, a2, first=True)
I(f"v_and_b32 v{a1}, 0xffff0000, v{XG}")
fma_chunk(AG, GU + 4, a1, a2)
I(f"v_mul_u32_u24 v{a1}, 768, v{V_SL}")
I(f"v_lshl_add_u32 v{a1}, v{V_C}, 5, v{a1}")
I(f"v_mul_u32_u24 v{a2}, 384, v{V_SL2}")
I(f"v_lshl_add_u32 v{a2}, v{V_C2}, 5, v{a2}")
I(f"s_mov_b64 s[{S_EX}:{S_EX+1}], exec")
I(f"s_mov_b64 exec, s[{S_M480}:{S_M480+1}]")
I(f"ds_write_b128 v{a1}, v[{AQ}:{AQ+3}] offset:{L_QR}")
I(f"ds_write_b128 v{a1}, v[{AQ+4}:{AQ+7}] offset:{L_QR+16}")
I(f"ds_write_b128 v{a2}, v[{AG}:{AG+3}] offset:{L_GR}")
I(f"ds_write_b128 v{a2}, v[{AG+4}:{AG+7}] offset:{L_GR+16}")
unmask()
I("s_waitcnt lgkmcnt(0)")
I("s_barrier")
stamp("b1")
I(f"s_cmp_lt_u32 s{S_W}, 5")
I("s_cbranch_scc1 L_a_wave")
I("s_branch L_a_fill")
e("L_a_wave:")
qregs = [T2 + sl if sl < 18 else 244 + sl - 18 for sl in range(20)]
I(f"v_lshlrev_b32 v{a1}, 2, v{V_T}")
I(f"s_cmp_ge_u32 s{S_W}, 3")
I("s_cbranch_scc1 L_a_notq")
for sl in range(20):
    I(f"ds_read_b32 v{qregs[sl]}, v{a1} offset:{L_QR + sl*768}")
I("s_waitcnt lgkmcnt(0)")
I(f"v_add_f32 v{a2}, v{qregs[0]}, v{qregs[1]}")
for r in qregs[2:]:
    I(f"v_add_f32 v{a2}, v{a2}, v{r}")
I("s_branch L_a_pub")
e("L_a_notq:")
I(f"v_subrev_u32 v{a3}, 768, v{a1}")
I(f"v_min_u32 v{a3}, 380, v{a3}")
for half in range(2):
    for sl in range(20):
        I(f"ds_read_b32 v{qregs[sl]}, v{a3} offset:{L_GR + (half*20+sl)*384}")
    I("s_waitcnt lgkmcnt(0)")
    if half == 0:
        I(f"v_add_f32 v{a2}, v{qregs[0]}, v{qregs[1]}")
        rest = qregs[2:]
    else:
        rest = qregs
    for r in rest:
        I(f"v_add_f32 v{a2}, v{a2}, v{r}")
e("L_a_pub:")
I(f"v_cmp_gt_u32 vcc, 288, v{V_T}")
I(f"v_add_u32 v{a3}, s{S_WSB}, v{a1}")
I("s_nop 0")
I(f"v_cndmask_b32 v{a3}, v{a8}, v{a3}, vcc")
I(f"v_cndmask_b32 v{a5}, v{a8}, v{a1}, vcc")
I(f"buffer_store_dword v{a2}, v{a3}, s[{SRD_WS}:{SRD_WS+3}], 0 offen offset:{QP_OFF} sc1")
I(f"v_mov_b32 v{a1}, {L_FLAG}")
I(f"v_mov_b32 v{a2}, 1")
I(f"s_lshl_b32 s{S_T1}, s{S_H}, 2")
I(f"v_mov_b32 v{a4}, s{S_T1}")
I("s_waitcnt vmcnt(0)")
stamp("ack")
I(f"v_cmp_eq_u32 vcc, 0, v{V_LANE}")
I(f"s_and_saveexec_b64 s[{S_EX}:{S_EX+1}], vcc")
I(f"ds_add_rtn_u32 v{a3}, v{a1}, v{a2}")
I("s_waitcnt lgkmcnt(0)")
I(f"v_readfirstlane_b32 s{S_T0}, v{a3}")
I(f"s_cmp_lg_u32 s{S_T0}, 4")
I("s_cbranch_scc1 L_a_noatom")
I(f"v_mov_b32 v{a3}, 1")
I(f"buffer_atomic_add v{a3}, v{a4}, s[{SRD_DBG}:{SRD_DBG+3}], 0 offen offset:{CNT_OFF} sc0 sc1")
I("s_waitcnt vmcnt(0)")
I(f"v_readfirstlane_b32 s{S_T0}, v{a3}")
I(f"s_cmp_lg_u32 s{S_T0}, 7")
I("s_cbranch_scc1 L_a_noatom")
I(f"s_mov_b64 exec, 0xff")
I(f"s_lshl_b32 s{S_T0}, s{S_H}, 12")
I(f"v_lshlrev_b32 v{a3}, 17, v{V_LANE}")
I(f"buffer_store_dword v{a2}, v{a3}, s[{SRD_WS}:{SRD_WS+3}], s{S_T0} offen offset:{FLAG_OFF} sc1")
e("L_a_noatom:")
unmask()
I(f"s_cmp_lg_u32 s{S_W}, 0")
I("s_cbranch_scc1 L_a_fill")
I(f"v_mov_b32 v{a4}, s{S_WSB}")
I(f"v_lshlrev_b32 v{a5}, 4, v{V_LANE}")
I(f"v_cmp_gt_u32 vcc, 48, v{V_LANE}")
I("s_nop 1")
I(f"v_cndmask_b32 v{a5}, v{a8}, v{a5}, vcc")
e("L_a_gpoll:")
I(f"buffer_load_dword v{a3}, v{a4}, s[{SRD_WS}:{SRD_WS+3}], 0 offen offset:{FLAG_OFF} sc1")
I("s_waitcnt vmcnt(0)")
I(f"v_readfirstlane_b32 s{S_T0}, v{a3}")
I(f"s_cmp_eq_u32 s{S_T0}, 1")
I("s_cbranch_scc1 L_a_gok")
I("s_sleep 2")
I("s_branch L_a_gpoll")
e("L_a_gok:")
stamp("flag")
I(f"s_lshl_b32 s{S_T0}, s{S_H}, 12")
for p in range(8):
    I(f"buffer_load_dwordx4 v[{112+4*p}:{115+4*p}], v{a5}, s[{SRD_WS}:{SRD_WS+3}], s{S_T0} offen offset:{QP_OFF} sc1")
    if p != 7:
        I(f"s_add_u32 s{S_T0}, s{S_T0}, {32*4096}")
I("s_waitcnt vmcnt(0)")
load_v(VS[0], S_BASE)
for k in range(4):
    I(f"v_add_f32 v{112+k}, v{112+k}, v{116+k}")
for p in range(2, 8):
    for k in range(4):
        I(f"v_add_f32 v{112+k}, v{112+k}, v{112+4*p+k}")
I(f"v_cvt_pk_bf16_f32 v116, v112, v113")
I(f"v_cvt_pk_bf16_f32 v117, v114, v115")
I(f"v_lshlrev_b32 v{a3}, 3, v{V_LANE}")
I(f"v_cmp_gt_u32 vcc, 48, v{V_LANE}")
I(f"s_and_saveexec_b64 s[{S_EX}:{S_EX+1}], vcc")
I(f"ds_write_b64 v{a3}, v[116:117] offset:{L_QB}")
unmask()
load_k(KB, S_NA)
load_v(VS[1], S_NA)
load_v(VS[2], S_NB)
load_v(VS[3], S_NV)
I("s_branch L_a_done")
e("L_a_fill:")
I(f"s_waitcnt vmcnt({PACE})")
load_v(VS[0], S_BASE)
I(f"s_waitcnt vmcnt({PACE})")
load_k(KB, S_NA)
I(f"s_waitcnt vmcnt({PACE})")
load_v(VS[1], S_NA)
I(f"s_waitcnt vmcnt({PACE})")
load_v(VS[2], S_NB)
I(f"s_waitcnt vmcnt({PACE})")
load_v(VS[3], S_NV)
e("L_a_done:")
I("s_waitcnt lgkmcnt(0)")
I("s_barrier")
stamp("b2")
I(f"v_lshlrev_b32 v{a1}, 4, v{V_G}")
for j in range(6):
    I(f"ds_read_b128 v[{QF+4*j}:{QF+4*j+3}], v{a1} offset:{L_QB + 64*j}")
for k in range(16):
    I(f"v_mov_b32 v{ACC+k}, 0")
I(f"v_mov_b32 v{VM}, 0xff7fffff")
I(f"v_mov_b32 v{VL}, 0")
I(f"s_mov_b32 s{S_IT}, 0")
I(f"s_add_u32 s{S_NA}, s{S_BASE}, {2*TSTRIDE}")
I(f"s_add_u32 s{S_NV}, s{S_BASE}, {4*TSTRIDE}")
I("s_waitcnt lgkmcnt(0)")

def tile(KX, VX, soff, soffv):
    I("s_waitcnt vmcnt(18)")
    x = 0 if KX == KA else 1
    for j in range(6):
        I(f"ds_read_b128 v[{KA+4*j}:{KA+4*j+3}], v{V_KRD} offset:{x*6144 + j*64}")
    I("s_waitcnt lgkmcnt(0)")
    load_k(KX, soff)
    for j in range(6):
        c = "0" if j == 0 else f"v[{D}:{D+3}]"
        I(f"v_mfma_f32_16x16x32_bf16 v[{D}:{D+3}], v[{KA+4*j}:{KA+4*j+3}], v[{QF+4*j}:{QF+4*j+3}], {c}")
    I("s_nop 7")
    t0, t1 = T2, T2 + 1
    s = [T2 + 2, T2 + 3, T2 + 4, T2 + 5]
    I(f"v_cvt_pk_bf16_f32 v{t0}, v{D}, v{D+1}")
    I(f"v_cvt_pk_bf16_f32 v{t1}, v{D+2}, v{D+3}")
    I(f"v_lshlrev_b32 v{s[0]}, 16, v{t0}")
    I(f"v_and_b32 v{s[1]}, 0xffff0000, v{t0}")
    I(f"v_lshlrev_b32 v{s[2]}, 16, v{t1}")
    I(f"v_and_b32 v{s[3]}, 0xffff0000, v{t1}")
    for r in range(4):
        I(f"v_mul_f32 v{s[r]}, s{S_SCALE}, v{s[r]}")
    I(f"v_cvt_pk_bf16_f32 v{t0}, v{s[0]}, v{s[1]}")
    I(f"v_cvt_pk_bf16_f32 v{t1}, v{s[2]}, v{s[3]}")
    I(f"v_lshlrev_b32 v{s[0]}, 16, v{t0}")
    I(f"v_and_b32 v{s[1]}, 0xffff0000, v{t0}")
    I(f"v_lshlrev_b32 v{s[2]}, 16, v{t1}")
    I(f"v_and_b32 v{s[3]}, 0xffff0000, v{t1}")
    for r in range(4):
        I(f"v_mul_f32 v{s[r]}, s{S_LOG2E}, v{s[r]}")
    mn, al = T2 + 6, T2 + 7
    I(f"v_max3_f32 v{mn}, v{s[0]}, v{s[1]}, v{s[2]}")
    I(f"v_max3_f32 v{mn}, v{mn}, v{s[3]}, v{VM}")
    I(f"v_sub_f32 v{al}, v{VM}, v{mn}")
    for r in range(4):
        I(f"v_sub_f32 v{P+r}, v{s[r]}, v{mn}")
    I(f"v_exp_f32 v{al}, v{al}")
    for r in range(4):
        I(f"v_exp_f32 v{P+r}, v{P+r}")
    I(f"v_mov_b32 v{VM}, v{mn}")
    for k in range(16):
        I(f"v_mul_f32 v{ACC+k}, v{al}, v{ACC+k}")
    I(f"v_add_f32 v{t0}, v{P}, v{P+1}")
    I(f"v_add_f32 v{t1}, v{P+2}, v{P+3}")
    I(f"v_add_f32 v{t0}, v{t0}, v{t1}")
    I(f"v_fma_f32 v{VL}, v{VL}, v{al}, v{t0}")
    pa, pb = T2 + 8, T2 + 9
    I(f"v_cndmask_b32 v{pa}, v{P}, v{P+1}, s[{S_MHI}:{S_MHI+1}]")
    I(f"v_cndmask_b32 v{pb}, v{P+2}, v{P+3}, s[{S_MHI}:{S_MHI+1}]")
    I("s_waitcnt vmcnt(18)")
    for r in range(4):
        fma_chunk(ACC, VX + 4 * r, P + r, T2 + 10)
    fma_chunk(ACC + 8, VX + 16, pa, T2 + 10)
    fma_chunk(ACC + 8, VX + 20, pb, T2 + 10)
    load_v(VX, soffv)

e("L_loop:")
for u in range(4):
    I(f"s_cmp_eq_u32 s{S_IT}, 0")
    if u < 2:
        I(f"s_mov_b32 s{S_T0}, s{S_NA}")
    else:
        I(f"s_cselect_b32 s{S_T0}, s{S_NA}, {OOB}")
    I(f"s_cselect_b32 s{S_T1}, s{S_NV}, {OOB}")
    tile(KA if u % 2 == 0 else KB, VS[u], S_T0, S_T1)
    I(f"s_add_u32 s{S_NA}, s{S_NA}, {TSTRIDE}")
    I(f"s_add_u32 s{S_NV}, s{S_NV}, {TSTRIDE}")
I(f"s_add_u32 s{S_IT}, s{S_IT}, 1")
I(f"s_cmp_lt_u32 s{S_IT}, 2")
I("s_cbranch_scc1 L_loop")
stamp("loop_end")

I(f"s_lshl_b32 s{S_T0}, s{S_W}, 2")
I(f"v_add_u32 v{a1}, s{S_T0}, v{V_G}")
I(f"v_mul_u32_u24 v{a1}, 1040, v{a1}")
I(f"v_lshl_add_u32 v{a2}, v{V_I}, 5, v{a1}")
I(f"ds_write_b128 v{a2}, v[{ACC}:{ACC+3}] offset:{L_PART}")
I(f"ds_write_b128 v{a2}, v[{ACC+4}:{ACC+7}] offset:{L_PART+16}")
I(f"ds_write_b128 v{a2}, v[{ACC+8}:{ACC+11}] offset:{L_PART+512}")
I(f"ds_write_b128 v{a2}, v[{ACC+12}:{ACC+15}] offset:{L_PART+528}")
I(f"v_cmp_eq_u32 vcc, 0, v{V_I}")
I(f"s_and_saveexec_b64 s[{S_EX}:{S_EX+1}], vcc")
I(f"ds_write_b64 v{a1}, v[{VM}:{VM+1}] offset:{L_PART+1024}")
unmask()
I(f"s_cmp_eq_u32 s{S_W}, 2")
I("s_cbranch_scc1 L_gu_do")
I(f"s_cmp_lg_u32 s{S_W}, 3")
I("s_cbranch_scc1 L_gu_skip")
e("L_gu_do:")
I(f"v_subrev_u32 v{a1}, 128, v{V_T}")
I(f"v_lshlrev_b32 v{a1}, 2, v{a1}")
I(f"v_cmp_gt_u32 vcc, 224, v{V_T}")
I(f"v_mov_b32 v{a6}, {OOB}")
I(f"s_lshl_b32 s{S_T0}, s{S_H}, 12")
I(f"v_cndmask_b32 v{a2}, v{a6}, v{a1}, vcc")
for p in range(8):
    I(f"buffer_load_dword v{T2+p}, v{a2}, s[{SRD_WS}:{SRD_WS+3}], s{S_T0} offen offset:{QP_OFF+768} sc1")
    if p != 7:
        I(f"s_add_u32 s{S_T0}, s{S_T0}, {32*4096}")
I("s_waitcnt vmcnt(0)")
I(f"v_add_f32 v{a2}, v{T2}, v{T2+1}")
for p in range(2, 8):
    I(f"v_add_f32 v{a2}, v{a2}, v{T2+p}")
rbf(a2, a3)
I(f"s_and_saveexec_b64 s[{S_EX}:{S_EX+1}], vcc")
I(f"ds_write_b32 v{a1}, v{a2} offset:{L_GUR}")
unmask()
e("L_gu_skip:")
I(f"s_cmp_lg_u32 s{S_W}, 5")
I("s_cbranch_scc1 L_t3_done")
I(f"v_lshlrev_b32 v{a1}, 2, v{V_LANE}")
e("L_t3_poll:")
I(f"buffer_load_dword v{a2}, v{a1}, s[{SRD_DBG}:{SRD_DBG+3}], 0 offen offset:{CNT_OFF} sc1")
I("s_waitcnt vmcnt(0)")
I(f"v_cmp_gt_u32 vcc, 8, v{a2}")
I(f"v_cmp_gt_u32 s[{S_C1}:{S_C1+1}], 32, v{V_LANE}")
I("s_nop 4")
I(f"s_and_b64 s[{S_C1}:{S_C1+1}], s[{S_C1}:{S_C1+1}], vcc")
I("s_cbranch_scc0 L_t3_done")
I("s_sleep 4")
I("s_branch L_t3_poll")
e("L_t3_done:")
I("s_waitcnt vmcnt(0) lgkmcnt(0)")
I("s_barrier")
stamp("b3")
load_w()
I(f"s_cmp_ge_u32 s{S_W}, 3")
I("s_cbranch_scc1 L_t_gu")
I(f"v_mov_b32 v{a1}, 0")
for p in range(32):
    I(f"ds_read_b64 v[{BIG+2*p}:{BIG+2*p+1}], v{a1} offset:{L_PART + p*1040 + 1024}")
I("s_waitcnt lgkmcnt(0)")
I(f"v_max3_f32 v{a2}, v{BIG}, v{BIG+2}, v{BIG+4}")
for p in range(3, 31, 2):
    I(f"v_max3_f32 v{a2}, v{a2}, v{BIG+2*p}, v{BIG+2*p+2}")
I(f"v_max_f32 v{a2}, v{a2}, v{BIG+62}")
for p in range(32):
    I(f"v_sub_f32 v{BIG+2*p}, v{BIG+2*p}, v{a2}")
for p in range(32):
    I(f"v_exp_f32 v{BIG+2*p}, v{BIG+2*p}")
I("s_nop 0")
I(f"v_mul_f32 v{a3}, v{BIG}, v{BIG+1}")
for p in range(1, 32):
    I(f"v_fmac_f32 v{a3}, v{BIG+2*p}, v{BIG+2*p+1}")
I(f"v_lshlrev_b32 v{a1}, 2, v{V_T}")
I(f"s_cmp_eq_u32 s{S_W}, 2")
I("s_cbranch_scc1 L_t2_hi")
for p in range(32):
    I(f"ds_read_b32 v{BIG+2*p+1}, v{a1} offset:{L_PART + p*1040}")
I("s_waitcnt lgkmcnt(0)")
I(f"v_mul_f32 v{a4}, v{BIG}, v{BIG+1}")
for p in range(1, 32):
    I(f"v_fmac_f32 v{a4}, v{BIG+2*p}, v{BIG+2*p+1}")
I("s_branch L_t2_pub")
e("L_t2_hi:")
for p in range(32):
    I(f"ds_read_b32 v{BIG+2*p+1}, v{a1} offset:{L_PART + p*1040}")
for p in range(32):
    I(f"ds_read_b32 v{BIG+64+p}, v{a1} offset:{L_PART + p*1040 + 256}")
I("s_waitcnt lgkmcnt(0)")
for p in range(32):
    I(f"v_add_f32 v{BIG+2*p+1}, v{BIG+2*p+1}, v{BIG+64+p}")
I(f"v_mul_f32 v{a4}, v{BIG}, v{BIG+1}")
for p in range(1, 32):
    I(f"v_fmac_f32 v{a4}, v{BIG+2*p}, v{BIG+2*p+1}")
e("L_t2_pub:")
canon(a4, a5)
I(f"v_add_u32 v{a1}, s{S_WSB}, v{a1}")
I(f"buffer_store_dword v{a4}, v{a1}, s[{SRD_WS}:{SRD_WS+3}], 0 offen offset:{OP_OFF} sc1")
canon(a2, a5)
canon(a3, a5)
I(f"v_cmp_eq_u32 vcc, 0, v{V_T}")
I(f"v_mov_b32 v{a5}, 0")
I("s_nop 0")
I(f"v_cndmask_b32 v{a5}, v{a5}, v{a2}, vcc")
I(f"v_cmp_eq_u32 vcc, 1, v{V_T}")
I("s_nop 1")
I(f"v_cndmask_b32 v{a5}, v{a5}, v{a3}, vcc")
I(f"v_cmp_gt_u32 vcc, 4, v{V_T}")
I(f"v_mov_b32 v{a6}, {OOB}")
I("s_nop 0")
I(f"v_cndmask_b32 v{a1}, v{a6}, v{a1}, vcc")
I(f"buffer_store_dword v{a5}, v{a1}, s[{SRD_WS}:{SRD_WS+3}], 0 offen offset:{OP_OFF+768} sc1")
e("L_t_gu:")
I(f"v_mov_b32 v{a6}, {OOB}")
divmod_const(a2, a3, V_T, 49, 1338)
I(f"v_lshlrev_b32 v{a2}, 17, v{a2}")
I(f"v_lshl_add_u32 v{a2}, v{a3}, 4, v{a2}")
I(f"v_cmp_gt_u32 vcc, 392, v{V_T}")
I(f"s_lshl_b32 s{S_T0}, s{S_H}, 12")
I("s_nop 0")
I(f"v_cndmask_b32 v{a2}, v{a6}, v{a2}, vcc")
I(f"s_cmp_eq_u32 s{S_W}, 7")
I("s_cbranch_scc1 L_op_skip")
e("L_op_poll:")
I(f"buffer_load_dwordx4 v[{BIG}:{BIG+3}], v{a2}, s[{SRD_WS}:{SRD_WS+3}], s{S_T0} offen offset:{OP_OFF} sc1")
I("s_waitcnt vmcnt(0)")
poll_check([BIG, BIG + 1, BIG + 2, BIG + 3], "L_op_poll" if "--fullpoll" in sys.argv else "L_op_light", "L_op_done", a4)
e("L_op_light:")
I(f"v_lshlrev_b32 v{a5}, 17, v{V_LANE}")
I(f"v_cmp_gt_u32 vcc, 8, v{V_LANE}")
I("s_nop 1")
I(f"v_cndmask_b32 v{a5}, v{a6}, v{a5}, vcc")
e("L_op_light2:")
I(f"buffer_load_dword v{a4}, v{a5}, s[{SRD_WS}:{SRD_WS+3}], s{S_T0} offen offset:{OP_OFF+768} sc1")
I("s_waitcnt vmcnt(0)")
I(f"v_cmp_eq_u32 vcc, -1, v{a4}")
I("s_nop 4")
I("s_cbranch_vccz L_op_poll")
I("s_sleep 16")
I("s_branch L_op_light2")
e("L_op_done:")
I(f"v_lshlrev_b32 v{a1}, 4, v{V_T}")
mask_lt(392)
I(f"ds_write_b128 v{a1}, v[{BIG}:{BIG+3}] offset:{L_OPR}")
unmask()
e("L_op_skip:")
I("s_waitcnt lgkmcnt(0)")
I("s_barrier")
stamp("b4")
I(f"s_cmp_gt_u32 s{S_W}, 3")
I("s_cbranch_scc1 L_t5b")
I(f"s_cmp_eq_u32 s{S_W}, 3")
I("s_cbranch_scc1 L_t5h")
I(f"v_mov_b32 v{a1}, 0")
I(f"v_lshlrev_b32 v{a5}, 2, v{V_T}")
for p in range(8):
    I(f"ds_read_b64 v[{BIG+2*p}:{BIG+2*p+1}], v{a1} offset:{L_OPR + p*784 + 768}")
for p in range(8):
    I(f"ds_read_b32 v{BIG+16+p}, v{a5} offset:{L_OPR + p*784}")
I("s_waitcnt lgkmcnt(0)")
I(f"v_max3_f32 v{a2}, v{BIG}, v{BIG+2}, v{BIG+4}")
I(f"v_max3_f32 v{a2}, v{a2}, v{BIG+6}, v{BIG+8}")
I(f"v_max3_f32 v{a2}, v{a2}, v{BIG+10}, v{BIG+12}")
I(f"v_max_f32 v{a2}, v{a2}, v{BIG+14}")
for p in range(8):
    I(f"v_sub_f32 v{BIG+2*p}, v{BIG+2*p}, v{a2}")
for p in range(8):
    I(f"v_exp_f32 v{BIG+2*p}, v{BIG+2*p}")
I("s_nop 0")
I(f"v_mul_f32 v{a3}, v{BIG}, v{BIG+1}")
I(f"v_mul_f32 v{a4}, v{BIG}, v{BIG+16}")
for p in range(1, 8):
    I(f"v_fmac_f32 v{a3}, v{BIG+2*p}, v{BIG+2*p+1}")
    I(f"v_fmac_f32 v{a4}, v{BIG+2*p}, v{BIG+16+p}")
I(f"v_rcp_f32 v{a3}, v{a3}")
I("s_nop 0")
I(f"v_mul_f32 v{a4}, v{a4}, v{a3}")
rbf(a4, a6)
I(f"ds_write_b32 v{a5}, v{a4} offset:{L_OF}")
I("s_branch L_t5b")
e("L_t5h:")
I(f"v_lshlrev_b32 v{a5}, 2, v{V_LANE}")
I(f"v_min_u32 v{a5}, 188, v{a5}")
I(f"ds_read_b32 v{a2}, v{a5} offset:{L_GUR}")
I(f"ds_read_b32 v{a3}, v{a5} offset:{L_GUR + 192}")
I("s_waitcnt lgkmcnt(0)")
I(f"v_mul_f32 v{a2}, v{a2}, v{a3}")
rbf(a2, a6)
I(f"v_cmp_gt_u32 vcc, 48, v{V_LANE}")
I(f"s_and_saveexec_b64 s[{S_EX}:{S_EX+1}], vcc")
I(f"ds_write_b32 v{a5}, v{a2} offset:{L_OF+768}")
unmask()
e("L_t5b:")
I("s_waitcnt lgkmcnt(0)")
I("s_barrier")
stamp("b5")
I(f"v_min_u32 v{a1}, 47, v{V_OW+1}")
I(f"v_lshlrev_b32 v{a1}, 2, v{a1}")
for i in range(4):
    I(f"ds_read_b32 v{BIG+i}, v{a1} offset:{L_OF + 192*i}")
I(f"ds_read_b32 v{BIG+4}, v{a1} offset:{L_OF + 768}")
I("s_waitcnt vmcnt(0) lgkmcnt(0)")
for i in range(4):
    fma_chunk(BIG + 8, WR + 4 * i, BIG + i, a2, first=(i == 0))
fma_chunk(BIG + 16, WR + 16, BIG + 4, a2, first=True)
I(f"v_lshlrev_b32 v{a1}, 6, v{V_T}")
I(f"s_mov_b64 s[{S_EX}:{S_EX+1}], exec")
I(f"s_mov_b64 exec, s[{S_M480}:{S_M480+1}]")
for k in range(4):
    I(f"ds_write_b128 v{a1}, v[{BIG+8+4*k}:{BIG+11+4*k}] offset:{L_RED + 16*k}")
unmask()
I("s_waitcnt lgkmcnt(0)")
I("s_barrier")
stamp("b6")
I(f"s_cmp_ge_u32 s{S_W}, 3")
I("s_cbranch_scc1 L_t6")
I(f"v_min_u32 v{a1}, 159, v{V_T}")
I(f"v_cmp_lt_u32 vcc, 79, v{a1}")
I(f"v_subrev_u32 v{a2}, 80, v{a1}")
I("s_nop 0")
I(f"v_cndmask_b32 v{a2}, v{a1}, v{a2}, vcc")
I(f"v_cndmask_b32 v{a3}, 0, 32, vcc")
I(f"v_lshrrev_b32 v{a4}, 3, v{a2}")
I(f"v_and_b32 v{a2}, 7, v{a2}")
I(f"v_lshl_add_u32 v{a3}, v{a4}, 6, v{a3}")
I(f"v_lshl_add_u32 v{a3}, v{a2}, 2, v{a3}")
for sl in range(48):
    I(f"ds_read_b32 v{BIG+sl}, v{a3} offset:{L_RED + sl*640}")
I("s_waitcnt lgkmcnt(0)")
for k in range(0, 48, 4):
    I(f"v_add_f32 v{BIG+k}, v{BIG+k}, v{BIG+k+1}")
    I(f"v_add_f32 v{BIG+k+2}, v{BIG+k+2}, v{BIG+k+3}")
    I(f"v_add_f32 v{BIG+k}, v{BIG+k}, v{BIG+k+2}")
for k in range(4, 48, 4):
    I(f"v_add_f32 v{BIG}, v{BIG}, v{BIG+k}")
canon(BIG, a5)
I(f"v_lshl_add_u32 v{a1}, v{V_T}, 2, s{S_WSB}")
I(f"v_cmp_gt_u32 vcc, 160, v{V_T}")
I(f"v_mov_b32 v{a6}, {OOB}")
I("s_nop 0")
I(f"v_cndmask_b32 v{a1}, v{a6}, v{a1}, vcc")
I(f"buffer_store_dword v{BIG}, v{a1}, s[{SRD_WS}:{SRD_WS+3}], 0 offen offset:{AP_OFF} sc1")
e("L_t6:")
stamp("t6")
I(f"s_cmp_lg_u32 s{S_H}, 0")
I("s_cbranch_scc1 L_fin")
I(f"s_cmp_eq_u32 s{S_W}, 7")
I("s_cbranch_scc1 L_gate")
I(f"s_cmp_ge_u32 s{S_W}, 5")
I("s_cbranch_scc1 L_fin_bar")
divmod_const(a2, a3, V_T, 40, 1639)
I(f"v_lshlrev_b32 v{a2}, 14, v{a2}")
I(f"v_lshl_add_u32 v{a2}, v{a3}, 4, v{a2}")
I(f"s_lshl_b32 s{S_T0}, s{S_S}, 17")
I(f"s_add_u32 s{S_T1}, s{S_T0}, 4096")
I(f"s_add_u32 s{S_T2}, s{S_T0}, 8192")
I(f"s_add_u32 s{S_T3}, s{S_T0}, 12288")
e("L_ap_poll:")
for k, sr in enumerate((S_T0, S_T1, S_T2, S_T3)):
    I(f"buffer_load_dwordx4 v[{BIG+4*k}:{BIG+4*k+3}], v{a2}, s[{SRD_WS}:{SRD_WS+3}], s{sr} offen offset:{AP_OFF} sc1")
I("s_waitcnt vmcnt(0)")
poll_check(list(range(BIG, BIG + 16)), "L_ap_poll", "L_ap_done", a4)
e("L_ap_light:")
I(f"v_lshlrev_b32 v{a5}, 12, v{V_LANE}")
I(f"v_cmp_gt_u32 vcc, 32, v{V_LANE}")
I(f"v_mov_b32 v{a6}, {OOB}")
I("s_nop 0")
I(f"v_cndmask_b32 v{a5}, v{a6}, v{a5}, vcc")
e("L_ap_light2:")
I(f"buffer_load_dword v{a4}, v{a5}, s[{SRD_WS}:{SRD_WS+3}], s{S_T0} offen offset:{AP_OFF} sc1")
I("s_waitcnt vmcnt(0)")
I(f"v_cmp_eq_u32 vcc, -1, v{a4}")
I("s_nop 4")
I("s_cbranch_vccz L_ap_poll")
I("s_sleep 8")
I("s_branch L_ap_light2")
e("L_ap_done:")
for k in range(4):
    I(f"v_add_f32 v{BIG+k}, v{BIG+k}, v{BIG+4+k}")
    I(f"v_add_f32 v{BIG+8+k}, v{BIG+8+k}, v{BIG+12+k}")
for k in range(4):
    I(f"v_add_f32 v{BIG+k}, v{BIG+k}, v{BIG+8+k}")
I(f"v_lshlrev_b32 v{a1}, 4, v{V_T}")
I(f"ds_write_b128 v{a1}, v[{BIG}:{BIG+3}] offset:{L_FR}")
I("s_branch L_fin_bar")
e("L_gate:")
I(f"v_lshlrev_b32 v{a1}, 5, v{V_LANE}")
I(f"buffer_load_dwordx4 v[{BIG}:{BIG+3}], v{a1}, s[{SRD_X}:{SRD_X+3}], 0 offen")
I(f"buffer_load_dwordx4 v[{BIG+4}:{BIG+7}], v{a1}, s[{SRD_X}:{SRD_X+3}], 0 offen offset:16")
I(f"buffer_load_dwordx4 v[{BIG+8}:{BIG+11}], v{a1}, s[{SRD_GW}:{SRD_GW+3}], 0 offen")
I(f"buffer_load_dwordx4 v[{BIG+12}:{BIG+15}], v{a1}, s[{SRD_GW}:{SRD_GW+3}], 0 offen offset:16")
I(f"v_mov_b32 v{a2}, 0")
I("s_waitcnt vmcnt(0)")
for k in range(8):
    I(f"v_lshlrev_b32 v{a3}, 16, v{BIG+k}")
    I(f"v_lshlrev_b32 v{a4}, 16, v{BIG+8+k}")
    I(f"v_and_b32 v{a5}, 0xffff0000, v{BIG+k}")
    I(f"v_and_b32 v{a6}, 0xffff0000, v{BIG+8+k}")
    I(f"v_mul_f32 v{a3}, v{a3}, v{a4}")
    I(f"v_mul_f32 v{a5}, v{a5}, v{a6}")
    I(f"v_cvt_pk_bf16_f32 v{a3}, v{a3}, v{a5}")
    I(f"v_lshlrev_b32 v{a4}, 16, v{a3}")
    I(f"v_and_b32 v{a5}, 0xffff0000, v{a3}")
    I(f"v_add_f32 v{a2}, v{a2}, v{a4}")
    I(f"v_add_f32 v{a2}, v{a2}, v{a5}")
I(f"v_lshlrev_b32 v{a1}, 2, v{V_LANE}")
for m in (1, 2, 4, 8, 16, 32):
    I(f"v_xor_b32 v{a3}, {4*m}, v{a1}")
    I(f"ds_bpermute_b32 v{a4}, v{a3}, v{a2}")
    I("s_waitcnt lgkmcnt(0)")
    I(f"v_add_f32 v{a2}, v{a2}, v{a4}")
rbf(a2, a6)
I(f"v_mul_f32 v{a2}, s{S_LOG2E}, v{a2}")
I(f"v_sub_f32 v{a2}, 0, v{a2}")
I(f"v_exp_f32 v{a2}, v{a2}")
I("s_nop 0")
I(f"v_add_f32 v{a2}, 1.0, v{a2}")
I(f"v_rcp_f32 v{a2}, v{a2}")
I("s_nop 0")
rbf(a2, a6)
I(f"v_mov_b32 v{a1}, 0")
I(f"ds_write_b32 v{a1}, v{a2} offset:{L_GATE}")
e("L_fin_bar:")
I("s_waitcnt lgkmcnt(0)")
I("s_barrier")
I(f"s_cmp_ge_u32 s{S_W}, 2")
I("s_cbranch_scc1 L_fin")
I(f"v_min_u32 v{a1}, 79, v{V_T}")
I(f"v_lshlrev_b32 v{a1}, 2, v{a1}")
I(f"v_mov_b32 v{a5}, 0")
for hg in range(8):
    I(f"ds_read_b32 v{BIG+hg}, v{a1} offset:{L_FR + hg*640}")
    I(f"ds_read_b32 v{BIG+8+hg}, v{a1} offset:{L_FR + hg*640 + 320}")
I(f"ds_read_b32 v{a7}, v{a5} offset:{L_GATE}")
I("s_waitcnt lgkmcnt(0)")
I(f"v_add_f32 v{a2}, v{BIG}, v{BIG+1}")
I(f"v_add_f32 v{a3}, v{BIG+8}, v{BIG+9}")
for p in range(2, 8):
    I(f"v_add_f32 v{a2}, v{a2}, v{BIG+p}")
    I(f"v_add_f32 v{a3}, v{a3}, v{BIG+8+p}")
rbf(a2, a6)
rbf(a3, a6)
I(f"v_sub_f32 v{a4}, 1.0, v{a7}")
rbf(a4, a6)
I(f"v_mul_f32 v{a2}, v{a7}, v{a2}")
I(f"v_mul_f32 v{a3}, v{a4}, v{a3}")
rbf(a2, a6)
rbf(a3, a6)
I(f"v_add_f32 v{a2}, v{a2}, v{a3}")
I(f"v_cvt_pk_bf16_f32 v{a2}, v{a2}, v{a2}")
I(f"s_mul_i32 s{S_T0}, s{S_S}, 160")
I(f"v_lshlrev_b32 v{a1}, 1, v{V_T}")
I(f"v_cmp_gt_u32 vcc, 80, v{V_T}")
I(f"v_mov_b32 v{a6}, {OOB}")
I("s_nop 0")
I(f"v_cndmask_b32 v{a1}, v{a6}, v{a1}, vcc")
I(f"buffer_store_short v{a2}, v{a1}, s[{SRD_OUT}:{SRD_OUT+3}], s{S_T0} offen")
e("L_fin:")
stamp("end")
dump_stamps()
e("L_end:")
I("s_endpgm")
e('.section .rodata,"a"')
e(".p2align 6")
e(f".amdhsa_kernel {NAME}_kernel")
e("  .amdhsa_next_free_vgpr 256")
e("  .amdhsa_next_free_sgpr 102")
e("  .amdhsa_accum_offset 256")
e("  .amdhsa_group_segment_fixed_size 0")
e("  .amdhsa_kernarg_size 104")
e("  .amdhsa_user_sgpr_count 2")
e("  .amdhsa_user_sgpr_kernarg_segment_ptr 1")
e("  .amdhsa_system_sgpr_workgroup_id_x 1")
e(".end_amdhsa_kernel")

open(OUTFILE, "w").write("\n".join(out) + "\n")
print("wrote", OUTFILE, len(out), "lines")
```

```python
import sys, re

NAME = "gated_mix__gqa_block_cached__glu_gated_bilinear__decode"
HEADER = open("cdna_kernels/%s.s.ref" % NAME).read().split("; Override launch geometry")[0]

out = []
def e(s=""):
    out.append(s)
def I(s):
    m = re.search(r"buffer_\w+.*offset:(\d+)", s)
    assert not m or int(m.group(1)) <= 4095, s
    out.append("    " + s)

NT = " nt" if "--nt" in sys.argv else ""
STAMP = "--stamp" in sys.argv
DBGST = "--dbgstamp" in sys.argv
CNT_OFF = 128 if DBGST else 0
RR = "--rr" in sys.argv
PACE = 0
for a_ in sys.argv:
    if a_.startswith("--pace="): PACE = int(a_[7:])
WSTRIDE, TSTRIDE = (6144, 49152) if RR else (49152, 6144)
OUTFILE = "cdna_kernels/%s.s" % NAME
for a in sys.argv[1:]:
    if a.startswith("--out="):
        OUTFILE = a[6:]

KV_BYTES = 100663296
WQ_BYTES = 640 * 6144 * 2
WO_BYTES = 6144 * 640 * 2
WD_BYTES = 1536 * 640 * 2
WS_BYTES = 402653184
OOB = 0x7f000000
FLAG_OFF = 2688
INB_BASE = 0x200000
QP_OFF, OP_OFF, AP_OFF = 0, 1152, 2048
L_FLAG = 51200
L_QR = 0
L_GR = 15360
L_PART = 0
L_QB = 34816
L_OPR = 35328
L_GUR = 41600
L_OF = 44672
L_GATE = 45632
L_RED = 0
L_FR = 46080
L_KR = 51712
LDS_BYTES = L_KR + 16 * 6144

S_WG = 2
S_H, S_S, S_W = 3, 62, 63
SRD_K, SRD_V, SRD_WQ, SRD_WO, SRD_WD, SRD_WS, SRD_X, SRD_DBG = 4, 8, 12, 16, 20, 24, 28, 32
KA0 = 36
S_MHI = 64
S_T0, S_T1, S_T2, S_T3 = 66, 67, 68, 69
S_EX = 70
S_BASE = 72
S_NA, S_NB = 73, 74
S_IT = 75
S_SCALE, S_LOG2E = 76, 77
S_WSB = 78
S_M480 = 80
S_C1 = 82
SRD_GW, SRD_OUT = 84, 88
S_WGP, S_WUP = 92, 94
S_ST = 96
S_KL = 79
S_T4 = 100
S_NV = 101
S_INB = 98

V_T, V_LANE, V_G, V_I, V_OK, V_OV1, V_OV2 = 0, 1, 2, 3, 4, 5, 6
A = [7, 8, 9, 10, 11, 12, 13, 14, 15]
KA, VA, KB, VB = 16, 40, 64, 88
VS = [40, 64, 88, 204]
STG = 64
XR = 192
GU = 208
XG = 216
AQ = 220
AG = 228
V_SL, V_C, V_SL2, V_C2 = 236, 237, 238, 239
V_NEG = 240
QF = 112
ACC = 136
WR = 152
D = 172
P = 176
VM, VL = 180, 181
T2 = 182
V_OW = 200
V_KRD = 202
BIG = 16


def srd(dst, lo, hi, nbytes):
    I(f"s_mov_b32 s{dst}, s{lo}")
    I(f"s_and_b32 s{dst+1}, s{hi}, 0xffff")
    I(f"s_mov_b32 s{dst+2}, {nbytes}")
    I(f"s_mov_b32 s{dst+3}, 0x00020000")


def divmod_const(vq, vr, vsrc, d, magic):
    I(f"v_mul_u32_u24 v{vq}, {magic}, v{vsrc}")
    I(f"v_lshrrev_b32 v{vq}, 16, v{vq}")
    I(f"v_mul_u32_u24 v{vr}, {d}, v{vq}")
    I(f"v_sub_u32 v{vr}, v{vsrc}, v{vr}")


stamp_n = [0]
def stamp(tag):
    if not STAMP:
        return
    n = stamp_n[0]; stamp_n[0] += 1
    assert n < 13
    I(f"s_memrealtime s[{KA0+2*n}:{KA0+2*n+1}]")
    I("s_waitcnt lgkmcnt(0)")


def dump_stamps():
    if not STAMP:
        return
    if DBGST:
        I(f"s_cmp_lg_u32 s{S_WG}, 0")
        I("s_cbranch_scc1 L_end")
        I(f"s_cmp_lg_u32 s{S_W}, 0")
        I("s_cbranch_scc1 L_end")
        I(f"v_mov_b32 v252, 0")
        I(f"v_cmp_eq_u32 vcc, 0, v{V_LANE}")
        I(f"s_and_saveexec_b64 s[{S_ST}:{S_ST+1}], vcc")
        for n in range(stamp_n[0]):
            I(f"s_sub_u32 s{S_ST+2}, s{KA0+2*n}, s{KA0}")
            I(f"v_mov_b32 v250, s{S_ST+2}")
            I(f"buffer_store_dword v250, v252, s[{SRD_DBG}:{SRD_DBG+3}], 0 offen offset:{4*n}")
            I("s_nop 2")
        return
    I(f"s_lshl_b32 s{S_ST}, s{S_WG}, 3")
    I(f"s_add_u32 s{S_ST}, s{S_ST}, s{S_W}")
    I(f"s_lshl_b32 s{S_ST}, s{S_ST}, 8")
    I(f"s_add_u32 s{S_ST}, s{S_ST}, {0x1000000}")
    I(f"v_mov_b32 v252, s{S_ST}")
    I(f"v_cmp_eq_u32 vcc, 0, v{V_LANE}")
    I(f"s_and_saveexec_b64 s[{S_ST}:{S_ST+1}], vcc")
    for n in range(stamp_n[0]):
        I(f"v_mov_b32 v250, s{KA0+2*n}")
        I(f"v_mov_b32 v251, s{KA0+2*n+1}")
        I(f"buffer_store_dwordx2 v[250:251], v252, s[{SRD_WS}:{SRD_WS+3}], 0 offen offset:{8*n}")
        I("s_nop 2")


def fma_chunk(acc, data, scal, tmp, first=False):
    for j in range(4):
        I(f"v_lshlrev_b32 v{tmp}, 16, v{data+j}")
        I(f"v_and_b32 v{tmp+1}, 0xffff0000, v{data+j}")
        op = "v_mul_f32" if first else "v_fmac_f32"
        I(f"{op} v{acc+2*j}, v{scal}, v{tmp}")
        I(f"{op} v{acc+2*j+1}, v{scal}, v{tmp+1}")


def canon(v, tmp):
    I(f"v_cmp_eq_u32 vcc, -1, v{v}")
    I(f"v_mov_b32 v{tmp}, 0x7fc00000")
    I("s_nop 1")
    I(f"v_cndmask_b32 v{v}, v{v}, v{tmp}, vcc")


def rbf(v, tmp):
    I(f"v_cvt_pk_bf16_f32 v{tmp}, v{v}, v{v}")
    I(f"v_lshlrev_b32 v{v}, 16, v{tmp}")


def load_k(slot, soff):
    x = 0 if slot == KA else 1
    I(f"s_add_u32 m0, s{S_KL}, {x*6144}")
    I(f"s_add_u32 s{S_T4}, s{soff}, 4096")
    for j in range(4):
        I(f"buffer_load_dwordx4 v{V_OK}, s[{SRD_K}:{SRD_K+3}], s{soff} offen offset:{j*1024}{NT} lds")
    I(f"s_add_u32 m0, s{S_KL}, {x*6144 + 4096}")
    I("s_nop 0")
    for j in range(2):
        I(f"buffer_load_dwordx4 v{V_OK}, s[{SRD_K}:{SRD_K+3}], s{S_T4} offen offset:{j*1024}{NT} lds")


def load_v(slot, soff):
    for r in range(4):
        I(f"buffer_load_dwordx4 v[{slot+4*r}:{slot+4*r+3}], v{V_OV1}, s[{SRD_V}:{SRD_V+3}], s{soff} offen offset:{r*384}{NT}")
    for r in range(2):
        I(f"buffer_load_dwordx4 v[{slot+16+4*r}:{slot+16+4*r+3}], v{V_OV2}, s[{SRD_V}:{SRD_V+3}], s{soff} offen offset:{r*768}{NT}")


def poll_check(regs, lab_retry, lab_done, tmp):
    cur = regs[0]
    rest = list(regs[1:])
    while rest:
        if len(rest) >= 2:
            I(f"v_max3_u32 v{tmp}, v{cur}, v{rest[0]}, v{rest[1]}")
            rest = rest[2:]
        else:
            I(f"v_max_u32 v{tmp}, v{cur}, v{rest[0]}")
            rest = rest[1:]
        cur = tmp
    I(f"v_cmp_eq_u32 vcc, -1, v{cur}")
    I("s_nop 4")
    I(f"s_cbranch_vccz {lab_done}")
    I("s_sleep 2")
    I(f"s_branch {lab_retry}")


def mask_lt(n, save=S_EX):
    I(f"v_cmp_gt_u32 vcc, {n}, v{V_T}")
    I(f"s_and_saveexec_b64 s[{save}:{save+1}], vcc")


def unmask(save=S_EX):
    I(f"s_mov_b64 exec, s[{save}:{save+1}]")


e(HEADER.rstrip("\n"))
e("; Override launch geometry by editing the next line (default: block=256,")
e(f"; @launch grid=(256,1,1) block=(512,1,1) lds={LDS_BYTES}")
e('.amdgcn_target "amdgcn-amd-amdhsa--gfx950"')
e(".text")
e(f".globl {NAME}_kernel")
e(".p2align 8")
e(f".type {NAME}_kernel,@function")
e(f"{NAME}_kernel:")
I(f"s_cmp_ge_u32 s{S_WG}, 256")
I("s_cbranch_scc1 L_end")
I(f"s_load_dwordx16 s[{KA0}:{KA0+15}], s[0:1], 0")
I(f"s_load_dwordx8 s[{KA0+16}:{KA0+23}], s[0:1], 64")
I(f"s_load_dwordx2 s[{KA0+24}:{KA0+25}], s[0:1], 96")
a0, a1, a2, a3, a4, a5, a6, a7, a8 = A
I(f"v_and_b32 v{V_LANE}, 63, v{V_T}")
I(f"v_lshrrev_b32 v{a0}, 6, v{V_T}")
I(f"v_lshrrev_b32 v{V_G}, 4, v{V_LANE}")
I(f"v_and_b32 v{V_I}, 15, v{V_LANE}")
I(f"v_readfirstlane_b32 s{S_W}, v{a0}")
if "--shift" in sys.argv:
    I(f"s_xor_b32 s{S_WG}, s{S_WG}, 1")
I(f"s_and_b32 s{S_H}, s{S_WG}, 31")
I(f"s_lshr_b32 s{S_S}, s{S_WG}, 5")
I(f"s_lshl_b32 s{S_WSB}, s{S_WG}, 12")
I(f"s_lshl_b32 s{S_INB}, s{S_WG}, 14")
I(f"s_add_u32 s{S_INB}, s{S_INB}, {INB_BASE}")
I(f"v_mul_u32_u24 v{V_KRD}, 384, v{V_I}")
I(f"v_lshl_add_u32 v{V_KRD}, v{V_G}, 4, v{V_KRD}")
I(f"v_lshlrev_b32 v{V_OK}, 4, v{V_LANE}")
I(f"s_mul_i32 s{S_KL}, s{S_W}, 12288")
I(f"s_add_u32 s{S_KL}, s{S_KL}, {L_KR}")
I(f"v_add_u32 v{V_KRD}, s{S_KL}, v{V_KRD}")
I(f"v_mul_u32_u24 v{a1}, 1536, v{V_G}")
I(f"v_lshl_add_u32 v{V_OV1}, v{V_I}, 4, v{a1}")
I(f"v_lshrrev_b32 v{a2}, 3, v{V_I}")
I(f"v_mul_u32_u24 v{a2}, 384, v{a2}")
I(f"v_and_b32 v{a3}, 7, v{V_I}")
I(f"v_lshlrev_b32 v{a3}, 4, v{a3}")
I(f"v_add3_u32 v{V_OV2}, v{a1}, v{a2}, v{a3}")
I(f"v_add_u32 v{V_OV2}, 256, v{V_OV2}")
I(f"v_cmp_lt_u32 s[{S_MHI}:{S_MHI+1}], 7, v{V_I}")
I(f"v_cmp_gt_u32 vcc, 480, v{V_T}")
I(f"s_mov_b64 s[{S_M480}:{S_M480+1}], vcc")
I(f"s_mov_b32 s{S_SCALE}, 0x3d93cd3a")
I(f"s_mov_b32 s{S_LOG2E}, 0x3fb8aa3b")
divmod_const(V_SL, V_C, V_T, 24, 2731)
divmod_const(V_SL2, V_C2, V_T, 12, 5462)
for k in range(4):
    I(f"v_mov_b32 v{V_NEG+k}, -1")
I("s_waitcnt lgkmcnt(0)")
kp = lambda n: (KA0 + 2 * n, KA0 + 2 * n + 1)
srd(SRD_WS, *kp(12), WS_BYTES)
srd(SRD_X, *kp(0), 1280)
srd(SRD_WQ, *kp(3), WQ_BYTES)
srd(SRD_K, *kp(1), KV_BYTES)
srd(SRD_V, *kp(2), KV_BYTES)
srd(SRD_WO, *kp(4), WO_BYTES)
srd(SRD_WD, *kp(8), WD_BYTES)
srd(SRD_GW, *kp(9), 1280)
srd(SRD_OUT, *kp(10), 1280)
srd(SRD_DBG, *kp(11), 256)
I(f"s_mov_b64 s[{S_WGP}:{S_WGP+1}], s[{kp(6)[0]}:{kp(6)[1]}]")
I(f"s_mov_b64 s[{S_WUP}:{S_WUP+1}], s[{kp(7)[0]}:{kp(7)[1]}]")
stamp("start")
I(f"s_mul_i32 s{S_BASE}, s{S_H}, 3145728")
I(f"s_mul_i32 s{S_T0}, s{S_S}, 393216")
I(f"s_add_u32 s{S_BASE}, s{S_BASE}, s{S_T0}")
I(f"s_mul_i32 s{S_T0}, s{S_W}, {WSTRIDE}")
I(f"s_add_u32 s{S_BASE}, s{S_BASE}, s{S_T0}")

if "--codepf" in sys.argv:
    I(f"s_cmp_lg_u32 s{S_W}, 7")
    I("s_cbranch_scc1 L_nopf")
    I(f"s_getpc_b64 s[{S_C1}:{S_C1+1}]")
    I(f"v_lshlrev_b32 v{a0}, 4, v{V_LANE}")
    for k in range(11):
        if k % 4 == 0 and k:
            I(f"v_add_u32 v{a0}, 4096, v{a0}")
        I(f"global_load_dwordx4 v[{112+4*k}:{115+4*k}], v{a0}, s[{S_C1}:{S_C1+1}] offset:{(k%4)*1024}")
    e("L_nopf:")
I(f"v_mov_b32 v{a8}, {OOB}")
I(f"v_mov_b32 v{a2}, 0")
I(f"v_mov_b32 v{a3}, 0")
I(f"s_cmp_lg_u32 s{S_W}, 7")
I("s_cbranch_scc1 L_noclr")
I(f"v_cmp_gt_u32 vcc, 33, v{V_LANE}")
I(f"v_add_u32 v{a0}, 1024, v{V_OK}")
I(f"v_add_u32 v{a1}, 4096, v{V_OK}")
I(f"v_cndmask_b32 v{a0}, v{a8}, v{a0}, vcc")
I(f"buffer_store_dwordx4 v[{V_NEG}:{V_NEG+3}], v{V_OK}, s[{SRD_WS}:{SRD_WS+3}], s{S_WSB} offen offset:{OP_OFF} sc1")
I(f"buffer_store_dwordx4 v[{V_NEG}:{V_NEG+3}], v{a0}, s[{SRD_WS}:{SRD_WS+3}], s{S_WSB} offen offset:{OP_OFF} sc1")
for k in range(4):
    I(f"buffer_store_dwordx4 v[{V_NEG}:{V_NEG+3}], v{V_OK}, s[{SRD_WS}:{SRD_WS+3}], s{S_INB} offen offset:{1024*k} sc1")
for k in range(4):
    I(f"buffer_store_dwordx4 v[{V_NEG}:{V_NEG+3}], v{a1}, s[{SRD_WS}:{SRD_WS+3}], s{S_INB} offen offset:{1024*k} sc1")
I(f"v_add_u32 v{a1}, 4096, v{a1}")
I(f"buffer_store_dwordx4 v[{V_NEG}:{V_NEG+3}], v{a1}, s[{SRD_WS}:{SRD_WS+3}], s{S_INB} offen sc1")
e("L_noclr:")
I(f"v_mov_b32 v{a1}, {L_FLAG}")
I(f"ds_write_b64 v{a1}, v[{a2}:{a3}]") if a2 % 2 == 0 else (I(f"ds_write_b32 v{a1}, v{a2}"), I(f"ds_write_b32 v{a1}, v{a2} offset:4"))
I(f"s_mul_i32 s{S_T0}, s{S_S}, 160")
I(f"v_lshlrev_b32 v{a1}, 3, v{V_SL}")
I(f"v_cndmask_b32 v{a1}, v{a8}, v{a1}, s[{S_M480}:{S_M480+1}]")
I(f"buffer_load_dwordx2 v[{XR}:{XR+1}], v{a1}, s[{SRD_X}:{SRD_X+3}], s{S_T0} offen")
I(f"v_lshlrev_b32 v{a2}, 2, v{V_SL2}")
I(f"v_cndmask_b32 v{a2}, v{a8}, v{a2}, s[{S_M480}:{S_M480+1}]")
I(f"buffer_load_dword v{XG}, v{a2}, s[{SRD_X}:{SRD_X+3}], s{S_T0} offen")
I(f"v_mul_u32_u24 v{a0}, {4*12288 // 16}, v{V_SL}")
I(f"v_add_u32 v{a0}, v{a0}, v{V_C}")
I(f"v_lshlrev_b32 v{a0}, 4, v{a0}")
I(f"v_cndmask_b32 v{a0}, v{a8}, v{a0}, s[{S_M480}:{S_M480+1}]")
I(f"s_mul_i32 s{S_T0}, s{S_H}, 384")
I(f"s_mul_i32 s{S_T1}, s{S_S}, {80*12288}")
I(f"s_add_u32 s{S_T0}, s{S_T0}, s{S_T1}")
for k in range(4):
    I(f"buffer_load_dwordx4 v[{STG+4*k}:{STG+4*k+3}], v{a0}, s[{SRD_WQ}:{SRD_WQ+3}], s{S_T0} offen")
    if k != 3:
        I(f"s_add_u32 s{S_T0}, s{S_T0}, 12288")
I(f"v_min_u32 v{a3}, 39, v{V_SL2}")
I(f"v_cmp_gt_u32 vcc, 6, v{V_C2}")
I(f"v_subrev_u32 v{a4}, 6, v{V_C2}")
I(f"v_mov_b32 v{a5}, s{S_WUP}")
I(f"v_mov_b32 v{a6}, s{S_WUP+1}")
I(f"v_cndmask_b32 v{a4}, v{a4}, v{V_C2}, vcc")
I(f"v_mov_b32 v{a0}, s{S_WGP}")
I(f"v_mov_b32 v{a1}, s{S_WGP+1}")
I(f"v_cndmask_b32 v{a5}, v{a5}, v{a0}, vcc")
I(f"v_cndmask_b32 v{a6}, v{a6}, v{a1}, vcc")
I(f"s_mul_i32 s{S_T0}, s{S_S}, {80*3072}")
I(f"s_mul_i32 s{S_T1}, s{S_H}, 96")
I(f"s_add_u32 s{S_T0}, s{S_T0}, s{S_T1}")
I(f"v_mul_u32_u24 v{a3}, 6144, v{a3}")
I(f"v_lshl_add_u32 v{a3}, v{a4}, 4, v{a3}")
I(f"v_add_u32 v{a3}, s{S_T0}, v{a3}")
I(f"v_add_co_u32 v244, vcc, v{a5}, v{a3}")
I("s_nop 1")
I(f"v_addc_co_u32 v245, vcc, 0, v{a6}, vcc")
I(f"global_load_dwordx4 v[{GU}:{GU+3}], v[244:245], off")
I(f"global_load_dwordx4 v[{GU+4}:{GU+7}], v[244:245], off offset:3072")
divmod_const(V_OW + 1, a3, V_T, 10, 6554)
I(f"v_mul_u32_u24 v{V_OW}, 1280, v{V_OW+1}")
I(f"v_lshl_add_u32 v{V_OW}, v{a3}, 4, v{V_OW}")
I(f"v_cndmask_b32 v{V_OW}, v{a8}, v{V_OW}, s[{S_M480}:{S_M480+1}]")
I(f"s_add_u32 s{S_NA}, s{S_BASE}, {TSTRIDE}")
I(f"s_add_u32 s{S_NB}, s{S_BASE}, {2*TSTRIDE}")
I(f"s_add_u32 s{S_NV}, s{S_BASE}, {3*TSTRIDE}")
def load_w():
    I(f"s_mul_i32 s{S_T0}, s{S_H}, {192*1280}")
    I(f"s_mul_i32 s{S_T1}, s{S_S}, 160")
    I(f"s_add_u32 s{S_T0}, s{S_T0}, s{S_T1}")
    for i in range(4):
        I(f"buffer_load_dwordx4 v[{WR+4*i}:{WR+4*i+3}], v{V_OW}, s[{SRD_WO}:{SRD_WO+3}], s{S_T0} offen")
        if i != 3:
            I(f"s_add_u32 s{S_T0}, s{S_T0}, {48*1280}")
    I(f"s_mul_i32 s{S_T0}, s{S_H}, {48*1280}")
    I(f"s_add_u32 s{S_T0}, s{S_T0}, s{S_T1}")
    I(f"buffer_load_dwordx4 v[{WR+16}:{WR+19}], v{V_OW}, s[{SRD_WD}:{SRD_WD+3}], s{S_T0} offen")
I(f"s_cmp_lg_u32 s{S_W}, 7")
I("s_cbranch_scc1 L_noarr")
I("s_waitcnt vmcnt(8)")
I(f"s_lshl_b32 s{S_T1}, s{S_H}, 2")
I(f"v_mov_b32 v{a4}, s{S_T1}")
I(f"v_mov_b32 v{a3}, 1")
I(f"v_mov_b32 v{a2}, 1")
I(f"v_lshlrev_b32 v{a5}, 17, v{V_LANE}")
I(f"s_mov_b64 s[{S_EX}:{S_EX+1}], exec")
I(f"s_mov_b64 exec, 1")
I(f"buffer_atomic_add v{a3}, v{a4}, s[{SRD_DBG}:{SRD_DBG+3}], 0 offen offset:{CNT_OFF} sc0 sc1")
I("s_waitcnt vmcnt(0)")
I(f"v_readfirstlane_b32 s{S_T0}, v{a3}")
I(f"s_cmp_lg_u32 s{S_T0}, 7")
I("s_cbranch_scc1 L_arr2")
I(f"s_mov_b64 exec, 0xff")
I(f"s_lshl_b32 s{S_T0}, s{S_H}, 12")
I(f"buffer_store_dword v{a2}, v{a5}, s[{SRD_WS}:{SRD_WS+3}], s{S_T0} offen offset:{FLAG_OFF} sc1")
e("L_arr2:")
unmask()
e("L_noarr:")
I("s_waitcnt vmcnt(0)")
I(f"s_cmp_lt_u32 s{S_W}, 5")
I("s_cbranch_scc1 L_nok0")
load_k(KA, S_BASE)
e("L_nok0:")
for k in range(4):
    xs = XR + k // 2
    if k % 2 == 0:
        I(f"v_lshlrev_b32 v{a1}, 16, v{xs}")
    else:
        I(f"v_and_b32 v{a1}, 0xffff0000, v{xs}")
    fma_chunk(AQ, STG + 4 * k, a1, a2, first=(k == 0))
I(f"v_lshlrev_b32 v{a1}, 16, v{XG}")
fma_chunk(AG, GU, a1, a2, first=True)
I(f"v_and_b32 v{a1}, 0xffff0000, v{XG}")
fma_chunk(AG, GU + 4, a1, a2)
I(f"v_mul_u32_u24 v{a1}, 768, v{V_SL}")
I(f"v_lshl_add_u32 v{a1}, v{V_C}, 5, v{a1}")
I(f"v_mul_u32_u24 v{a2}, 384, v{V_SL2}")
I(f"v_lshl_add_u32 v{a2}, v{V_C2}, 5, v{a2}")
I(f"s_mov_b64 s[{S_EX}:{S_EX+1}], exec")
I(f"s_mov_b64 exec, s[{S_M480}:{S_M480+1}]")
I(f"ds_write_b128 v{a1}, v[{AQ}:{AQ+3}] offset:{L_QR}")
I(f"ds_write_b128 v{a1}, v[{AQ+4}:{AQ+7}] offset:{L_QR+16}")
I(f"ds_write_b128 v{a2}, v[{AG}:{AG+3}] offset:{L_GR}")
I(f"ds_write_b128 v{a2}, v[{AG+4}:{AG+7}] offset:{L_GR+16}")
unmask()
I("s_waitcnt lgkmcnt(0)")
I("s_barrier")
stamp("b1")
I(f"s_cmp_lt_u32 s{S_W}, 5")
I("s_cbranch_scc1 L_a_wave")
I("s_branch L_a_fill")
e("L_a_wave:")
qregs = [T2 + sl if sl < 18 else 244 + sl - 18 for sl in range(20)]
I(f"v_lshlrev_b32 v{a1}, 2, v{V_T}")
I(f"s_cmp_ge_u32 s{S_W}, 3")
I("s_cbranch_scc1 L_a_notq")
for sl in range(20):
    I(f"ds_read_b32 v{qregs[sl]}, v{a1} offset:{L_QR + sl*768}")
I("s_waitcnt lgkmcnt(0)")
I(f"v_add_f32 v{a2}, v{qregs[0]}, v{qregs[1]}")
for r in qregs[2:]:
    I(f"v_add_f32 v{a2}, v{a2}, v{r}")
I("s_branch L_a_pub")
e("L_a_notq:")
I(f"v_subrev_u32 v{a3}, 768, v{a1}")
I(f"v_min_u32 v{a3}, 380, v{a3}")
for half in range(2):
    for sl in range(20):
        I(f"ds_read_b32 v{qregs[sl]}, v{a3} offset:{L_GR + (half*20+sl)*384}")
    I("s_waitcnt lgkmcnt(0)")
    if half == 0:
        I(f"v_add_f32 v{a2}, v{qregs[0]}, v{qregs[1]}")
        rest = qregs[2:]
    else:
        rest = qregs
    for r in rest:
        I(f"v_add_f32 v{a2}, v{a2}, v{r}")
e("L_a_pub:")
canon(a2, a4)
I(f"v_cmp_gt_u32 vcc, 288, v{V_T}")
I(f"v_mov_b32 v{a4}, s{S_WSB}")
I(f"s_mul_i32 s{S_T1}, s{S_S}, 1152")
I(f"v_cndmask_b32 v{a5}, v{a8}, v{a1}, vcc")
I(f"s_lshl_b32 s{S_T0}, s{S_H}, 14")
I(f"s_add_u32 s{S_T0}, s{S_T0}, s{S_T1}")
I(f"s_add_u32 s{S_T0}, s{S_T0}, {INB_BASE}")
e("L_a_fpoll:")
I(f"buffer_load_dword v{a3}, v{a4}, s[{SRD_WS}:{SRD_WS+3}], 0 offen offset:{FLAG_OFF} sc1")
I("s_waitcnt vmcnt(0)")
I(f"v_readfirstlane_b32 s{S_T1}, v{a3}")
I(f"s_cmp_eq_u32 s{S_T1}, 1")
I("s_cbranch_scc1 L_a_fok")
I("s_sleep 2")
I("s_branch L_a_fpoll")
e("L_a_fok:")
stamp("ack")
for p in range(8):
    I(f"buffer_store_dword v{a2}, v{a5}, s[{SRD_WS}:{SRD_WS+3}], s{S_T0} offen sc1")
    if p != 7:
        I(f"s_add_u32 s{S_T0}, s{S_T0}, {32*16384}")
I(f"s_cmp_eq_u32 s{S_W}, 0")
I("s_cbranch_scc1 L_a_w0")
load_k(KA, S_BASE)
I("s_branch L_a_fill2")
e("L_a_w0:")
I(f"v_cmp_gt_u32 vcc, 48, v{V_LANE}")
I(f"s_add_u32 s{S_T1}, s{S_INB}, 4608")
I("s_nop 0")
I(f"v_cndmask_b32 v{a5}, v{a8}, v{V_OK}, vcc")
e("L_a_gpoll:")
for p in range(8):
    I(f"buffer_load_dwordx4 v[{112+4*p}:{115+4*p}], v{a5}, s[{SRD_WS}:{SRD_WS+3}], s{S_INB if p < 4 else S_T1} offen offset:{(p%4)*1152} sc1")
I("s_waitcnt vmcnt(0)")
poll_check(list(range(112, 144)), "L_a_gpoll", "L_a_gok", a4)
e("L_a_gok:")
stamp("flag")
load_k(KA, S_BASE)
load_v(VS[0], S_BASE)
for k in range(4):
    I(f"v_add_f32 v{112+k}, v{112+k}, v{116+k}")
for p in range(2, 8):
    for k in range(4):
        I(f"v_add_f32 v{112+k}, v{112+k}, v{112+4*p+k}")
I(f"v_cvt_pk_bf16_f32 v116, v112, v113")
I(f"v_cvt_pk_bf16_f32 v117, v114, v115")
I(f"v_lshlrev_b32 v{a3}, 3, v{V_LANE}")
I(f"v_cmp_gt_u32 vcc, 48, v{V_LANE}")
I(f"s_and_saveexec_b64 s[{S_EX}:{S_EX+1}], vcc")
I(f"ds_write_b64 v{a3}, v[116:117] offset:{L_QB}")
unmask()
I(f"v_mov_b32 v{a1}, {L_FLAG}")
I(f"v_mov_b32 v{a2}, 1")
I("s_waitcnt lgkmcnt(0)")
I(f"ds_write_b32 v{a1}, v{a2} offset:4")
load_k(KB, S_NA)
load_v(VS[1], S_NA)
load_v(VS[2], S_NB)
load_v(VS[3], S_NV)
I("s_branch L_a_done")
e("L_a_fill:")
e("L_a_fill2:")
I(f"s_waitcnt vmcnt({PACE})")
load_v(VS[0], S_BASE)
I(f"s_waitcnt vmcnt({PACE})")
load_k(KB, S_NA)
I(f"s_waitcnt vmcnt({PACE})")
load_v(VS[1], S_NA)
I(f"s_waitcnt vmcnt({PACE})")
load_v(VS[2], S_NB)
I(f"s_waitcnt vmcnt({PACE})")
load_v(VS[3], S_NV)
I(f"v_mov_b32 v{a1}, {L_FLAG}")
e("L_a_lspin:")
I(f"ds_read_b32 v{a3}, v{a1} offset:4")
I("s_waitcnt lgkmcnt(0)")
I(f"v_readfirstlane_b32 s{S_T0}, v{a3}")
I(f"s_cmp_lg_u32 s{S_T0}, 0")
I("s_cbranch_scc1 L_a_done")
I("s_sleep 1")
I("s_branch L_a_lspin")
e("L_a_done:")
I("s_waitcnt lgkmcnt(0)")
stamp("b2")
I(f"v_lshlrev_b32 v{a1}, 4, v{V_G}")
for j in range(6):
    I(f"ds_read_b128 v[{QF+4*j}:{QF+4*j+3}], v{a1} offset:{L_QB + 64*j}")
for k in range(16):
    I(f"v_mov_b32 v{ACC+k}, 0")
I(f"v_mov_b32 v{VM}, 0xff7fffff")
I(f"v_mov_b32 v{VL}, 0")
I(f"s_mov_b32 s{S_IT}, 0")
I(f"s_add_u32 s{S_NA}, s{S_BASE}, {2*TSTRIDE}")
I(f"s_add_u32 s{S_NV}, s{S_BASE}, {4*TSTRIDE}")
I("s_waitcnt lgkmcnt(0)")

def tile(KX, VX, soff, soffv):
    I("s_waitcnt vmcnt(18)")
    x = 0 if KX == KA else 1
    for j in range(6):
        I(f"ds_read_b128 v[{KA+4*j}:{KA+4*j+3}], v{V_KRD} offset:{x*6144 + j*64}")
    I("s_waitcnt lgkmcnt(0)")
    load_k(KX, soff)
    for j in range(6):
        c = "0" if j == 0 else f"v[{D}:{D+3}]"
        I(f"v_mfma_f32_16x16x32_bf16 v[{D}:{D+3}], v[{KA+4*j}:{KA+4*j+3}], v[{QF+4*j}:{QF+4*j+3}], {c}")
    I("s_nop 7")
    t0, t1 = T2, T2 + 1
    s = [T2 + 2, T2 + 3, T2 + 4, T2 + 5]
    I(f"v_cvt_pk_bf16_f32 v{t0}, v{D}, v{D+1}")
    I(f"v_cvt_pk_bf16_f32 v{t1}, v{D+2}, v{D+3}")
    I(f"v_lshlrev_b32 v{s[0]}, 16, v{t0}")
    I(f"v_and_b32 v{s[1]}, 0xffff0000, v{t0}")
    I(f"v_lshlrev_b32 v{s[2]}, 16, v{t1}")
    I(f"v_and_b32 v{s[3]}, 0xffff0000, v{t1}")
    for r in range(4):
        I(f"v_mul_f32 v{s[r]}, s{S_SCALE}, v{s[r]}")
    I(f"v_cvt_pk_bf16_f32 v{t0}, v{s[0]}, v{s[1]}")
    I(f"v_cvt_pk_bf16_f32 v{t1}, v{s[2]}, v{s[3]}")
    I(f"v_lshlrev_b32 v{s[0]}, 16, v{t0}")
    I(f"v_and_b32 v{s[1]}, 0xffff0000, v{t0}")
    I(f"v_lshlrev_b32 v{s[2]}, 16, v{t1}")
    I(f"v_and_b32 v{s[3]}, 0xffff0000, v{t1}")
    for r in range(4):
        I(f"v_mul_f32 v{s[r]}, s{S_LOG2E}, v{s[r]}")
    mn, al = T2 + 6, T2 + 7
    I(f"v_max3_f32 v{mn}, v{s[0]}, v{s[1]}, v{s[2]}")
    I(f"v_max3_f32 v{mn}, v{mn}, v{s[3]}, v{VM}")
    I(f"v_sub_f32 v{al}, v{VM}, v{mn}")
    for r in range(4):
        I(f"v_sub_f32 v{P+r}, v{s[r]}, v{mn}")
    I(f"v_exp_f32 v{al}, v{al}")
    for r in range(4):
        I(f"v_exp_f32 v{P+r}, v{P+r}")
    I(f"v_mov_b32 v{VM}, v{mn}")
    for k in range(16):
        I(f"v_mul_f32 v{ACC+k}, v{al}, v{ACC+k}")
    I(f"v_add_f32 v{t0}, v{P}, v{P+1}")
    I(f"v_add_f32 v{t1}, v{P+2}, v{P+3}")
    I(f"v_add_f32 v{t0}, v{t0}, v{t1}")
    I(f"v_fma_f32 v{VL}, v{VL}, v{al}, v{t0}")
    pa, pb = T2 + 8, T2 + 9
    I(f"v_cndmask_b32 v{pa}, v{P}, v{P+1}, s[{S_MHI}:{S_MHI+1}]")
    I(f"v_cndmask_b32 v{pb}, v{P+2}, v{P+3}, s[{S_MHI}:{S_MHI+1}]")
    I("s_waitcnt vmcnt(18)")
    for r in range(4):
        fma_chunk(ACC, VX + 4 * r, P + r, T2 + 10)
    fma_chunk(ACC + 8, VX + 16, pa, T2 + 10)
    fma_chunk(ACC + 8, VX + 20, pb, T2 + 10)
    load_v(VX, soffv)

e("L_loop:")
for u in range(4):
    I(f"s_cmp_eq_u32 s{S_IT}, 0")
    if u < 2:
        I(f"s_mov_b32 s{S_T0}, s{S_NA}")
    else:
        I(f"s_cselect_b32 s{S_T0}, s{S_NA}, {OOB}")
    I(f"s_cselect_b32 s{S_T1}, s{S_NV}, {OOB}")
    tile(KA if u % 2 == 0 else KB, VS[u], S_T0, S_T1)
    I(f"s_add_u32 s{S_NA}, s{S_NA}, {TSTRIDE}")
    I(f"s_add_u32 s{S_NV}, s{S_NV}, {TSTRIDE}")
I(f"s_add_u32 s{S_IT}, s{S_IT}, 1")
I(f"s_cmp_lt_u32 s{S_IT}, 2")
I("s_cbranch_scc1 L_loop")
stamp("loop_end")

I(f"s_lshl_b32 s{S_T0}, s{S_W}, 2")
I(f"v_add_u32 v{a1}, s{S_T0}, v{V_G}")
I(f"v_mul_u32_u24 v{a1}, 1040, v{a1}")
I(f"v_lshl_add_u32 v{a2}, v{V_I}, 5, v{a1}")
I(f"ds_write_b128 v{a2}, v[{ACC}:{ACC+3}] offset:{L_PART}")
I(f"ds_write_b128 v{a2}, v[{ACC+4}:{ACC+7}] offset:{L_PART+16}")
I(f"ds_write_b128 v{a2}, v[{ACC+8}:{ACC+11}] offset:{L_PART+512}")
I(f"ds_write_b128 v{a2}, v[{ACC+12}:{ACC+15}] offset:{L_PART+528}")
I(f"v_cmp_eq_u32 vcc, 0, v{V_I}")
I(f"s_and_saveexec_b64 s[{S_EX}:{S_EX+1}], vcc")
I(f"ds_write_b64 v{a1}, v[{VM}:{VM+1}] offset:{L_PART+1024}")
unmask()
I(f"s_cmp_eq_u32 s{S_W}, 2")
I("s_cbranch_scc1 L_gu_do")
I(f"s_cmp_lg_u32 s{S_W}, 3")
I("s_cbranch_scc1 L_gu_skip")
e("L_gu_do:")
I(f"v_subrev_u32 v{a1}, 128, v{V_T}")
I(f"v_lshlrev_b32 v{a1}, 2, v{a1}")
I(f"v_cmp_gt_u32 vcc, 224, v{V_T}")
I(f"v_mov_b32 v{a6}, {OOB}")
I(f"s_add_u32 s{S_T0}, s{S_INB}, 768")
I(f"s_add_u32 s{S_T1}, s{S_INB}, {4608+768}")
I(f"v_cndmask_b32 v{a2}, v{a6}, v{a1}, vcc")
I(f"s_mov_b64 s[{S_C1}:{S_C1+1}], vcc")
e("L_gu_poll:")
for p in range(8):
    I(f"buffer_load_dword v{T2+p}, v{a2}, s[{SRD_WS}:{SRD_WS+3}], s{S_T0 if p < 4 else S_T1} offen offset:{(p%4)*1152} sc1")
I("s_waitcnt vmcnt(0)")
poll_check(list(range(T2, T2 + 8)), "L_gu_poll", "L_gu_ok", a4)
e("L_gu_ok:")
I(f"s_mov_b64 vcc, s[{S_C1}:{S_C1+1}]")
I(f"v_add_f32 v{a2}, v{T2}, v{T2+1}")
for p in range(2, 8):
    I(f"v_add_f32 v{a2}, v{a2}, v{T2+p}")
rbf(a2, a3)
I(f"s_and_saveexec_b64 s[{S_EX}:{S_EX+1}], vcc")
I(f"ds_write_b32 v{a1}, v{a2} offset:{L_GUR}")
unmask()
e("L_gu_skip:")
I(f"s_cmp_lg_u32 s{S_W}, 5")
I("s_cbranch_scc1 L_t3_done")
I(f"v_lshlrev_b32 v{a1}, 2, v{V_LANE}")
e("L_t3_poll:")
I(f"buffer_load_dword v{a2}, v{a1}, s[{SRD_DBG}:{SRD_DBG+3}], 0 offen offset:{CNT_OFF} sc1")
I("s_waitcnt vmcnt(0)")
I(f"v_cmp_gt_u32 vcc, 8, v{a2}")
I(f"v_cmp_gt_u32 s[{S_C1}:{S_C1+1}], 32, v{V_LANE}")
I("s_nop 4")
I(f"s_and_b64 s[{S_C1}:{S_C1+1}], s[{S_C1}:{S_C1+1}], vcc")
I("s_cbranch_scc0 L_t3_done")
I("s_sleep 4")
I("s_branch L_t3_poll")
e("L_t3_done:")
I("s_waitcnt vmcnt(0) lgkmcnt(0)")
I("s_barrier")
stamp("b3")
I(f"s_cmp_ge_u32 s{S_W}, 3")
I("s_cbranch_scc1 L_t_gu")
I(f"v_mov_b32 v{a1}, 0")
for p in range(32):
    I(f"ds_read_b64 v[{BIG+2*p}:{BIG+2*p+1}], v{a1} offset:{L_PART + p*1040 + 1024}")
I("s_waitcnt lgkmcnt(0)")
I(f"v_max3_f32 v{a2}, v{BIG}, v{BIG+2}, v{BIG+4}")
for p in range(3, 31, 2):
    I(f"v_max3_f32 v{a2}, v{a2}, v{BIG+2*p}, v{BIG+2*p+2}")
I(f"v_max_f32 v{a2}, v{a2}, v{BIG+62}")
for p in range(32):
    I(f"v_sub_f32 v{BIG+2*p}, v{BIG+2*p}, v{a2}")
for p in range(32):
    I(f"v_exp_f32 v{BIG+2*p}, v{BIG+2*p}")
I("s_nop 0")
I(f"v_mul_f32 v{a3}, v{BIG}, v{BIG+1}")
for p in range(1, 32):
    I(f"v_fmac_f32 v{a3}, v{BIG+2*p}, v{BIG+2*p+1}")
I(f"v_lshlrev_b32 v{a1}, 2, v{V_T}")
I(f"s_cmp_eq_u32 s{S_W}, 2")
I("s_cbranch_scc1 L_t2_hi")
for p in range(32):
    I(f"ds_read_b32 v{BIG+2*p+1}, v{a1} offset:{L_PART + p*1040}")
I("s_waitcnt lgkmcnt(0)")
I(f"v_mul_f32 v{a4}, v{BIG}, v{BIG+1}")
for p in range(1, 32):
    I(f"v_fmac_f32 v{a4}, v{BIG+2*p}, v{BIG+2*p+1}")
I("s_branch L_t2_pub")
e("L_t2_hi:")
for p in range(32):
    I(f"ds_read_b32 v{BIG+2*p+1}, v{a1} offset:{L_PART + p*1040}")
for p in range(32):
    I(f"ds_read_b32 v{BIG+64+p}, v{a1} offset:{L_PART + p*1040 + 256}")
I("s_waitcnt lgkmcnt(0)")
for p in range(32):
    I(f"v_add_f32 v{BIG+2*p+1}, v{BIG+2*p+1}, v{BIG+64+p}")
I(f"v_mul_f32 v{a4}, v{BIG}, v{BIG+1}")
for p in range(1, 32):
    I(f"v_fmac_f32 v{a4}, v{BIG+2*p}, v{BIG+2*p+1}")
e("L_t2_pub:")
canon(a4, a5)
I(f"v_add_u32 v{a1}, s{S_WSB}, v{a1}")
I(f"buffer_store_dword v{a4}, v{a1}, s[{SRD_WS}:{SRD_WS+3}], 0 offen offset:{OP_OFF} sc1")
canon(a2, a5)
canon(a3, a5)
I(f"v_cmp_eq_u32 vcc, 0, v{V_T}")
I(f"v_mov_b32 v{a5}, 0")
I("s_nop 0")
I(f"v_cndmask_b32 v{a5}, v{a5}, v{a2}, vcc")
I(f"v_cmp_eq_u32 vcc, 1, v{V_T}")
I("s_nop 1")
I(f"v_cndmask_b32 v{a5}, v{a5}, v{a3}, vcc")
I(f"v_cmp_gt_u32 vcc, 4, v{V_T}")
I(f"v_mov_b32 v{a6}, {OOB}")
I("s_nop 0")
I(f"v_cndmask_b32 v{a1}, v{a6}, v{a1}, vcc")
I(f"buffer_store_dword v{a5}, v{a1}, s[{SRD_WS}:{SRD_WS+3}], 0 offen offset:{OP_OFF+768} sc1")
e("L_t_gu:")
I(f"v_mov_b32 v{a6}, {OOB}")
divmod_const(a2, a3, V_T, 49, 1338)
I(f"v_lshlrev_b32 v{a2}, 17, v{a2}")
I(f"v_lshl_add_u32 v{a2}, v{a3}, 4, v{a2}")
I(f"v_cmp_gt_u32 vcc, 392, v{V_T}")
I(f"s_lshl_b32 s{S_T0}, s{S_H}, 12")
I("s_nop 0")
I(f"v_cndmask_b32 v{a2}, v{a6}, v{a2}, vcc")
I(f"s_mov_b32 s{S_T2}, s{S_T0}")
I(f"buffer_load_dwordx4 v[{BIG}:{BIG+3}], v{a2}, s[{SRD_WS}:{SRD_WS+3}], s{S_T2} offen offset:{OP_OFF} sc1")
load_w()
I(f"s_mov_b32 s{S_T0}, s{S_T2}")
I(f"s_cmp_eq_u32 s{S_W}, 7")
I("s_cbranch_scc1 L_op_skip")
I("s_waitcnt vmcnt(5)")
I("s_branch L_op_chk")
e("L_op_poll:")
I(f"buffer_load_dwordx4 v[{BIG}:{BIG+3}], v{a2}, s[{SRD_WS}:{SRD_WS+3}], s{S_T0} offen offset:{OP_OFF} sc1")
I("s_waitcnt vmcnt(0)")
e("L_op_chk:")
poll_check([BIG, BIG + 1, BIG + 2, BIG + 3], "L_op_poll" if "--fullpoll" in sys.argv else "L_op_light", "L_op_done", a4)
e("L_op_light:")
I(f"v_lshlrev_b32 v{a5}, 17, v{V_LANE}")
I(f"v_cmp_gt_u32 vcc, 8, v{V_LANE}")
I("s_nop 1")
I(f"v_cndmask_b32 v{a5}, v{a6}, v{a5}, vcc")
e("L_op_light2:")
I(f"buffer_load_dword v{a4}, v{a5}, s[{SRD_WS}:{SRD_WS+3}], s{S_T0} offen offset:{OP_OFF+768} sc1")
I("s_waitcnt vmcnt(0)")
I(f"v_cmp_eq_u32 vcc, -1, v{a4}")
I("s_nop 4")
I("s_cbranch_vccz L_op_poll")
I("s_sleep 16")
I("s_branch L_op_light2")
e("L_op_done:")
I(f"v_lshlrev_b32 v{a1}, 4, v{V_T}")
mask_lt(392)
I(f"ds_write_b128 v{a1}, v[{BIG}:{BIG+3}] offset:{L_OPR}")
unmask()
e("L_op_skip:")
I("s_waitcnt lgkmcnt(0)")
I("s_barrier")
stamp("b4")
I(f"s_cmp_gt_u32 s{S_W}, 3")
I("s_cbranch_scc1 L_t5b")
I(f"s_cmp_eq_u32 s{S_W}, 3")
I("s_cbranch_scc1 L_t5h")
I(f"v_mov_b32 v{a1}, 0")
I(f"v_lshlrev_b32 v{a5}, 2, v{V_T}")
for p in range(8):
    I(f"ds_read_b64 v[{BIG+2*p}:{BIG+2*p+1}], v{a1} offset:{L_OPR + p*784 + 768}")
for p in range(8):
    I(f"ds_read_b32 v{BIG+16+p}, v{a5} offset:{L_OPR + p*784}")
I("s_waitcnt lgkmcnt(0)")
I(f"v_max3_f32 v{a2}, v{BIG}, v{BIG+2}, v{BIG+4}")
I(f"v_max3_f32 v{a2}, v{a2}, v{BIG+6}, v{BIG+8}")
I(f"v_max3_f32 v{a2}, v{a2}, v{BIG+10}, v{BIG+12}")
I(f"v_max_f32 v{a2}, v{a2}, v{BIG+14}")
for p in range(8):
    I(f"v_sub_f32 v{BIG+2*p}, v{BIG+2*p}, v{a2}")
for p in range(8):
    I(f"v_exp_f32 v{BIG+2*p}, v{BIG+2*p}")
I("s_nop 0")
I(f"v_mul_f32 v{a3}, v{BIG}, v{BIG+1}")
I(f"v_mul_f32 v{a4}, v{BIG}, v{BIG+16}")
for p in range(1, 8):
    I(f"v_fmac_f32 v{a3}, v{BIG+2*p}, v{BIG+2*p+1}")
    I(f"v_fmac_f32 v{a4}, v{BIG+2*p}, v{BIG+16+p}")
I(f"v_rcp_f32 v{a3}, v{a3}")
I("s_nop 0")
I(f"v_mul_f32 v{a4}, v{a4}, v{a3}")
rbf(a4, a6)
I(f"ds_write_b32 v{a5}, v{a4} offset:{L_OF}")
I("s_branch L_t5b")
e("L_t5h:")
I(f"v_lshlrev_b32 v{a5}, 2, v{V_LANE}")
I(f"v_min_u32 v{a5}, 188, v{a5}")
I(f"ds_read_b32 v{a2}, v{a5} offset:{L_GUR}")
I(f"ds_read_b32 v{a3}, v{a5} offset:{L_GUR + 192}")
I("s_waitcnt lgkmcnt(0)")
I(f"v_mul_f32 v{a2}, v{a2}, v{a3}")
rbf(a2, a6)
I(f"v_cmp_gt_u32 vcc, 48, v{V_LANE}")
I(f"s_and_saveexec_b64 s[{S_EX}:{S_EX+1}], vcc")
I(f"ds_write_b32 v{a5}, v{a2} offset:{L_OF+768}")
unmask()
e("L_t5b:")
I("s_waitcnt lgkmcnt(0)")
I("s_barrier")
stamp("b5")
I(f"v_min_u32 v{a1}, 47, v{V_OW+1}")
I(f"v_lshlrev_b32 v{a1}, 2, v{a1}")
for i in range(4):
    I(f"ds_read_b32 v{BIG+i}, v{a1} offset:{L_OF + 192*i}")
I(f"ds_read_b32 v{BIG+4}, v{a1} offset:{L_OF + 768}")
I("s_waitcnt vmcnt(0) lgkmcnt(0)")
for i in range(4):
    fma_chunk(BIG + 8, WR + 4 * i, BIG + i, a2, first=(i == 0))
fma_chunk(BIG + 16, WR + 16, BIG + 4, a2, first=True)
I(f"v_lshlrev_b32 v{a1}, 6, v{V_T}")
I(f"s_mov_b64 s[{S_EX}:{S_EX+1}], exec")
I(f"s_mov_b64 exec, s[{S_M480}:{S_M480+1}]")
for k in range(4):
    I(f"ds_write_b128 v{a1}, v[{BIG+8+4*k}:{BIG+11+4*k}] offset:{L_RED + 16*k}")
unmask()
I("s_waitcnt lgkmcnt(0)")
I("s_barrier")
stamp("b6")
I(f"s_cmp_ge_u32 s{S_W}, 3")
I("s_cbranch_scc1 L_t6")
I(f"v_min_u32 v{a1}, 159, v{V_T}")
I(f"v_cmp_lt_u32 vcc, 79, v{a1}")
I(f"v_subrev_u32 v{a2}, 80, v{a1}")
I("s_nop 0")
I(f"v_cndmask_b32 v{a2}, v{a1}, v{a2}, vcc")
I(f"v_cndmask_b32 v{a3}, 0, 32, vcc")
I(f"v_lshrrev_b32 v{a4}, 3, v{a2}")
I(f"v_and_b32 v{a2}, 7, v{a2}")
I(f"v_lshl_add_u32 v{a3}, v{a4}, 6, v{a3}")
I(f"v_lshl_add_u32 v{a3}, v{a2}, 2, v{a3}")
for sl in range(48):
    I(f"ds_read_b32 v{BIG+sl}, v{a3} offset:{L_RED + sl*640}")
I("s_waitcnt lgkmcnt(0)")
for k in range(0, 48, 4):
    I(f"v_add_f32 v{BIG+k}, v{BIG+k}, v{BIG+k+1}")
    I(f"v_add_f32 v{BIG+k+2}, v{BIG+k+2}, v{BIG+k+3}")
    I(f"v_add_f32 v{BIG+k}, v{BIG+k}, v{BIG+k+2}")
for k in range(4, 48, 4):
    I(f"v_add_f32 v{BIG}, v{BIG}, v{BIG+k}")
canon(BIG, a5)
I(f"v_lshl_add_u32 v{a1}, v{V_T}, 2, s{S_WSB}")
I(f"v_cmp_gt_u32 vcc, 160, v{V_T}")
I(f"v_mov_b32 v{a6}, {OOB}")
I("s_nop 0")
I(f"v_cndmask_b32 v{a1}, v{a6}, v{a1}, vcc")
I(f"buffer_store_dword v{BIG}, v{a1}, s[{SRD_WS}:{SRD_WS+3}], 0 offen offset:{AP_OFF} sc1")
e("L_t6:")
stamp("t6")
I(f"s_cmp_lg_u32 s{S_H}, 0")
I("s_cbranch_scc1 L_fin")
I(f"s_cmp_eq_u32 s{S_W}, 7")
I("s_cbranch_scc1 L_gate")
I(f"s_cmp_ge_u32 s{S_W}, 5")
I("s_cbranch_scc1 L_fin_bar")
divmod_const(a2, a3, V_T, 40, 1639)
I(f"v_lshlrev_b32 v{a2}, 14, v{a2}")
I(f"v_lshl_add_u32 v{a2}, v{a3}, 4, v{a2}")
I(f"s_lshl_b32 s{S_T0}, s{S_S}, 17")
I(f"s_add_u32 s{S_T1}, s{S_T0}, 4096")
I(f"s_add_u32 s{S_T2}, s{S_T0}, 8192")
I(f"s_add_u32 s{S_T3}, s{S_T0}, 12288")
e("L_ap_poll:")
for k, sr in enumerate((S_T0, S_T1, S_T2, S_T3)):
    I(f"buffer_load_dwordx4 v[{BIG+4*k}:{BIG+4*k+3}], v{a2}, s[{SRD_WS}:{SRD_WS+3}], s{sr} offen offset:{AP_OFF} sc1")
I("s_waitcnt vmcnt(0)")
poll_check(list(range(BIG, BIG + 16)), "L_ap_poll", "L_ap_done", a4)
e("L_ap_light:")
I(f"v_lshlrev_b32 v{a5}, 12, v{V_LANE}")
I(f"v_cmp_gt_u32 vcc, 32, v{V_LANE}")
I(f"v_mov_b32 v{a6}, {OOB}")
I("s_nop 0")
I(f"v_cndmask_b32 v{a5}, v{a6}, v{a5}, vcc")
e("L_ap_light2:")
I(f"buffer_load_dword v{a4}, v{a5}, s[{SRD_WS}:{SRD_WS+3}], s{S_T0} offen offset:{AP_OFF} sc1")
I("s_waitcnt vmcnt(0)")
I(f"v_cmp_eq_u32 vcc, -1, v{a4}")
I("s_nop 4")
I("s_cbranch_vccz L_ap_poll")
I("s_sleep 8")
I("s_branch L_ap_light2")
e("L_ap_done:")
for k in range(4):
    I(f"v_add_f32 v{BIG+k}, v{BIG+k}, v{BIG+4+k}")
    I(f"v_add_f32 v{BIG+8+k}, v{BIG+8+k}, v{BIG+12+k}")
for k in range(4):
    I(f"v_add_f32 v{BIG+k}, v{BIG+k}, v{BIG+8+k}")
I(f"v_lshlrev_b32 v{a1}, 4, v{V_T}")
I(f"ds_write_b128 v{a1}, v[{BIG}:{BIG+3}] offset:{L_FR}")
I("s_branch L_fin_bar")
e("L_gate:")
I(f"v_lshlrev_b32 v{a1}, 5, v{V_LANE}")
I(f"buffer_load_dwordx4 v[{BIG}:{BIG+3}], v{a1}, s[{SRD_X}:{SRD_X+3}], 0 offen")
I(f"buffer_load_dwordx4 v[{BIG+4}:{BIG+7}], v{a1}, s[{SRD_X}:{SRD_X+3}], 0 offen offset:16")
I(f"buffer_load_dwordx4 v[{BIG+8}:{BIG+11}], v{a1}, s[{SRD_GW}:{SRD_GW+3}], 0 offen")
I(f"buffer_load_dwordx4 v[{BIG+12}:{BIG+15}], v{a1}, s[{SRD_GW}:{SRD_GW+3}], 0 offen offset:16")
I(f"v_mov_b32 v{a2}, 0")
I("s_waitcnt vmcnt(0)")
for k in range(8):
    I(f"v_lshlrev_b32 v{a3}, 16, v{BIG+k}")
    I(f"v_lshlrev_b32 v{a4}, 16, v{BIG+8+k}")
    I(f"v_and_b32 v{a5}, 0xffff0000, v{BIG+k}")
    I(f"v_and_b32 v{a6}, 0xffff0000, v{BIG+8+k}")
    I(f"v_mul_f32 v{a3}, v{a3}, v{a4}")
    I(f"v_mul_f32 v{a5}, v{a5}, v{a6}")
    I(f"v_cvt_pk_bf16_f32 v{a3}, v{a3}, v{a5}")
    I(f"v_lshlrev_b32 v{a4}, 16, v{a3}")
    I(f"v_and_b32 v{a5}, 0xffff0000, v{a3}")
    I(f"v_add_f32 v{a2}, v{a2}, v{a4}")
    I(f"v_add_f32 v{a2}, v{a2}, v{a5}")
I(f"v_lshlrev_b32 v{a1}, 2, v{V_LANE}")
for m in (1, 2, 4, 8, 16, 32):
    I(f"v_xor_b32 v{a3}, {4*m}, v{a1}")
    I(f"ds_bpermute_b32 v{a4}, v{a3}, v{a2}")
    I("s_waitcnt lgkmcnt(0)")
    I(f"v_add_f32 v{a2}, v{a2}, v{a4}")
rbf(a2, a6)
I(f"v_mul_f32 v{a2}, s{S_LOG2E}, v{a2}")
I(f"v_sub_f32 v{a2}, 0, v{a2}")
I(f"v_exp_f32 v{a2}, v{a2}")
I("s_nop 0")
I(f"v_add_f32 v{a2}, 1.0, v{a2}")
I(f"v_rcp_f32 v{a2}, v{a2}")
I("s_nop 0")
rbf(a2, a6)
I(f"v_mov_b32 v{a1}, 0")
I(f"ds_write_b32 v{a1}, v{a2} offset:{L_GATE}")
e("L_fin_bar:")
I("s_waitcnt lgkmcnt(0)")
I("s_barrier")
I(f"s_cmp_ge_u32 s{S_W}, 2")
I("s_cbranch_scc1 L_fin")
I(f"v_min_u32 v{a1}, 79, v{V_T}")
I(f"v_lshlrev_b32 v{a1}, 2, v{a1}")
I(f"v_mov_b32 v{a5}, 0")
for hg in range(8):
    I(f"ds_read_b32 v{BIG+hg}, v{a1} offset:{L_FR + hg*640}")
    I(f"ds_read_b32 v{BIG+8+hg}, v{a1} offset:{L_FR + hg*640 + 320}")
I(f"ds_read_b32 v{a7}, v{a5} offset:{L_GATE}")
I("s_waitcnt lgkmcnt(0)")
I(f"v_add_f32 v{a2}, v{BIG}, v{BIG+1}")
I(f"v_add_f32 v{a3}, v{BIG+8}, v{BIG+9}")
for p in range(2, 8):
    I(f"v_add_f32 v{a2}, v{a2}, v{BIG+p}")
    I(f"v_add_f32 v{a3}, v{a3}, v{BIG+8+p}")
rbf(a2, a6)
rbf(a3, a6)
I(f"v_sub_f32 v{a4}, 1.0, v{a7}")
rbf(a4, a6)
I(f"v_mul_f32 v{a2}, v{a7}, v{a2}")
I(f"v_mul_f32 v{a3}, v{a4}, v{a3}")
rbf(a2, a6)
rbf(a3, a6)
I(f"v_add_f32 v{a2}, v{a2}, v{a3}")
I(f"v_cvt_pk_bf16_f32 v{a2}, v{a2}, v{a2}")
I(f"s_mul_i32 s{S_T0}, s{S_S}, 160")
I(f"v_lshlrev_b32 v{a1}, 1, v{V_T}")
I(f"v_cmp_gt_u32 vcc, 80, v{V_T}")
I(f"v_mov_b32 v{a6}, {OOB}")
I("s_nop 0")
I(f"v_cndmask_b32 v{a1}, v{a6}, v{a1}, vcc")
I(f"buffer_store_short v{a2}, v{a1}, s[{SRD_OUT}:{SRD_OUT+3}], s{S_T0} offen")
e("L_fin:")
stamp("end")
dump_stamps()
e("L_end:")
I("s_endpgm")
e('.section .rodata,"a"')
e(".p2align 6")
e(f".amdhsa_kernel {NAME}_kernel")
e("  .amdhsa_next_free_vgpr 256")
e("  .amdhsa_next_free_sgpr 102")
e("  .amdhsa_accum_offset 256")
e("  .amdhsa_group_segment_fixed_size 0")
e("  .amdhsa_kernarg_size 104")
e("  .amdhsa_user_sgpr_count 2")
e("  .amdhsa_user_sgpr_kernarg_segment_ptr 1")
e("  .amdhsa_system_sgpr_workgroup_id_x 1")
e(".end_amdhsa_kernel")

open(OUTFILE, "w").write("\n".join(out) + "\n")
print("wrote", OUTFILE, len(out), "lines")
```

```python
import sys, re

NAME = "gated_mix__gqa_block_cached__glu_gated_bilinear__decode"
HEADER = open("cdna_kernels/%s.s.ref" % NAME).read().split("; Override launch geometry")[0]

out = []
def e(s=""):
    out.append(s)
def I(s):
    m = re.search(r"buffer_\w+.*offset:(\d+)", s)
    assert not m or int(m.group(1)) <= 4095, s
    out.append("    " + s)

NT = " nt" if "--nt" in sys.argv else ""
NTW = " nt" if "--ntw" in sys.argv else ""
STAMP = "--stamp" in sys.argv
DBGST = "--dbgstamp" in sys.argv
CNT_OFF = 128 if DBGST else 0
RR = "--rr" in sys.argv
WSTRIDE, TSTRIDE = (6144, 49152) if RR else (49152, 6144)
OUTFILE = "cdna_kernels/%s.s" % NAME
for a in sys.argv[1:]:
    if a.startswith("--out="):
        OUTFILE = a[6:]

KV_BYTES = 100663296
WQ_BYTES = 640 * 6144 * 2
WO_BYTES = 6144 * 640 * 2
WD_BYTES = 1536 * 640 * 2
WS_BYTES = 402653184
OOB = 0x7f000000
FLAG_OFF = 2688
QP_OFF, OP_OFF, AP_OFF = 0, 1152, 2048
L_FLAG = 51200
L_QR = 0
L_GR = 15360
L_PART = 0
L_QB = 34816
L_OPR = 35328
L_GUR = 41600
L_OF = 44672
L_GATE = 45632
L_RED = 0
L_FR = 46080
L_KR = 51712
LDS_BYTES = L_KR + 16 * 6144

S_WG = 2
S_H, S_S, S_W = 3, 62, 63
SRD_K, SRD_V, SRD_WQ, SRD_WO, SRD_WD, SRD_WS, SRD_X, SRD_DBG = 4, 8, 12, 16, 20, 24, 28, 32
KA0 = 36
S_MHI = 64
S_T0, S_T1, S_T2, S_T3 = 66, 67, 68, 69
S_EX = 70
S_BASE = 72
S_NA, S_NB = 73, 74
S_IT = 75
S_SCALE, S_LOG2E = 76, 77
S_WSB = 78
S_M480 = 80
S_C1 = 82
SRD_GW, SRD_OUT = 84, 88
S_WGP, S_WUP = 92, 94
S_ST = 96
S_KL = 79
S_T4 = 100
S_NV = 101

V_T, V_LANE, V_G, V_I, V_OK, V_OV1, V_OV2 = 0, 1, 2, 3, 4, 5, 6
A = [7, 8, 9, 10, 11, 12, 13, 14, 15]
KA, VA, KB, VB = 16, 40, 64, 88
VS = [40, 64, 88, 204]
STG = 64
XR = 192
GU = 208
XG = 216
AQ = 220
AG = 228
V_SL, V_C, V_SL2, V_C2 = 236, 237, 238, 239
V_NEG = 240
QF = 112
ACC = 136
WR = 152
D = 172
P = 176
VM, VL = 180, 181
T2 = 182
V_OW = 200
V_KRD = 202
BIG = 16


def srd(dst, lo, hi, nbytes):
    I(f"s_mov_b32 s{dst}, s{lo}")
    I(f"s_and_b32 s{dst+1}, s{hi}, 0xffff")
    I(f"s_mov_b32 s{dst+2}, {nbytes}")
    I(f"s_mov_b32 s{dst+3}, 0x00020000")


def divmod_const(vq, vr, vsrc, d, magic):
    I(f"v_mul_u32_u24 v{vq}, {magic}, v{vsrc}")
    I(f"v_lshrrev_b32 v{vq}, 16, v{vq}")
    I(f"v_mul_u32_u24 v{vr}, {d}, v{vq}")
    I(f"v_sub_u32 v{vr}, v{vsrc}, v{vr}")


stamp_n = [0]
def stamp(tag):
    if not STAMP:
        return
    n = stamp_n[0]; stamp_n[0] += 1
    assert n < 13
    I(f"s_memrealtime s[{KA0+2*n}:{KA0+2*n+1}]")
    I("s_waitcnt lgkmcnt(0)")


def dump_stamps():
    if not STAMP:
        return
    if DBGST:
        I(f"s_cmp_lg_u32 s{S_WG}, 0")
        I("s_cbranch_scc1 L_end")
        I(f"s_cmp_lg_u32 s{S_W}, 0")
        I("s_cbranch_scc1 L_end")
        I(f"v_mov_b32 v252, 0")
        I(f"v_cmp_eq_u32 vcc, 0, v{V_LANE}")
        I(f"s_and_saveexec_b64 s[{S_ST}:{S_ST+1}], vcc")
        for n in range(stamp_n[0]):
            I(f"s_sub_u32 s{S_ST+2}, s{KA0+2*n}, s{KA0}")
            I(f"v_mov_b32 v250, s{S_ST+2}")
            I(f"buffer_store_dword v250, v252, s[{SRD_DBG}:{SRD_DBG+3}], 0 offen offset:{4*n}")
            I("s_nop 2")
        return
    I(f"s_lshl_b32 s{S_ST}, s{S_WG}, 3")
    I(f"s_add_u32 s{S_ST}, s{S_ST}, s{S_W}")
    I(f"s_lshl_b32 s{S_ST}, s{S_ST}, 8")
    I(f"s_add_u32 s{S_ST}, s{S_ST}, {0x1000000}")
    I(f"v_mov_b32 v252, s{S_ST}")
    I(f"v_cmp_eq_u32 vcc, 0, v{V_LANE}")
    I(f"s_and_saveexec_b64 s[{S_ST}:{S_ST+1}], vcc")
    for n in range(stamp_n[0]):
        I(f"v_mov_b32 v250, s{KA0+2*n}")
        I(f"v_mov_b32 v251, s{KA0+2*n+1}")
        I(f"buffer_store_dwordx2 v[250:251], v252, s[{SRD_WS}:{SRD_WS+3}], 0 offen offset:{8*n}")
        I("s_nop 2")


def fma_chunk(acc, data, scal, tmp, first=False):
    for j in range(4):
        I(f"v_lshlrev_b32 v{tmp}, 16, v{data+j}")
        I(f"v_and_b32 v{tmp+1}, 0xffff0000, v{data+j}")
        op = "v_mul_f32" if first else "v_fmac_f32"
        I(f"{op} v{acc+2*j}, v{scal}, v{tmp}")
        I(f"{op} v{acc+2*j+1}, v{scal}, v{tmp+1}")


def canon(v, tmp):
    I(f"v_cmp_eq_u32 vcc, -1, v{v}")
    I(f"v_mov_b32 v{tmp}, 0x7fc00000")
    I("s_nop 1")
    I(f"v_cndmask_b32 v{v}, v{v}, v{tmp}, vcc")


def rbf(v, tmp):
    I(f"v_cvt_pk_bf16_f32 v{tmp}, v{v}, v{v}")
    I(f"v_lshlrev_b32 v{v}, 16, v{tmp}")


def load_k(slot, soff):
    x = 0 if slot == KA else 1
    I(f"s_add_u32 m0, s{S_KL}, {x*6144}")
    I(f"s_add_u32 s{S_T4}, s{soff}, 4096")
    for j in range(4):
        I(f"buffer_load_dwordx4 v{V_OK}, s[{SRD_K}:{SRD_K+3}], s{soff} offen offset:{j*1024}{NT} lds")
    I(f"s_add_u32 m0, s{S_KL}, {x*6144 + 4096}")
    I("s_nop 0")
    for j in range(2):
        I(f"buffer_load_dwordx4 v{V_OK}, s[{SRD_K}:{SRD_K+3}], s{S_T4} offen offset:{j*1024}{NT} lds")


def load_v(slot, soff):
    for r in range(4):
        I(f"buffer_load_dwordx4 v[{slot+4*r}:{slot+4*r+3}], v{V_OV1}, s[{SRD_V}:{SRD_V+3}], s{soff} offen offset:{r*384}{NT}")
    for r in range(2):
        I(f"buffer_load_dwordx4 v[{slot+16+4*r}:{slot+16+4*r+3}], v{V_OV2}, s[{SRD_V}:{SRD_V+3}], s{soff} offen offset:{r*768}{NT}")


def poll_check(regs, lab_retry, lab_done, tmp):
    cur = regs[0]
    rest = list(regs[1:])
    while rest:
        if len(rest) >= 2:
            I(f"v_max3_u32 v{tmp}, v{cur}, v{rest[0]}, v{rest[1]}")
            rest = rest[2:]
        else:
            I(f"v_max_u32 v{tmp}, v{cur}, v{rest[0]}")
            rest = rest[1:]
        cur = tmp
    I(f"v_cmp_eq_u32 vcc, -1, v{cur}")
    I("s_nop 4")
    I(f"s_cbranch_vccz {lab_done}")
    I("s_sleep 2")
    I(f"s_branch {lab_retry}")


def mask_lt(n, save=S_EX):
    I(f"v_cmp_gt_u32 vcc, {n}, v{V_T}")
    I(f"s_and_saveexec_b64 s[{save}:{save+1}], vcc")


def unmask(save=S_EX):
    I(f"s_mov_b64 exec, s[{save}:{save+1}]")


e(HEADER.rstrip("\n"))
e("; Override launch geometry by editing the next line (default: block=256,")
e(f"; @launch grid=(256,1,1) block=(512,1,1) lds={LDS_BYTES}")
e('.amdgcn_target "amdgcn-amd-amdhsa--gfx950"')
e(".text")
e(f".globl {NAME}_kernel")
e(".p2align 8")
e(f".type {NAME}_kernel,@function")
e(f"{NAME}_kernel:")
I(f"s_cmp_ge_u32 s{S_WG}, 256")
I("s_cbranch_scc1 L_end")
I(f"s_load_dwordx16 s[{KA0}:{KA0+15}], s[0:1], 0")
I(f"s_load_dwordx8 s[{KA0+16}:{KA0+23}], s[0:1], 64")
I(f"s_load_dwordx2 s[{KA0+24}:{KA0+25}], s[0:1], 96")
a0, a1, a2, a3, a4, a5, a6, a7, a8 = A
I(f"v_and_b32 v{V_LANE}, 63, v{V_T}")
I(f"v_lshrrev_b32 v{a0}, 6, v{V_T}")
I(f"v_lshrrev_b32 v{V_G}, 4, v{V_LANE}")
I(f"v_and_b32 v{V_I}, 15, v{V_LANE}")
I(f"v_readfirstlane_b32 s{S_W}, v{a0}")
if "--shift" in sys.argv:
    I(f"s_xor_b32 s{S_WG}, s{S_WG}, 1")
I(f"s_and_b32 s{S_H}, s{S_WG}, 31")
I(f"s_lshr_b32 s{S_S}, s{S_WG}, 5")
I(f"s_lshl_b32 s{S_WSB}, s{S_WG}, 12")
I(f"v_mul_u32_u24 v{V_KRD}, 384, v{V_I}")
I(f"v_lshl_add_u32 v{V_KRD}, v{V_G}, 4, v{V_KRD}")
I(f"v_lshlrev_b32 v{V_OK}, 4, v{V_LANE}")
I(f"s_mul_i32 s{S_KL}, s{S_W}, 12288")
I(f"s_add_u32 s{S_KL}, s{S_KL}, {L_KR}")
I(f"v_add_u32 v{V_KRD}, s{S_KL}, v{V_KRD}")
I(f"v_mul_u32_u24 v{a1}, 1536, v{V_G}")
I(f"v_lshl_add_u32 v{V_OV1}, v{V_I}, 4, v{a1}")
I(f"v_lshrrev_b32 v{a2}, 3, v{V_I}")
I(f"v_mul_u32_u24 v{a2}, 384, v{a2}")
I(f"v_and_b32 v{a3}, 7, v{V_I}")
I(f"v_lshlrev_b32 v{a3}, 4, v{a3}")
I(f"v_add3_u32 v{V_OV2}, v{a1}, v{a2}, v{a3}")
I(f"v_add_u32 v{V_OV2}, 256, v{V_OV2}")
I(f"v_cmp_lt_u32 s[{S_MHI}:{S_MHI+1}], 7, v{V_I}")
I(f"v_cmp_gt_u32 vcc, 480, v{V_T}")
I(f"s_mov_b64 s[{S_M480}:{S_M480+1}], vcc")
I(f"s_mov_b32 s{S_SCALE}, 0x3d93cd3a")
I(f"s_mov_b32 s{S_LOG2E}, 0x3fb8aa3b")
divmod_const(V_SL, V_C, V_T, 24, 2731)
divmod_const(V_SL2, V_C2, V_T, 12, 5462)
for k in range(4):
    I(f"v_mov_b32 v{V_NEG+k}, -1")
I("s_waitcnt lgkmcnt(0)")
kp = lambda n: (KA0 + 2 * n, KA0 + 2 * n + 1)
srd(SRD_WS, *kp(12), WS_BYTES)
srd(SRD_X, *kp(0), 1280)
srd(SRD_WQ, *kp(3), WQ_BYTES)
srd(SRD_K, *kp(1), KV_BYTES)
srd(SRD_V, *kp(2), KV_BYTES)
srd(SRD_WO, *kp(4), WO_BYTES)
srd(SRD_WD, *kp(8), WD_BYTES)
srd(SRD_GW, *kp(9), 1280)
srd(SRD_OUT, *kp(10), 1280)
srd(SRD_DBG, *kp(11), 256)
I(f"s_mov_b64 s[{S_WGP}:{S_WGP+1}], s[{kp(6)[0]}:{kp(6)[1]}]")
I(f"s_mov_b64 s[{S_WUP}:{S_WUP+1}], s[{kp(7)[0]}:{kp(7)[1]}]")
stamp("start")
I(f"s_mul_i32 s{S_BASE}, s{S_H}, 3145728")
I(f"s_mul_i32 s{S_T0}, s{S_S}, 393216")
I(f"s_add_u32 s{S_BASE}, s{S_BASE}, s{S_T0}")
I(f"s_mul_i32 s{S_T0}, s{S_W}, {WSTRIDE}")
I(f"s_add_u32 s{S_BASE}, s{S_BASE}, s{S_T0}")

if "--codepf" in sys.argv:
    I(f"s_cmp_lg_u32 s{S_W}, 7")
    I("s_cbranch_scc1 L_nopf")
    I(f"s_getpc_b64 s[{S_C1}:{S_C1+1}]")
    I(f"v_lshlrev_b32 v{a0}, 4, v{V_LANE}")
    for k in range(11):
        if k % 4 == 0 and k:
            I(f"v_add_u32 v{a0}, 4096, v{a0}")
        I(f"global_load_dwordx4 v[{112+4*k}:{115+4*k}], v{a0}, s[{S_C1}:{S_C1+1}] offset:{(k%4)*1024}")
    e("L_nopf:")
I(f"v_mov_b32 v{a8}, {OOB}")
I(f"v_lshl_add_u32 v{a0}, v{V_T}, 4, s{S_WSB}")
I(f"v_cmp_gt_u32 vcc, 97, v{V_T}")
I(f"v_mov_b32 v{a2}, 0")
I(f"v_mov_b32 v{a3}, 0")
I(f"v_cndmask_b32 v{a0}, v{a8}, v{a0}, vcc")
I(f"buffer_store_dwordx4 v[{V_NEG}:{V_NEG+3}], v{a0}, s[{SRD_WS}:{SRD_WS+3}], 0 offen offset:{OP_OFF} sc1")
I(f"v_mov_b32 v{a1}, {L_FLAG}")
I(f"ds_write_b64 v{a1}, v[{a2}:{a3}]") if a2 % 2 == 0 else (I(f"ds_write_b32 v{a1}, v{a2}"), I(f"ds_write_b32 v{a1}, v{a2} offset:4"), I(f"ds_write_b32 v{a1}, v{a2} offset:8"))
I(f"s_mul_i32 s{S_T0}, s{S_S}, 160")
I(f"v_lshlrev_b32 v{a1}, 3, v{V_SL}")
I(f"v_cndmask_b32 v{a1}, v{a8}, v{a1}, s[{S_M480}:{S_M480+1}]")
I(f"buffer_load_dwordx2 v[{XR}:{XR+1}], v{a1}, s[{SRD_X}:{SRD_X+3}], s{S_T0} offen")
I(f"v_lshlrev_b32 v{a2}, 2, v{V_SL2}")
I(f"v_cndmask_b32 v{a2}, v{a8}, v{a2}, s[{S_M480}:{S_M480+1}]")
I(f"buffer_load_dword v{XG}, v{a2}, s[{SRD_X}:{SRD_X+3}], s{S_T0} offen")
I(f"v_mul_u32_u24 v{a0}, {4*12288 // 16}, v{V_SL}")
I(f"v_add_u32 v{a0}, v{a0}, v{V_C}")
I(f"v_lshlrev_b32 v{a0}, 4, v{a0}")
I(f"v_cndmask_b32 v{a0}, v{a8}, v{a0}, s[{S_M480}:{S_M480+1}]")
I(f"s_mul_i32 s{S_T0}, s{S_H}, 384")
I(f"s_mul_i32 s{S_T1}, s{S_S}, {80*12288}")
I(f"s_add_u32 s{S_T0}, s{S_T0}, s{S_T1}")
for k in range(4):
    I(f"buffer_load_dwordx4 v[{STG+4*k}:{STG+4*k+3}], v{a0}, s[{SRD_WQ}:{SRD_WQ+3}], s{S_T0} offen{NTW}")
    if k != 3:
        I(f"s_add_u32 s{S_T0}, s{S_T0}, 12288")
I(f"v_min_u32 v{a3}, 39, v{V_SL2}")
I(f"v_cmp_gt_u32 vcc, 6, v{V_C2}")
I(f"v_subrev_u32 v{a4}, 6, v{V_C2}")
I(f"v_mov_b32 v{a5}, s{S_WUP}")
I(f"v_mov_b32 v{a6}, s{S_WUP+1}")
I(f"v_cndmask_b32 v{a4}, v{a4}, v{V_C2}, vcc")
I(f"v_mov_b32 v{a0}, s{S_WGP}")
I(f"v_mov_b32 v{a1}, s{S_WGP+1}")
I(f"v_cndmask_b32 v{a5}, v{a5}, v{a0}, vcc")
I(f"v_cndmask_b32 v{a6}, v{a6}, v{a1}, vcc")
I(f"s_mul_i32 s{S_T0}, s{S_S}, {80*3072}")
I(f"s_mul_i32 s{S_T1}, s{S_H}, 96")
I(f"s_add_u32 s{S_T0}, s{S_T0}, s{S_T1}")
I(f"v_mul_u32_u24 v{a3}, 6144, v{a3}")
I(f"v_lshl_add_u32 v{a3}, v{a4}, 4, v{a3}")
I(f"v_add_u32 v{a3}, s{S_T0}, v{a3}")
I(f"v_add_co_u32 v244, vcc, v{a5}, v{a3}")
I("s_nop 1")
I(f"v_addc_co_u32 v245, vcc, 0, v{a6}, vcc")
I(f"global_load_dwordx4 v[{GU}:{GU+3}], v[244:245], off{NTW}")
I(f"global_load_dwordx4 v[{GU+4}:{GU+7}], v[244:245], off offset:3072{NTW}")
divmod_const(V_OW + 1, a3, V_T, 10, 6554)
I(f"v_mul_u32_u24 v{V_OW}, 1280, v{V_OW+1}")
I(f"v_lshl_add_u32 v{V_OW}, v{a3}, 4, v{V_OW}")
I(f"v_cndmask_b32 v{V_OW}, v{a8}, v{V_OW}, s[{S_M480}:{S_M480+1}]")
I(f"s_add_u32 s{S_NA}, s{S_BASE}, {TSTRIDE}")
I(f"s_add_u32 s{S_NB}, s{S_BASE}, {2*TSTRIDE}")
I(f"s_add_u32 s{S_NV}, s{S_BASE}, {3*TSTRIDE}")
def load_w():
    I(f"s_mul_i32 s{S_T0}, s{S_H}, {192*1280}")
    I(f"s_mul_i32 s{S_T1}, s{S_S}, 160")
    I(f"s_add_u32 s{S_T0}, s{S_T0}, s{S_T1}")
    for i in range(4):
        I(f"buffer_load_dwordx4 v[{WR+4*i}:{WR+4*i+3}], v{V_OW}, s[{SRD_WO}:{SRD_WO+3}], s{S_T0} offen{NTW}")
        if i != 3:
            I(f"s_add_u32 s{S_T0}, s{S_T0}, {48*1280}")
    I(f"s_mul_i32 s{S_T0}, s{S_H}, {48*1280}")
    I(f"s_add_u32 s{S_T0}, s{S_T0}, s{S_T1}")
    I(f"buffer_load_dwordx4 v[{WR+16}:{WR+19}], v{V_OW}, s[{SRD_WD}:{SRD_WD+3}], s{S_T0} offen{NTW}")
if "--early" in sys.argv:
    I(f"s_cmp_lt_u32 s{S_W}, 5")
    I("s_cbranch_scc1 L_late")
    load_k(KA, S_BASE)
    load_v(VS[0], S_BASE)
    I("s_waitcnt vmcnt(12)")
    I("s_branch L_late2")
    e("L_late:")
    I("s_waitcnt vmcnt(0)")
    load_k(KA, S_BASE)
    e("L_late2:")
else:
    I("s_waitcnt vmcnt(0)")
    load_k(KA, S_BASE)
for k in range(4):
    xs = XR + k // 2
    if k % 2 == 0:
        I(f"v_lshlrev_b32 v{a1}, 16, v{xs}")
    else:
        I(f"v_and_b32 v{a1}, 0xffff0000, v{xs}")
    fma_chunk(AQ, STG + 4 * k, a1, a2, first=(k == 0))
I(f"v_lshlrev_b32 v{a1}, 16, v{XG}")
fma_chunk(AG, GU, a1, a2, first=True)
I(f"v_and_b32 v{a1}, 0xffff0000, v{XG}")
fma_chunk(AG, GU + 4, a1, a2)
I(f"v_mul_u32_u24 v{a1}, 768, v{V_SL}")
I(f"v_lshl_add_u32 v{a1}, v{V_C}, 5, v{a1}")
I(f"v_mul_u32_u24 v{a2}, 384, v{V_SL2}")
I(f"v_lshl_add_u32 v{a2}, v{V_C2}, 5, v{a2}")
I(f"s_mov_b64 s[{S_EX}:{S_EX+1}], exec")
I(f"s_mov_b64 exec, s[{S_M480}:{S_M480+1}]")
I(f"ds_write_b128 v{a1}, v[{AQ}:{AQ+3}] offset:{L_QR}")
I(f"ds_write_b128 v{a1}, v[{AQ+4}:{AQ+7}] offset:{L_QR+16}")
I(f"ds_write_b128 v{a2}, v[{AG}:{AG+3}] offset:{L_GR}")
I(f"ds_write_b128 v{a2}, v[{AG+4}:{AG+7}] offset:{L_GR+16}")
unmask()
I("s_waitcnt lgkmcnt(0)")
I("s_barrier")
stamp("b1")
I(f"s_cmp_lt_u32 s{S_W}, 5")
I("s_cbranch_scc1 L_a_wave")
if "--early" not in sys.argv:
    load_v(VS[0], S_BASE)
load_k(KB, S_NA)
load_v(VS[1], S_NA)
load_v(VS[2], S_NB)
load_v(VS[3], S_NV)
I("s_branch L_a_done")
e("L_a_wave:")
qregs = [T2 + sl if sl < 18 else 244 + sl - 18 for sl in range(20)]
I(f"v_lshlrev_b32 v{a1}, 2, v{V_T}")
I(f"s_cmp_ge_u32 s{S_W}, 3")
I("s_cbranch_scc1 L_a_notq")
for sl in range(20):
    I(f"ds_read_b32 v{qregs[sl]}, v{a1} offset:{L_QR + sl*768}")
I("s_waitcnt lgkmcnt(0)")
I(f"v_add_f32 v{a2}, v{qregs[0]}, v{qregs[1]}")
for r in qregs[2:]:
    I(f"v_add_f32 v{a2}, v{a2}, v{r}")
I("s_branch L_a_pub")
e("L_a_notq:")
I(f"v_subrev_u32 v{a3}, 768, v{a1}")
I(f"v_min_u32 v{a3}, 380, v{a3}")
for half in range(2):
    for sl in range(20):
        I(f"ds_read_b32 v{qregs[sl]}, v{a3} offset:{L_GR + (half*20+sl)*384}")
    I("s_waitcnt lgkmcnt(0)")
    if half == 0:
        I(f"v_add_f32 v{a2}, v{qregs[0]}, v{qregs[1]}")
        rest = qregs[2:]
    else:
        rest = qregs
    for r in rest:
        I(f"v_add_f32 v{a2}, v{a2}, v{r}")
e("L_a_pub:")
I(f"v_cmp_gt_u32 vcc, 288, v{V_T}")
I(f"v_add_u32 v{a3}, s{S_WSB}, v{a1}")
I("s_nop 0")
I(f"v_cndmask_b32 v{a3}, v{a8}, v{a3}, vcc")
I(f"v_cndmask_b32 v{a5}, v{a8}, v{a1}, vcc")
I(f"buffer_store_dword v{a2}, v{a3}, s[{SRD_WS}:{SRD_WS+3}], 0 offen offset:{QP_OFF} sc1")
I(f"v_mov_b32 v{a1}, {L_FLAG}")
I(f"v_mov_b32 v{a2}, 1")
I(f"s_lshl_b32 s{S_T1}, s{S_H}, 2")
I(f"v_mov_b32 v{a4}, s{S_T1}")
I("s_waitcnt vmcnt(0)")
stamp("ack")
I(f"v_cmp_eq_u32 vcc, 0, v{V_LANE}")
I(f"s_and_saveexec_b64 s[{S_EX}:{S_EX+1}], vcc")
I(f"ds_add_rtn_u32 v{a3}, v{a1}, v{a2}")
I("s_waitcnt lgkmcnt(0)")
I(f"v_readfirstlane_b32 s{S_T0}, v{a3}")
I(f"s_cmp_lg_u32 s{S_T0}, 4")
I("s_cbranch_scc1 L_a_noatom")
I(f"v_mov_b32 v{a3}, 1")
I(f"buffer_atomic_add v{a3}, v{a4}, s[{SRD_DBG}:{SRD_DBG+3}], 0 offen offset:{CNT_OFF} sc0 sc1")
I("s_waitcnt vmcnt(0)")
I(f"v_readfirstlane_b32 s{S_T0}, v{a3}")
I(f"s_cmp_lg_u32 s{S_T0}, 7")
I("s_cbranch_scc1 L_a_noatom")
I(f"s_mov_b64 exec, 0xff")
I(f"s_lshl_b32 s{S_T0}, s{S_H}, 12")
I(f"v_lshlrev_b32 v{a3}, 17, v{V_LANE}")
I(f"buffer_store_dword v{a2}, v{a3}, s[{SRD_WS}:{SRD_WS+3}], s{S_T0} offen offset:{FLAG_OFF} sc1")
e("L_a_noatom:")
unmask()
I(f"s_cmp_lg_u32 s{S_W}, 0")
I("s_cbranch_scc1 L_a_others")
I(f"v_mov_b32 v{a4}, s{S_WSB}")
e("L_a_gpoll:")
I(f"buffer_load_dword v{a3}, v{a4}, s[{SRD_WS}:{SRD_WS+3}], 0 offen offset:{FLAG_OFF} sc1")
I("s_waitcnt vmcnt(0)")
I(f"v_readfirstlane_b32 s{S_T0}, v{a3}")
I(f"s_cmp_eq_u32 s{S_T0}, 1")
I("s_cbranch_scc1 L_a_gok")
I("s_sleep 2")
I("s_branch L_a_gpoll")
e("L_a_gok:")
I(f"ds_write_b32 v{a1}, v{a2} offset:4")
I("s_branch L_a_gather")
e("L_a_others:")
load_v(VS[0], S_BASE)
load_k(KB, S_NA)
load_v(VS[1], S_NA)
e("L_a_lspin:")
I(f"ds_read_b32 v{a3}, v{a1} offset:4")
I("s_waitcnt lgkmcnt(0)")
I(f"v_readfirstlane_b32 s{S_T0}, v{a3}")
I(f"s_cmp_lg_u32 s{S_T0}, 0")
I("s_cbranch_scc1 L_a_gather")
I("s_sleep 1")
I("s_branch L_a_lspin")
e("L_a_gather:")
stamp("flag")
I(f"s_lshl_b32 s{S_T0}, s{S_H}, 12")
for p in range(8):
    I(f"buffer_load_dword v{T2+p}, v{a5}, s[{SRD_WS}:{SRD_WS+3}], s{S_T0} offen offset:{QP_OFF} sc1")
    if p != 7:
        I(f"s_add_u32 s{S_T0}, s{S_T0}, {32*4096}")
I(f"s_cmp_lg_u32 s{S_W}, 0")
I("s_cbranch_scc1 L_a_g2")
load_v(VS[0], S_BASE)
load_k(KB, S_NA)
load_v(VS[1], S_NA)
load_v(VS[2], S_NB)
load_v(VS[3], S_NV)
I("s_waitcnt vmcnt(30)")
I("s_branch L_a_g3")
e("L_a_g2:")
load_v(VS[2], S_NB)
load_v(VS[3], S_NV)
I("s_waitcnt vmcnt(12)")
e("L_a_g3:")
I(f"v_add_f32 v{a2}, v{T2}, v{T2+1}")
for p in range(2, 8):
    I(f"v_add_f32 v{a2}, v{a2}, v{T2+p}")
I(f"v_cvt_pk_bf16_f32 v{a2}, v{a2}, v{a2}")
I(f"s_cmp_ge_u32 s{S_W}, 3")
I("s_cbranch_scc1 L_a_gus")
I(f"v_lshlrev_b32 v{a3}, 1, v{V_T}")
I(f"ds_write_b16 v{a3}, v{a2} offset:{L_QB}")
if "--noB2" in sys.argv:
    I(f"v_mov_b32 v{a1}, {L_FLAG}")
    I(f"v_mov_b32 v{a2}, 1")
    I("s_waitcnt lgkmcnt(0)")
    I(f"s_mov_b64 s[{S_EX}:{S_EX+1}], exec")
    I("s_mov_b64 exec, 1")
    I(f"ds_add_u32 v{a1}, v{a2} offset:8")
    unmask()
I("s_branch L_a_done")
e("L_a_gus:")
I(f"v_lshlrev_b32 v{a2}, 16, v{a2}")
I(f"v_lshlrev_b32 v{a3}, 2, v{V_T}")
I(f"v_cmp_gt_u32 vcc, 288, v{V_T}")
I(f"s_and_saveexec_b64 s[{S_EX}:{S_EX+1}], vcc")
I(f"ds_write_b32 v{a3}, v{a2} offset:{L_GUR - 768}")
unmask()
e("L_a_done:")
if "--noB2" in sys.argv:
    I(f"v_mov_b32 v{a1}, {L_FLAG}")
    e("L_a_qspin:")
    I(f"ds_read_b32 v{a3}, v{a1} offset:8")
    I("s_waitcnt lgkmcnt(0)")
    I(f"v_readfirstlane_b32 s{S_T0}, v{a3}")
    I(f"s_cmp_eq_u32 s{S_T0}, 3")
    I("s_cbranch_scc1 L_a_qok")
    I("s_sleep 1")
    I("s_branch L_a_qspin")
    e("L_a_qok:")
else:
    I("s_waitcnt lgkmcnt(0)")
    I("s_barrier")
stamp("b2")
I(f"v_lshlrev_b32 v{a1}, 4, v{V_G}")
for j in range(6):
    I(f"ds_read_b128 v[{QF+4*j}:{QF+4*j+3}], v{a1} offset:{L_QB + 64*j}")
for k in range(16):
    I(f"v_mov_b32 v{ACC+k}, 0")
I(f"v_mov_b32 v{VM}, 0xff7fffff")
I(f"v_mov_b32 v{VL}, 0")
I(f"s_mov_b32 s{S_IT}, 0")
I(f"s_add_u32 s{S_NA}, s{S_BASE}, {2*TSTRIDE}")
I(f"s_add_u32 s{S_NV}, s{S_BASE}, {4*TSTRIDE}")
I("s_waitcnt lgkmcnt(0)")

def tile(KX, VX, soff, soffv):
    I("s_waitcnt vmcnt(18)")
    x = 0 if KX == KA else 1
    for j in range(6):
        I(f"ds_read_b128 v[{KA+4*j}:{KA+4*j+3}], v{V_KRD} offset:{x*6144 + j*64}")
    I("s_waitcnt lgkmcnt(0)")
    load_k(KX, soff)
    for j in range(6):
        c = "0" if j == 0 else f"v[{D}:{D+3}]"
        I(f"v_mfma_f32_16x16x32_bf16 v[{D}:{D+3}], v[{KA+4*j}:{KA+4*j+3}], v[{QF+4*j}:{QF+4*j+3}], {c}")
    I("s_nop 7")
    t0, t1 = T2, T2 + 1
    s = [T2 + 2, T2 + 3, T2 + 4, T2 + 5]
    I(f"v_cvt_pk_bf16_f32 v{t0}, v{D}, v{D+1}")
    I(f"v_cvt_pk_bf16_f32 v{t1}, v{D+2}, v{D+3}")
    I(f"v_lshlrev_b32 v{s[0]}, 16, v{t0}")
    I(f"v_and_b32 v{s[1]}, 0xffff0000, v{t0}")
    I(f"v_lshlrev_b32 v{s[2]}, 16, v{t1}")
    I(f"v_and_b32 v{s[3]}, 0xffff0000, v{t1}")
    for r in range(4):
        I(f"v_mul_f32 v{s[r]}, s{S_SCALE}, v{s[r]}")
    I(f"v_cvt_pk_bf16_f32 v{t0}, v{s[0]}, v{s[1]}")
    I(f"v_cvt_pk_bf16_f32 v{t1}, v{s[2]}, v{s[3]}")
    I(f"v_lshlrev_b32 v{s[0]}, 16, v{t0}")
    I(f"v_and_b32 v{s[1]}, 0xffff0000, v{t0}")
    I(f"v_lshlrev_b32 v{s[2]}, 16, v{t1}")
    I(f"v_and_b32 v{s[3]}, 0xffff0000, v{t1}")
    for r in range(4):
        I(f"v_mul_f32 v{s[r]}, s{S_LOG2E}, v{s[r]}")
    mn, al = T2 + 6, T2 + 7
    I(f"v_max3_f32 v{mn}, v{s[0]}, v{s[1]}, v{s[2]}")
    I(f"v_max3_f32 v{mn}, v{mn}, v{s[3]}, v{VM}")
    I(f"v_sub_f32 v{al}, v{VM}, v{mn}")
    for r in range(4):
        I(f"v_sub_f32 v{P+r}, v{s[r]}, v{mn}")
    I(f"v_exp_f32 v{al}, v{al}")
    for r in range(4):
        I(f"v_exp_f32 v{P+r}, v{P+r}")
    I(f"v_mov_b32 v{VM}, v{mn}")
    for k in range(16):
        I(f"v_mul_f32 v{ACC+k}, v{al}, v{ACC+k}")
    I(f"v_add_f32 v{t0}, v{P}, v{P+1}")
    I(f"v_add_f32 v{t1}, v{P+2}, v{P+3}")
    I(f"v_add_f32 v{t0}, v{t0}, v{t1}")
    I(f"v_fma_f32 v{VL}, v{VL}, v{al}, v{t0}")
    pa, pb = T2 + 8, T2 + 9
    I(f"v_cndmask_b32 v{pa}, v{P}, v{P+1}, s[{S_MHI}:{S_MHI+1}]")
    I(f"v_cndmask_b32 v{pb}, v{P+2}, v{P+3}, s[{S_MHI}:{S_MHI+1}]")
    I("s_waitcnt vmcnt(18)")
    for r in range(4):
        fma_chunk(ACC, VX + 4 * r, P + r, T2 + 10)
    fma_chunk(ACC + 8, VX + 16, pa, T2 + 10)
    fma_chunk(ACC + 8, VX + 20, pb, T2 + 10)
    load_v(VX, soffv)

e("L_loop:")
for u in range(4):
    I(f"s_cmp_eq_u32 s{S_IT}, 0")
    if u < 2:
        I(f"s_mov_b32 s{S_T0}, s{S_NA}")
    else:
        I(f"s_cselect_b32 s{S_T0}, s{S_NA}, {OOB}")
    I(f"s_cselect_b32 s{S_T1}, s{S_NV}, {OOB}")
    tile(KA if u % 2 == 0 else KB, VS[u], S_T0, S_T1)
    I(f"s_add_u32 s{S_NA}, s{S_NA}, {TSTRIDE}")
    I(f"s_add_u32 s{S_NV}, s{S_NV}, {TSTRIDE}")
I(f"s_add_u32 s{S_IT}, s{S_IT}, 1")
I(f"s_cmp_lt_u32 s{S_IT}, 2")
I("s_cbranch_scc1 L_loop")
stamp("loop_end")

I(f"s_lshl_b32 s{S_T0}, s{S_W}, 2")
I(f"v_add_u32 v{a1}, s{S_T0}, v{V_G}")
I(f"v_mul_u32_u24 v{a1}, 1040, v{a1}")
I(f"v_lshl_add_u32 v{a2}, v{V_I}, 5, v{a1}")
I(f"ds_write_b128 v{a2}, v[{ACC}:{ACC+3}] offset:{L_PART}")
I(f"ds_write_b128 v{a2}, v[{ACC+4}:{ACC+7}] offset:{L_PART+16}")
I(f"ds_write_b128 v{a2}, v[{ACC+8}:{ACC+11}] offset:{L_PART+512}")
I(f"ds_write_b128 v{a2}, v[{ACC+12}:{ACC+15}] offset:{L_PART+528}")
I(f"v_cmp_eq_u32 vcc, 0, v{V_I}")
I(f"s_and_saveexec_b64 s[{S_EX}:{S_EX+1}], vcc")
I(f"ds_write_b64 v{a1}, v[{VM}:{VM+1}] offset:{L_PART+1024}")
unmask()
I(f"s_cmp_lg_u32 s{S_W}, {5 if '--t3w5' in sys.argv else 1}")
I("s_cbranch_scc1 L_t3_done")
I(f"v_lshlrev_b32 v{a1}, 2, v{V_LANE}")
e("L_t3_poll:")
I(f"buffer_load_dword v{a2}, v{a1}, s[{SRD_DBG}:{SRD_DBG+3}], 0 offen offset:{CNT_OFF} sc1")
I("s_waitcnt vmcnt(0)")
I(f"v_cmp_gt_u32 vcc, 8, v{a2}")
I(f"v_cmp_gt_u32 s[{S_C1}:{S_C1+1}], 32, v{V_LANE}")
I("s_nop 4")
I(f"s_and_b64 s[{S_C1}:{S_C1+1}], s[{S_C1}:{S_C1+1}], vcc")
I("s_cbranch_scc0 L_t3_done")
I("s_sleep 4")
I("s_branch L_t3_poll")
e("L_t3_done:")
I("s_waitcnt vmcnt(0) lgkmcnt(0)")
I("s_barrier")
stamp("b3")
load_w()
I(f"s_cmp_ge_u32 s{S_W}, 3")
I("s_cbranch_scc1 L_t_gu")
I(f"v_mov_b32 v{a1}, 0")
for p in range(32):
    I(f"ds_read_b64 v[{BIG+2*p}:{BIG+2*p+1}], v{a1} offset:{L_PART + p*1040 + 1024}")
I("s_waitcnt lgkmcnt(0)")
I(f"v_max3_f32 v{a2}, v{BIG}, v{BIG+2}, v{BIG+4}")
for p in range(3, 31, 2):
    I(f"v_max3_f32 v{a2}, v{a2}, v{BIG+2*p}, v{BIG+2*p+2}")
I(f"v_max_f32 v{a2}, v{a2}, v{BIG+62}")
for p in range(32):
    I(f"v_sub_f32 v{BIG+2*p}, v{BIG+2*p}, v{a2}")
for p in range(32):
    I(f"v_exp_f32 v{BIG+2*p}, v{BIG+2*p}")
I("s_nop 0")
I(f"v_mul_f32 v{a3}, v{BIG}, v{BIG+1}")
for p in range(1, 32):
    I(f"v_fmac_f32 v{a3}, v{BIG+2*p}, v{BIG+2*p+1}")
I(f"v_lshlrev_b32 v{a1}, 2, v{V_T}")
I(f"s_cmp_eq_u32 s{S_W}, 2")
I("s_cbranch_scc1 L_t2_hi")
for p in range(32):
    I(f"ds_read_b32 v{BIG+2*p+1}, v{a1} offset:{L_PART + p*1040}")
I("s_waitcnt lgkmcnt(0)")
I(f"v_mul_f32 v{a4}, v{BIG}, v{BIG+1}")
for p in range(1, 32):
    I(f"v_fmac_f32 v{a4}, v{BIG+2*p}, v{BIG+2*p+1}")
I("s_branch L_t2_pub")
e("L_t2_hi:")
for p in range(32):
    I(f"ds_read_b32 v{BIG+2*p+1}, v{a1} offset:{L_PART + p*1040}")
for p in range(32):
    I(f"ds_read_b32 v{BIG+64+p}, v{a1} offset:{L_PART + p*1040 + 256}")
I("s_waitcnt lgkmcnt(0)")
for p in range(32):
    I(f"v_add_f32 v{BIG+2*p+1}, v{BIG+2*p+1}, v{BIG+64+p}")
I(f"v_mul_f32 v{a4}, v{BIG}, v{BIG+1}")
for p in range(1, 32):
    I(f"v_fmac_f32 v{a4}, v{BIG+2*p}, v{BIG+2*p+1}")
e("L_t2_pub:")
canon(a4, a5)
I(f"v_add_u32 v{a1}, s{S_WSB}, v{a1}")
I(f"buffer_store_dword v{a4}, v{a1}, s[{SRD_WS}:{SRD_WS+3}], 0 offen offset:{OP_OFF} sc1")
canon(a2, a5)
canon(a3, a5)
I(f"v_cmp_eq_u32 vcc, 0, v{V_T}")
I(f"v_mov_b32 v{a5}, 0")
I("s_nop 0")
I(f"v_cndmask_b32 v{a5}, v{a5}, v{a2}, vcc")
I(f"v_cmp_eq_u32 vcc, 1, v{V_T}")
I("s_nop 1")
I(f"v_cndmask_b32 v{a5}, v{a5}, v{a3}, vcc")
I(f"v_cmp_gt_u32 vcc, 4, v{V_T}")
I(f"v_mov_b32 v{a6}, {OOB}")
I("s_nop 0")
I(f"v_cndmask_b32 v{a1}, v{a6}, v{a1}, vcc")
I(f"buffer_store_dword v{a5}, v{a1}, s[{SRD_WS}:{SRD_WS+3}], 0 offen offset:{OP_OFF+768} sc1")
e("L_t_gu:")
I(f"v_mov_b32 v{a6}, {OOB}")
divmod_const(a2, a3, V_T, 49, 1338)
I(f"v_lshlrev_b32 v{a2}, 17, v{a2}")
I(f"v_lshl_add_u32 v{a2}, v{a3}, 4, v{a2}")
I(f"v_cmp_gt_u32 vcc, 392, v{V_T}")
I(f"s_lshl_b32 s{S_T0}, s{S_H}, 12")
I("s_nop 0")
I(f"v_cndmask_b32 v{a2}, v{a6}, v{a2}, vcc")
I(f"s_cmp_eq_u32 s{S_W}, 7")
I("s_cbranch_scc1 L_op_skip")
e("L_op_poll:")
I(f"buffer_load_dwordx4 v[{BIG}:{BIG+3}], v{a2}, s[{SRD_WS}:{SRD_WS+3}], s{S_T0} offen offset:{OP_OFF} sc1")
I("s_waitcnt vmcnt(0)")
poll_check([BIG, BIG + 1, BIG + 2, BIG + 3], "L_op_poll" if "--fullpoll" in sys.argv else "L_op_light", "L_op_done", a4)
e("L_op_light:")
I(f"v_lshlrev_b32 v{a5}, 17, v{V_LANE}")
I(f"v_cmp_gt_u32 vcc, 8, v{V_LANE}")
I("s_nop 1")
I(f"v_cndmask_b32 v{a5}, v{a6}, v{a5}, vcc")
e("L_op_light2:")
I(f"buffer_load_dword v{a4}, v{a5}, s[{SRD_WS}:{SRD_WS+3}], s{S_T0} offen offset:{OP_OFF+768} sc1")
I("s_waitcnt vmcnt(0)")
I(f"v_cmp_eq_u32 vcc, -1, v{a4}")
I("s_nop 4")
I("s_cbranch_vccz L_op_poll")
I("s_sleep 16")
I("s_branch L_op_light2")
e("L_op_done:")
I(f"v_lshlrev_b32 v{a1}, 4, v{V_T}")
mask_lt(392)
I(f"ds_write_b128 v{a1}, v[{BIG}:{BIG+3}] offset:{L_OPR}")
unmask()
e("L_op_skip:")
I("s_waitcnt lgkmcnt(0)")
I("s_barrier")
stamp("b4")
I(f"s_cmp_gt_u32 s{S_W}, 3")
I("s_cbranch_scc1 L_t5b")
I(f"s_cmp_eq_u32 s{S_W}, 3")
I("s_cbranch_scc1 L_t5h")
I(f"v_mov_b32 v{a1}, 0")
I(f"v_lshlrev_b32 v{a5}, 2, v{V_T}")
for p in range(8):
    I(f"ds_read_b64 v[{BIG+2*p}:{BIG+2*p+1}], v{a1} offset:{L_OPR + p*784 + 768}")
for p in range(8):
    I(f"ds_read_b32 v{BIG+16+p}, v{a5} offset:{L_OPR + p*784}")
I("s_waitcnt lgkmcnt(0)")
I(f"v_max3_f32 v{a2}, v{BIG}, v{BIG+2}, v{BIG+4}")
I(f"v_max3_f32 v{a2}, v{a2}, v{BIG+6}, v{BIG+8}")
I(f"v_max3_f32 v{a2}, v{a2}, v{BIG+10}, v{BIG+12}")
I(f"v_max_f32 v{a2}, v{a2}, v{BIG+14}")
for p in range(8):
    I(f"v_sub_f32 v{BIG+2*p}, v{BIG+2*p}, v{a2}")
for p in range(8):
    I(f"v_exp_f32 v{BIG+2*p}, v{BIG+2*p}")
I("s_nop 0")
I(f"v_mul_f32 v{a3}, v{BIG}, v{BIG+1}")
I(f"v_mul_f32 v{a4}, v{BIG}, v{BIG+16}")
for p in range(1, 8):
    I(f"v_fmac_f32 v{a3}, v{BIG+2*p}, v{BIG+2*p+1}")
    I(f"v_fmac_f32 v{a4}, v{BIG+2*p}, v{BIG+16+p}")
I(f"v_rcp_f32 v{a3}, v{a3}")
I("s_nop 0")
I(f"v_mul_f32 v{a4}, v{a4}, v{a3}")
rbf(a4, a6)
I(f"ds_write_b32 v{a5}, v{a4} offset:{L_OF}")
I("s_branch L_t5b")
e("L_t5h:")
I(f"v_lshlrev_b32 v{a5}, 2, v{V_LANE}")
I(f"v_min_u32 v{a5}, 188, v{a5}")
I(f"ds_read_b32 v{a2}, v{a5} offset:{L_GUR}")
I(f"ds_read_b32 v{a3}, v{a5} offset:{L_GUR + 192}")
I("s_waitcnt lgkmcnt(0)")
I(f"v_mul_f32 v{a2}, v{a2}, v{a3}")
rbf(a2, a6)
I(f"v_cmp_gt_u32 vcc, 48, v{V_LANE}")
I(f"s_and_saveexec_b64 s[{S_EX}:{S_EX+1}], vcc")
I(f"ds_write_b32 v{a5}, v{a2} offset:{L_OF+768}")
unmask()
e("L_t5b:")
I("s_waitcnt lgkmcnt(0)")
I("s_barrier")
stamp("b5")
I(f"v_min_u32 v{a1}, 47, v{V_OW+1}")
I(f"v_lshlrev_b32 v{a1}, 2, v{a1}")
for i in range(4):
    I(f"ds_read_b32 v{BIG+i}, v{a1} offset:{L_OF + 192*i}")
I(f"ds_read_b32 v{BIG+4}, v{a1} offset:{L_OF + 768}")
I("s_waitcnt vmcnt(0) lgkmcnt(0)")
for i in range(4):
    fma_chunk(BIG + 8, WR + 4 * i, BIG + i, a2, first=(i == 0))
fma_chunk(BIG + 16, WR + 16, BIG + 4, a2, first=True)
I(f"v_lshlrev_b32 v{a1}, 6, v{V_T}")
I(f"s_mov_b64 s[{S_EX}:{S_EX+1}], exec")
I(f"s_mov_b64 exec, s[{S_M480}:{S_M480+1}]")
for k in range(4):
    I(f"ds_write_b128 v{a1}, v[{BIG+8+4*k}:{BIG+11+4*k}] offset:{L_RED + 16*k}")
unmask()
I("s_waitcnt lgkmcnt(0)")
I("s_barrier")
stamp("b6")
I(f"s_cmp_ge_u32 s{S_W}, 3")
I("s_cbranch_scc1 L_t6")
I(f"v_min_u32 v{a1}, 159, v{V_T}")
I(f"v_cmp_lt_u32 vcc, 79, v{a1}")
I(f"v_subrev_u32 v{a2}, 80, v{a1}")
I("s_nop 0")
I(f"v_cndmask_b32 v{a2}, v{a1}, v{a2}, vcc")
I(f"v_cndmask_b32 v{a3}, 0, 32, vcc")
I(f"v_lshrrev_b32 v{a4}, 3, v{a2}")
I(f"v_and_b32 v{a2}, 7, v{a2}")
I(f"v_lshl_add_u32 v{a3}, v{a4}, 6, v{a3}")
I(f"v_lshl_add_u32 v{a3}, v{a2}, 2, v{a3}")
for sl in range(48):
    I(f"ds_read_b32 v{BIG+sl}, v{a3} offset:{L_RED + sl*640}")
I("s_waitcnt lgkmcnt(0)")
for k in range(0, 48, 4):
    I(f"v_add_f32 v{BIG+k}, v{BIG+k}, v{BIG+k+1}")
    I(f"v_add_f32 v{BIG+k+2}, v{BIG+k+2}, v{BIG+k+3}")
    I(f"v_add_f32 v{BIG+k}, v{BIG+k}, v{BIG+k+2}")
for k in range(4, 48, 4):
    I(f"v_add_f32 v{BIG}, v{BIG}, v{BIG+k}")
canon(BIG, a5)
I(f"v_lshl_add_u32 v{a1}, v{V_T}, 2, s{S_WSB}")
I(f"v_cmp_gt_u32 vcc, 160, v{V_T}")
I(f"v_mov_b32 v{a6}, {OOB}")
I("s_nop 0")
I(f"v_cndmask_b32 v{a1}, v{a6}, v{a1}, vcc")
I(f"buffer_store_dword v{BIG}, v{a1}, s[{SRD_WS}:{SRD_WS+3}], 0 offen offset:{AP_OFF} sc1")
e("L_t6:")
stamp("t6")
I(f"s_cmp_lg_u32 s{S_H}, 0")
I("s_cbranch_scc1 L_fin")
I(f"s_cmp_eq_u32 s{S_W}, 7")
I("s_cbranch_scc1 L_gate")
I(f"s_cmp_ge_u32 s{S_W}, 5")
I("s_cbranch_scc1 L_fin_bar")
divmod_const(a2, a3, V_T, 40, 1639)
I(f"v_lshlrev_b32 v{a2}, 14, v{a2}")
I(f"v_lshl_add_u32 v{a2}, v{a3}, 4, v{a2}")
I(f"s_lshl_b32 s{S_T0}, s{S_S}, 17")
I(f"s_add_u32 s{S_T1}, s{S_T0}, 4096")
I(f"s_add_u32 s{S_T2}, s{S_T0}, 8192")
I(f"s_add_u32 s{S_T3}, s{S_T0}, 12288")
e("L_ap_poll:")
for k, sr in enumerate((S_T0, S_T1, S_T2, S_T3)):
    I(f"buffer_load_dwordx4 v[{BIG+4*k}:{BIG+4*k+3}], v{a2}, s[{SRD_WS}:{SRD_WS+3}], s{sr} offen offset:{AP_OFF} sc1")
I("s_waitcnt vmcnt(0)")
poll_check(list(range(BIG, BIG + 16)), "L_ap_poll", "L_ap_done", a4)
e("L_ap_light:")
I(f"v_lshlrev_b32 v{a5}, 12, v{V_LANE}")
I(f"v_cmp_gt_u32 vcc, 32, v{V_LANE}")
I(f"v_mov_b32 v{a6}, {OOB}")
I("s_nop 0")
I(f"v_cndmask_b32 v{a5}, v{a6}, v{a5}, vcc")
e("L_ap_light2:")
I(f"buffer_load_dword v{a4}, v{a5}, s[{SRD_WS}:{SRD_WS+3}], s{S_T0} offen offset:{AP_OFF} sc1")
I("s_waitcnt vmcnt(0)")
I(f"v_cmp_eq_u32 vcc, -1, v{a4}")
I("s_nop 4")
I("s_cbranch_vccz L_ap_poll")
I("s_sleep 8")
I("s_branch L_ap_light2")
e("L_ap_done:")
for k in range(4):
    I(f"v_add_f32 v{BIG+k}, v{BIG+k}, v{BIG+4+k}")
    I(f"v_add_f32 v{BIG+8+k}, v{BIG+8+k}, v{BIG+12+k}")
for k in range(4):
    I(f"v_add_f32 v{BIG+k}, v{BIG+k}, v{BIG+8+k}")
I(f"v_lshlrev_b32 v{a1}, 4, v{V_T}")
I(f"ds_write_b128 v{a1}, v[{BIG}:{BIG+3}] offset:{L_FR}")
I("s_branch L_fin_bar")
e("L_gate:")
I(f"v_lshlrev_b32 v{a1}, 5, v{V_LANE}")
I(f"buffer_load_dwordx4 v[{BIG}:{BIG+3}], v{a1}, s[{SRD_X}:{SRD_X+3}], 0 offen")
I(f"buffer_load_dwordx4 v[{BIG+4}:{BIG+7}], v{a1}, s[{SRD_X}:{SRD_X+3}], 0 offen offset:16")
I(f"buffer_load_dwordx4 v[{BIG+8}:{BIG+11}], v{a1}, s[{SRD_GW}:{SRD_GW+3}], 0 offen")
I(f"buffer_load_dwordx4 v[{BIG+12}:{BIG+15}], v{a1}, s[{SRD_GW}:{SRD_GW+3}], 0 offen offset:16")
I(f"v_mov_b32 v{a2}, 0")
I("s_waitcnt vmcnt(0)")
for k in range(8):
    I(f"v_lshlrev_b32 v{a3}, 16, v{BIG+k}")
    I(f"v_lshlrev_b32 v{a4}, 16, v{BIG+8+k}")
    I(f"v_and_b32 v{a5}, 0xffff0000, v{BIG+k}")
    I(f"v_and_b32 v{a6}, 0xffff0000, v{BIG+8+k}")
    I(f"v_mul_f32 v{a3}, v{a3}, v{a4}")
    I(f"v_mul_f32 v{a5}, v{a5}, v{a6}")
    I(f"v_cvt_pk_bf16_f32 v{a3}, v{a3}, v{a5}")
    I(f"v_lshlrev_b32 v{a4}, 16, v{a3}")
    I(f"v_and_b32 v{a5}, 0xffff0000, v{a3}")
    I(f"v_add_f32 v{a2}, v{a2}, v{a4}")
    I(f"v_add_f32 v{a2}, v{a2}, v{a5}")
I(f"v_lshlrev_b32 v{a1}, 2, v{V_LANE}")
for m in (1, 2, 4, 8, 16, 32):
    I(f"v_xor_b32 v{a3}, {4*m}, v{a1}")
    I(f"ds_bpermute_b32 v{a4}, v{a3}, v{a2}")
    I("s_waitcnt lgkmcnt(0)")
    I(f"v_add_f32 v{a2}, v{a2}, v{a4}")
rbf(a2, a6)
I(f"v_mul_f32 v{a2}, s{S_LOG2E}, v{a2}")
I(f"v_sub_f32 v{a2}, 0, v{a2}")
I(f"v_exp_f32 v{a2}, v{a2}")
I("s_nop 0")
I(f"v_add_f32 v{a2}, 1.0, v{a2}")
I(f"v_rcp_f32 v{a2}, v{a2}")
I("s_nop 0")
rbf(a2, a6)
I(f"v_mov_b32 v{a1}, 0")
I(f"ds_write_b32 v{a1}, v{a2} offset:{L_GATE}")
e("L_fin_bar:")
I("s_waitcnt lgkmcnt(0)")
I("s_barrier")
I(f"s_cmp_ge_u32 s{S_W}, 2")
I("s_cbranch_scc1 L_fin")
I(f"v_min_u32 v{a1}, 79, v{V_T}")
I(f"v_lshlrev_b32 v{a1}, 2, v{a1}")
I(f"v_mov_b32 v{a5}, 0")
for hg in range(8):
    I(f"ds_read_b32 v{BIG+hg}, v{a1} offset:{L_FR + hg*640}")
    I(f"ds_read_b32 v{BIG+8+hg}, v{a1} offset:{L_FR + hg*640 + 320}")
I(f"ds_read_b32 v{a7}, v{a5} offset:{L_GATE}")
I("s_waitcnt lgkmcnt(0)")
I(f"v_add_f32 v{a2}, v{BIG}, v{BIG+1}")
I(f"v_add_f32 v{a3}, v{BIG+8}, v{BIG+9}")
for p in range(2, 8):
    I(f"v_add_f32 v{a2}, v{a2}, v{BIG+p}")
    I(f"v_add_f32 v{a3}, v{a3}, v{BIG+8+p}")
rbf(a2, a6)
rbf(a3, a6)
I(f"v_sub_f32 v{a4}, 1.0, v{a7}")
rbf(a4, a6)
I(f"v_mul_f32 v{a2}, v{a7}, v{a2}")
I(f"v_mul_f32 v{a3}, v{a4}, v{a3}")
rbf(a2, a6)
rbf(a3, a6)
I(f"v_add_f32 v{a2}, v{a2}, v{a3}")
I(f"v_cvt_pk_bf16_f32 v{a2}, v{a2}, v{a2}")
I(f"s_mul_i32 s{S_T0}, s{S_S}, 160")
I(f"v_lshlrev_b32 v{a1}, 1, v{V_T}")
I(f"v_cmp_gt_u32 vcc, 80, v{V_T}")
I(f"v_mov_b32 v{a6}, {OOB}")
I("s_nop 0")
I(f"v_cndmask_b32 v{a1}, v{a6}, v{a1}, vcc")
I(f"buffer_store_short v{a2}, v{a1}, s[{SRD_OUT}:{SRD_OUT+3}], s{S_T0} offen")
e("L_fin:")
stamp("end")
dump_stamps()
e("L_end:")
I("s_endpgm")
e('.section .rodata,"a"')
e(".p2align 6")
e(f".amdhsa_kernel {NAME}_kernel")
e("  .amdhsa_next_free_vgpr 256")
e("  .amdhsa_next_free_sgpr 102")
e("  .amdhsa_accum_offset 256")
e("  .amdhsa_group_segment_fixed_size 0")
e("  .amdhsa_kernarg_size 104")
e("  .amdhsa_user_sgpr_count 2")
e("  .amdhsa_user_sgpr_kernarg_segment_ptr 1")
e("  .amdhsa_system_sgpr_workgroup_id_x 1")
e(".end_amdhsa_kernel")

open(OUTFILE, "w").write("\n".join(out) + "\n")
print("wrote", OUTFILE, len(out), "lines")
```

```python
import sys, re

NAME = "gated_mix__gqa_block_cached__glu_gated_bilinear__decode"
HEADER = open("cdna_kernels/%s.s.ref" % NAME).read().split("; Override launch geometry")[0]

out = []
def e(s=""):
    out.append(s)
def I(s):
    m = re.search(r"buffer_\w+.*offset:(\d+)", s)
    assert not m or int(m.group(1)) <= 4095, s
    out.append("    " + s)

NT = " nt" if "--nt" in sys.argv else ""
NTW = " nt" if "--ntw" in sys.argv else ""
STAMP = "--stamp" in sys.argv
DBGST = "--dbgstamp" in sys.argv
CNT_OFF = 128 if DBGST else 0
RR = "--rr" in sys.argv
WMODE = "b3"
SL = 2
for a_ in sys.argv:
    if a_.startswith("--sl="): SL = int(a_[5:])
for a_ in sys.argv:
    if a_.startswith("--wmode="): WMODE = a_[8:]
WSTRIDE, TSTRIDE = (6144, 49152) if RR else (49152, 6144)
OUTFILE = "cdna_kernels/%s.s" % NAME
for a in sys.argv[1:]:
    if a.startswith("--out="):
        OUTFILE = a[6:]

KV_BYTES = 100663296
WQ_BYTES = 640 * 6144 * 2
WO_BYTES = 6144 * 640 * 2
WD_BYTES = 1536 * 640 * 2
WS_BYTES = 402653184
OOB = 0x7f000000
FLAG_OFF = 2688
QP_OFF, OP_OFF, AP_OFF = 0, 1152, 2048
L_FLAG = 51200
L_QR = 0
L_GR = 15360
L_PART = 0
L_QB = 34816
L_OPR = 35328
L_GUR = 41600
L_OF = 44672
L_GATE = 45632
L_RED = 0
L_FR = 46080
L_KR = 51712
LDS_BYTES = L_KR + 16 * 6144

S_WG = 2
S_H, S_S, S_W = 3, 62, 63
SRD_K, SRD_V, SRD_WQ, SRD_WO, SRD_WD, SRD_WS, SRD_X, SRD_DBG = 4, 8, 12, 16, 20, 24, 28, 32
KA0 = 36
S_MHI = 64
S_T0, S_T1, S_T2, S_T3 = 66, 67, 68, 69
S_EX = 70
S_BASE = 72
S_NA, S_NB = 73, 74
S_IT = 75
S_SCALE, S_LOG2E = 76, 77
S_WSB = 78
S_M480 = 80
S_C1 = 82
SRD_GW, SRD_OUT = 84, 88
S_WGP, S_WUP = 92, 94
S_ST = 96
S_KL = 79
S_T4 = 100
S_NV = 101

V_T, V_LANE, V_G, V_I, V_OK, V_OV1, V_OV2 = 0, 1, 2, 3, 4, 5, 6
A = [7, 8, 9, 10, 11, 12, 13, 14, 15]
KA, VA, KB, VB = 16, 40, 64, 88
VS = [40, 64, 88, 204]
STG = 64
XR = 192
GU = 208
XG = 216
AQ = 220
AG = 228
V_SL, V_C, V_SL2, V_C2 = 236, 237, 238, 239
V_NEG = 240
QF = 112
ACC = 136
WR = 152
D = 172
P = 176
VM, VL = 180, 181
T2 = 182
V_OW = 200
V_KRD = 202
BIG = 16


def srd(dst, lo, hi, nbytes):
    I(f"s_mov_b32 s{dst}, s{lo}")
    I(f"s_and_b32 s{dst+1}, s{hi}, 0xffff")
    I(f"s_mov_b32 s{dst+2}, {nbytes}")
    I(f"s_mov_b32 s{dst+3}, 0x00020000")


def divmod_const(vq, vr, vsrc, d, magic):
    I(f"v_mul_u32_u24 v{vq}, {magic}, v{vsrc}")
    I(f"v_lshrrev_b32 v{vq}, 16, v{vq}")
    I(f"v_mul_u32_u24 v{vr}, {d}, v{vq}")
    I(f"v_sub_u32 v{vr}, v{vsrc}, v{vr}")


stamp_n = [0]
def stamp(tag):
    if not STAMP:
        return
    n = stamp_n[0]; stamp_n[0] += 1
    assert n < 13
    I(f"s_memrealtime s[{KA0+2*n}:{KA0+2*n+1}]")
    I("s_waitcnt lgkmcnt(0)")


def dump_stamps():
    if not STAMP:
        return
    if DBGST:
        I(f"s_cmp_lg_u32 s{S_WG}, 0")
        I("s_cbranch_scc1 L_end")
        I(f"s_cmp_lg_u32 s{S_W}, 0")
        I("s_cbranch_scc1 L_end")
        I(f"v_mov_b32 v252, 0")
        I(f"v_cmp_eq_u32 vcc, 0, v{V_LANE}")
        I(f"s_and_saveexec_b64 s[{S_ST}:{S_ST+1}], vcc")
        for n in range(stamp_n[0]):
            I(f"s_sub_u32 s{S_ST+2}, s{KA0+2*n}, s{KA0}")
            I(f"v_mov_b32 v250, s{S_ST+2}")
            I(f"buffer_store_dword v250, v252, s[{SRD_DBG}:{SRD_DBG+3}], 0 offen offset:{4*n}")
            I("s_nop 2")
        return
    I(f"s_lshl_b32 s{S_ST}, s{S_WG}, 3")
    I(f"s_add_u32 s{S_ST}, s{S_ST}, s{S_W}")
    I(f"s_lshl_b32 s{S_ST}, s{S_ST}, 8")
    I(f"s_add_u32 s{S_ST}, s{S_ST}, {0x1000000}")
    I(f"v_mov_b32 v252, s{S_ST}")
    I(f"v_cmp_eq_u32 vcc, 0, v{V_LANE}")
    I(f"s_and_saveexec_b64 s[{S_ST}:{S_ST+1}], vcc")
    for n in range(stamp_n[0]):
        I(f"v_mov_b32 v250, s{KA0+2*n}")
        I(f"v_mov_b32 v251, s{KA0+2*n+1}")
        I(f"buffer_store_dwordx2 v[250:251], v252, s[{SRD_WS}:{SRD_WS+3}], 0 offen offset:{8*n}")
        I("s_nop 2")


def fma_chunk(acc, data, scal, tmp, first=False):
    for j in range(4):
        I(f"v_lshlrev_b32 v{tmp}, 16, v{data+j}")
        I(f"v_and_b32 v{tmp+1}, 0xffff0000, v{data+j}")
        op = "v_mul_f32" if first else "v_fmac_f32"
        I(f"{op} v{acc+2*j}, v{scal}, v{tmp}")
        I(f"{op} v{acc+2*j+1}, v{scal}, v{tmp+1}")


def canon(v, tmp):
    I(f"v_cmp_eq_u32 vcc, -1, v{v}")
    I(f"v_mov_b32 v{tmp}, 0x7fc00000")
    I("s_nop 1")
    I(f"v_cndmask_b32 v{v}, v{v}, v{tmp}, vcc")


def rbf(v, tmp):
    I(f"v_cvt_pk_bf16_f32 v{tmp}, v{v}, v{v}")
    I(f"v_lshlrev_b32 v{v}, 16, v{tmp}")


def load_k(slot, soff):
    x = 0 if slot == KA else 1
    I(f"s_add_u32 m0, s{S_KL}, {x*6144}")
    I(f"s_add_u32 s{S_T4}, s{soff}, 4096")
    for j in range(4):
        I(f"buffer_load_dwordx4 v{V_OK}, s[{SRD_K}:{SRD_K+3}], s{soff} offen offset:{j*1024}{NT} lds")
    I(f"s_add_u32 m0, s{S_KL}, {x*6144 + 4096}")
    I("s_nop 0")
    for j in range(2):
        I(f"buffer_load_dwordx4 v{V_OK}, s[{SRD_K}:{SRD_K+3}], s{S_T4} offen offset:{j*1024}{NT} lds")


def load_v(slot, soff):
    for r in range(4):
        I(f"buffer_load_dwordx4 v[{slot+4*r}:{slot+4*r+3}], v{V_OV1}, s[{SRD_V}:{SRD_V+3}], s{soff} offen offset:{r*384}{NT}")
    for r in range(2):
        I(f"buffer_load_dwordx4 v[{slot+16+4*r}:{slot+16+4*r+3}], v{V_OV2}, s[{SRD_V}:{SRD_V+3}], s{soff} offen offset:{r*768}{NT}")


def poll_check(regs, lab_retry, lab_done, tmp):
    cur = regs[0]
    rest = list(regs[1:])
    while rest:
        if len(rest) >= 2:
            I(f"v_max3_u32 v{tmp}, v{cur}, v{rest[0]}, v{rest[1]}")
            rest = rest[2:]
        else:
            I(f"v_max_u32 v{tmp}, v{cur}, v{rest[0]}")
            rest = rest[1:]
        cur = tmp
    I(f"v_cmp_eq_u32 vcc, -1, v{cur}")
    I("s_nop 4")
    I(f"s_cbranch_vccz {lab_done}")
    I(f"s_sleep {SL}")
    I(f"s_branch {lab_retry}")


def mask_lt(n, save=S_EX):
    I(f"v_cmp_gt_u32 vcc, {n}, v{V_T}")
    I(f"s_and_saveexec_b64 s[{save}:{save+1}], vcc")


def unmask(save=S_EX):
    I(f"s_mov_b64 exec, s[{save}:{save+1}]")


e(HEADER.rstrip("\n"))
e("; Override launch geometry by editing the next line (default: block=256,")
e(f"; @launch grid=(256,1,1) block=(512,1,1) lds={LDS_BYTES}")
e('.amdgcn_target "amdgcn-amd-amdhsa--gfx950"')
e(".text")
e(f".globl {NAME}_kernel")
e(".p2align 8")
e(f".type {NAME}_kernel,@function")
e(f"{NAME}_kernel:")
I(f"s_cmp_ge_u32 s{S_WG}, 256")
I("s_cbranch_scc1 L_end")
I(f"s_load_dwordx16 s[{KA0}:{KA0+15}], s[0:1], 0")
I(f"s_load_dwordx8 s[{KA0+16}:{KA0+23}], s[0:1], 64")
I(f"s_load_dwordx2 s[{KA0+24}:{KA0+25}], s[0:1], 96")
a0, a1, a2, a3, a4, a5, a6, a7, a8 = A
I(f"v_and_b32 v{V_LANE}, 63, v{V_T}")
I(f"v_lshrrev_b32 v{a0}, 6, v{V_T}")
I(f"v_lshrrev_b32 v{V_G}, 4, v{V_LANE}")
I(f"v_and_b32 v{V_I}, 15, v{V_LANE}")
I(f"v_readfirstlane_b32 s{S_W}, v{a0}")
if "--shift" in sys.argv:
    I(f"s_xor_b32 s{S_WG}, s{S_WG}, 1")
I(f"s_and_b32 s{S_H}, s{S_WG}, 31")
I(f"s_lshr_b32 s{S_S}, s{S_WG}, 5")
I(f"s_lshl_b32 s{S_WSB}, s{S_WG}, 12")
I(f"v_mul_u32_u24 v{V_KRD}, 384, v{V_I}")
I(f"v_lshl_add_u32 v{V_KRD}, v{V_G}, 4, v{V_KRD}")
I(f"v_lshlrev_b32 v{V_OK}, 4, v{V_LANE}")
I(f"s_mul_i32 s{S_KL}, s{S_W}, 12288")
I(f"s_add_u32 s{S_KL}, s{S_KL}, {L_KR}")
I(f"v_add_u32 v{V_KRD}, s{S_KL}, v{V_KRD}")
I(f"v_mul_u32_u24 v{a1}, 1536, v{V_G}")
I(f"v_lshl_add_u32 v{V_OV1}, v{V_I}, 4, v{a1}")
I(f"v_lshrrev_b32 v{a2}, 3, v{V_I}")
I(f"v_mul_u32_u24 v{a2}, 384, v{a2}")
I(f"v_and_b32 v{a3}, 7, v{V_I}")
I(f"v_lshlrev_b32 v{a3}, 4, v{a3}")
I(f"v_add3_u32 v{V_OV2}, v{a1}, v{a2}, v{a3}")
I(f"v_add_u32 v{V_OV2}, 256, v{V_OV2}")
I(f"v_cmp_lt_u32 s[{S_MHI}:{S_MHI+1}], 7, v{V_I}")
I(f"v_cmp_gt_u32 vcc, 480, v{V_T}")
I(f"s_mov_b64 s[{S_M480}:{S_M480+1}], vcc")
I(f"s_mov_b32 s{S_SCALE}, 0x3d93cd3a")
I(f"s_mov_b32 s{S_LOG2E}, 0x3fb8aa3b")
divmod_const(V_SL, V_C, V_T, 24, 2731)
divmod_const(V_SL2, V_C2, V_T, 12, 5462)
for k in range(4):
    I(f"v_mov_b32 v{V_NEG+k}, -1")
I("s_waitcnt lgkmcnt(0)")
kp = lambda n: (KA0 + 2 * n, KA0 + 2 * n + 1)
srd(SRD_WS, *kp(12), WS_BYTES)
srd(SRD_X, *kp(0), 1280)
srd(SRD_WQ, *kp(3), WQ_BYTES)
srd(SRD_K, *kp(1), KV_BYTES)
srd(SRD_V, *kp(2), KV_BYTES)
srd(SRD_WO, *kp(4), WO_BYTES)
srd(SRD_WD, *kp(8), WD_BYTES)
srd(SRD_GW, *kp(9), 1280)
srd(SRD_OUT, *kp(10), 1280)
srd(SRD_DBG, *kp(11), 256)
I(f"s_mov_b64 s[{S_WGP}:{S_WGP+1}], s[{kp(6)[0]}:{kp(6)[1]}]")
I(f"s_mov_b64 s[{S_WUP}:{S_WUP+1}], s[{kp(7)[0]}:{kp(7)[1]}]")
stamp("start")
I(f"s_mul_i32 s{S_BASE}, s{S_H}, 3145728")
I(f"s_mul_i32 s{S_T0}, s{S_S}, 393216")
I(f"s_add_u32 s{S_BASE}, s{S_BASE}, s{S_T0}")
I(f"s_mul_i32 s{S_T0}, s{S_W}, {WSTRIDE}")
I(f"s_add_u32 s{S_BASE}, s{S_BASE}, s{S_T0}")

if "--codepf" in sys.argv:
    I(f"s_cmp_lg_u32 s{S_W}, 7")
    I("s_cbranch_scc1 L_nopf")
    I(f"s_getpc_b64 s[{S_C1}:{S_C1+1}]")
    I(f"v_lshlrev_b32 v{a0}, 4, v{V_LANE}")
    for k in range(11):
        if k % 4 == 0 and k:
            I(f"v_add_u32 v{a0}, 4096, v{a0}")
        I(f"global_load_dwordx4 v[{112+4*k}:{115+4*k}], v{a0}, s[{S_C1}:{S_C1+1}] offset:{(k%4)*1024}")
    e("L_nopf:")
I(f"v_mov_b32 v{a8}, {OOB}")
I(f"v_lshl_add_u32 v{a0}, v{V_T}, 4, s{S_WSB}")
I(f"v_cmp_gt_u32 vcc, 97, v{V_T}")
I(f"v_mov_b32 v{a2}, 0")
I(f"v_mov_b32 v{a3}, 0")
I(f"v_cndmask_b32 v{a0}, v{a8}, v{a0}, vcc")
I(f"buffer_store_dwordx4 v[{V_NEG}:{V_NEG+3}], v{a0}, s[{SRD_WS}:{SRD_WS+3}], 0 offen offset:{OP_OFF} sc1")
I(f"v_mov_b32 v{a1}, {L_FLAG}")
I(f"ds_write_b64 v{a1}, v[{a2}:{a3}]") if a2 % 2 == 0 else (I(f"ds_write_b32 v{a1}, v{a2}"), I(f"ds_write_b32 v{a1}, v{a2} offset:4"), I(f"ds_write_b32 v{a1}, v{a2} offset:8"))
I(f"s_mul_i32 s{S_T0}, s{S_S}, 160")
I(f"v_lshlrev_b32 v{a1}, 3, v{V_SL}")
I(f"v_cndmask_b32 v{a1}, v{a8}, v{a1}, s[{S_M480}:{S_M480+1}]")
I(f"buffer_load_dwordx2 v[{XR}:{XR+1}], v{a1}, s[{SRD_X}:{SRD_X+3}], s{S_T0} offen")
I(f"v_lshlrev_b32 v{a2}, 2, v{V_SL2}")
I(f"v_cndmask_b32 v{a2}, v{a8}, v{a2}, s[{S_M480}:{S_M480+1}]")
I(f"buffer_load_dword v{XG}, v{a2}, s[{SRD_X}:{SRD_X+3}], s{S_T0} offen")
I(f"v_mul_u32_u24 v{a0}, {4*12288 // 16}, v{V_SL}")
I(f"v_add_u32 v{a0}, v{a0}, v{V_C}")
I(f"v_lshlrev_b32 v{a0}, 4, v{a0}")
I(f"v_cndmask_b32 v{a0}, v{a8}, v{a0}, s[{S_M480}:{S_M480+1}]")
I(f"s_mul_i32 s{S_T0}, s{S_H}, 384")
I(f"s_mul_i32 s{S_T1}, s{S_S}, {80*12288}")
I(f"s_add_u32 s{S_T0}, s{S_T0}, s{S_T1}")
for k in range(4):
    I(f"buffer_load_dwordx4 v[{STG+4*k}:{STG+4*k+3}], v{a0}, s[{SRD_WQ}:{SRD_WQ+3}], s{S_T0} offen{NTW}")
    if k != 3:
        I(f"s_add_u32 s{S_T0}, s{S_T0}, 12288")
I(f"v_min_u32 v{a3}, 39, v{V_SL2}")
I(f"v_cmp_gt_u32 vcc, 6, v{V_C2}")
I(f"v_subrev_u32 v{a4}, 6, v{V_C2}")
I(f"v_mov_b32 v{a5}, s{S_WUP}")
I(f"v_mov_b32 v{a6}, s{S_WUP+1}")
I(f"v_cndmask_b32 v{a4}, v{a4}, v{V_C2}, vcc")
I(f"v_mov_b32 v{a0}, s{S_WGP}")
I(f"v_mov_b32 v{a1}, s{S_WGP+1}")
I(f"v_cndmask_b32 v{a5}, v{a5}, v{a0}, vcc")
I(f"v_cndmask_b32 v{a6}, v{a6}, v{a1}, vcc")
I(f"s_mul_i32 s{S_T0}, s{S_S}, {80*3072}")
I(f"s_mul_i32 s{S_T1}, s{S_H}, 96")
I(f"s_add_u32 s{S_T0}, s{S_T0}, s{S_T1}")
I(f"v_mul_u32_u24 v{a3}, 6144, v{a3}")
I(f"v_lshl_add_u32 v{a3}, v{a4}, 4, v{a3}")
I(f"v_add_u32 v{a3}, s{S_T0}, v{a3}")
I(f"v_add_co_u32 v244, vcc, v{a5}, v{a3}")
I("s_nop 1")
I(f"v_addc_co_u32 v245, vcc, 0, v{a6}, vcc")
I(f"global_load_dwordx4 v[{GU}:{GU+3}], v[244:245], off{NTW}")
I(f"global_load_dwordx4 v[{GU+4}:{GU+7}], v[244:245], off offset:3072{NTW}")
divmod_const(V_OW + 1, a3, V_T, 10, 6554)
I(f"v_mul_u32_u24 v{V_OW}, 1280, v{V_OW+1}")
I(f"v_lshl_add_u32 v{V_OW}, v{a3}, 4, v{V_OW}")
I(f"v_cndmask_b32 v{V_OW}, v{a8}, v{V_OW}, s[{S_M480}:{S_M480+1}]")
I(f"s_add_u32 s{S_NA}, s{S_BASE}, {TSTRIDE}")
I(f"s_add_u32 s{S_NB}, s{S_BASE}, {2*TSTRIDE}")
I(f"s_add_u32 s{S_NV}, s{S_BASE}, {3*TSTRIDE}")
def load_w():
    I(f"s_mul_i32 s{S_T0}, s{S_H}, {192*1280}")
    I(f"s_mul_i32 s{S_T1}, s{S_S}, 160")
    I(f"s_add_u32 s{S_T0}, s{S_T0}, s{S_T1}")
    for i in range(4):
        I(f"buffer_load_dwordx4 v[{WR+4*i}:{WR+4*i+3}], v{V_OW}, s[{SRD_WO}:{SRD_WO+3}], s{S_T0} offen{NTW}")
        if i != 3:
            I(f"s_add_u32 s{S_T0}, s{S_T0}, {48*1280}")
    I(f"s_mul_i32 s{S_T0}, s{S_H}, {48*1280}")
    I(f"s_add_u32 s{S_T0}, s{S_T0}, s{S_T1}")
    I(f"buffer_load_dwordx4 v[{WR+16}:{WR+19}], v{V_OW}, s[{SRD_WD}:{SRD_WD+3}], s{S_T0} offen{NTW}")
if "--early" in sys.argv:
    I(f"s_cmp_lt_u32 s{S_W}, 5")
    I("s_cbranch_scc1 L_late")
    load_k(KA, S_BASE)
    load_v(VS[0], S_BASE)
    I("s_waitcnt vmcnt(12)")
    I("s_branch L_late2")
    e("L_late:")
    I("s_waitcnt vmcnt(0)")
    load_k(KA, S_BASE)
    e("L_late2:")
else:
    I("s_waitcnt vmcnt(0)")
    load_k(KA, S_BASE)
for k in range(4):
    xs = XR + k // 2
    if k % 2 == 0:
        I(f"v_lshlrev_b32 v{a1}, 16, v{xs}")
    else:
        I(f"v_and_b32 v{a1}, 0xffff0000, v{xs}")
    fma_chunk(AQ, STG + 4 * k, a1, a2, first=(k == 0))
I(f"v_lshlrev_b32 v{a1}, 16, v{XG}")
fma_chunk(AG, GU, a1, a2, first=True)
I(f"v_and_b32 v{a1}, 0xffff0000, v{XG}")
fma_chunk(AG, GU + 4, a1, a2)
I(f"v_mul_u32_u24 v{a1}, 768, v{V_SL}")
I(f"v_lshl_add_u32 v{a1}, v{V_C}, 5, v{a1}")
I(f"v_mul_u32_u24 v{a2}, 384, v{V_SL2}")
I(f"v_lshl_add_u32 v{a2}, v{V_C2}, 5, v{a2}")
I(f"s_mov_b64 s[{S_EX}:{S_EX+1}], exec")
I(f"s_mov_b64 exec, s[{S_M480}:{S_M480+1}]")
I(f"ds_write_b128 v{a1}, v[{AQ}:{AQ+3}] offset:{L_QR}")
I(f"ds_write_b128 v{a1}, v[{AQ+4}:{AQ+7}] offset:{L_QR+16}")
I(f"ds_write_b128 v{a2}, v[{AG}:{AG+3}] offset:{L_GR}")
I(f"ds_write_b128 v{a2}, v[{AG+4}:{AG+7}] offset:{L_GR+16}")
unmask()
I("s_waitcnt lgkmcnt(0)")
I("s_barrier")
stamp("b1")
I(f"s_cmp_lt_u32 s{S_W}, 5")
I("s_cbranch_scc1 L_a_wave")
if "--early" not in sys.argv:
    load_v(VS[0], S_BASE)
load_k(KB, S_NA)
load_v(VS[1], S_NA)
load_v(VS[2], S_NB)
load_v(VS[3], S_NV)
I("s_branch L_a_done")
e("L_a_wave:")
qregs = [T2 + sl if sl < 18 else 244 + sl - 18 for sl in range(20)]
I(f"v_lshlrev_b32 v{a1}, 2, v{V_T}")
I(f"s_cmp_ge_u32 s{S_W}, 3")
I("s_cbranch_scc1 L_a_notq")
for sl in range(20):
    I(f"ds_read_b32 v{qregs[sl]}, v{a1} offset:{L_QR + sl*768}")
I("s_waitcnt lgkmcnt(0)")
I(f"v_add_f32 v{a2}, v{qregs[0]}, v{qregs[1]}")
for r in qregs[2:]:
    I(f"v_add_f32 v{a2}, v{a2}, v{r}")
I("s_branch L_a_pub")
e("L_a_notq:")
I(f"v_subrev_u32 v{a3}, 768, v{a1}")
I(f"v_min_u32 v{a3}, 380, v{a3}")
for half in range(2):
    for sl in range(20):
        I(f"ds_read_b32 v{qregs[sl]}, v{a3} offset:{L_GR + (half*20+sl)*384}")
    I("s_waitcnt lgkmcnt(0)")
    if half == 0:
        I(f"v_add_f32 v{a2}, v{qregs[0]}, v{qregs[1]}")
        rest = qregs[2:]
    else:
        rest = qregs
    for r in rest:
        I(f"v_add_f32 v{a2}, v{a2}, v{r}")
e("L_a_pub:")
I(f"v_cmp_gt_u32 vcc, 288, v{V_T}")
I(f"v_add_u32 v{a3}, s{S_WSB}, v{a1}")
I("s_nop 0")
I(f"v_cndmask_b32 v{a3}, v{a8}, v{a3}, vcc")
I(f"v_cndmask_b32 v{a5}, v{a8}, v{a1}, vcc")
I(f"buffer_store_dword v{a2}, v{a3}, s[{SRD_WS}:{SRD_WS+3}], 0 offen offset:{QP_OFF} sc1")
I(f"v_mov_b32 v{a1}, {L_FLAG}")
I(f"v_mov_b32 v{a2}, 1")
I(f"s_lshl_b32 s{S_T1}, s{S_H}, 2")
I(f"v_mov_b32 v{a4}, s{S_T1}")
I("s_waitcnt vmcnt(0)")
stamp("ack")
I(f"v_cmp_eq_u32 vcc, 0, v{V_LANE}")
I(f"s_and_saveexec_b64 s[{S_EX}:{S_EX+1}], vcc")
I(f"ds_add_rtn_u32 v{a3}, v{a1}, v{a2}")
I("s_waitcnt lgkmcnt(0)")
I(f"v_readfirstlane_b32 s{S_T0}, v{a3}")
I(f"s_cmp_lg_u32 s{S_T0}, 4")
I("s_cbranch_scc1 L_a_noatom")
I(f"v_mov_b32 v{a3}, 1")
I(f"buffer_atomic_add v{a3}, v{a4}, s[{SRD_DBG}:{SRD_DBG+3}], 0 offen offset:{CNT_OFF} sc0 sc1")
I("s_waitcnt vmcnt(0)")
I(f"v_readfirstlane_b32 s{S_T0}, v{a3}")
I(f"s_cmp_lg_u32 s{S_T0}, 7")
I("s_cbranch_scc1 L_a_noatom")
I(f"s_mov_b64 exec, 0xff")
I(f"s_lshl_b32 s{S_T0}, s{S_H}, 12")
I(f"v_lshlrev_b32 v{a3}, 17, v{V_LANE}")
I(f"buffer_store_dword v{a2}, v{a3}, s[{SRD_WS}:{SRD_WS+3}], s{S_T0} offen offset:{FLAG_OFF} sc1")
e("L_a_noatom:")
unmask()
I(f"s_cmp_lg_u32 s{S_W}, 0")
I("s_cbranch_scc1 L_a_others")
I(f"v_mov_b32 v{a4}, s{S_WSB}")
e("L_a_gpoll:")
I(f"buffer_load_dword v{a3}, v{a4}, s[{SRD_WS}:{SRD_WS+3}], 0 offen offset:{FLAG_OFF} sc1")
I("s_waitcnt vmcnt(0)")
I(f"v_readfirstlane_b32 s{S_T0}, v{a3}")
I(f"s_cmp_eq_u32 s{S_T0}, 1")
I("s_cbranch_scc1 L_a_gok")
I("s_sleep 2")
I("s_branch L_a_gpoll")
e("L_a_gok:")
I(f"ds_write_b32 v{a1}, v{a2} offset:4")
I("s_branch L_a_gather")
e("L_a_others:")
load_v(VS[0], S_BASE)
load_k(KB, S_NA)
load_v(VS[1], S_NA)
e("L_a_lspin:")
I(f"ds_read_b32 v{a3}, v{a1} offset:4")
I("s_waitcnt lgkmcnt(0)")
I(f"v_readfirstlane_b32 s{S_T0}, v{a3}")
I(f"s_cmp_lg_u32 s{S_T0}, 0")
I("s_cbranch_scc1 L_a_gather")
I("s_sleep 1")
I("s_branch L_a_lspin")
e("L_a_gather:")
stamp("flag")
I(f"s_lshl_b32 s{S_T0}, s{S_H}, 12")
for p in range(8):
    I(f"buffer_load_dword v{T2+p}, v{a5}, s[{SRD_WS}:{SRD_WS+3}], s{S_T0} offen offset:{QP_OFF} sc1")
    if p != 7:
        I(f"s_add_u32 s{S_T0}, s{S_T0}, {32*4096}")
I(f"s_cmp_lg_u32 s{S_W}, 0")
I("s_cbranch_scc1 L_a_g2")
load_v(VS[0], S_BASE)
load_k(KB, S_NA)
load_v(VS[1], S_NA)
load_v(VS[2], S_NB)
load_v(VS[3], S_NV)
I("s_waitcnt vmcnt(30)")
I("s_branch L_a_g3")
e("L_a_g2:")
load_v(VS[2], S_NB)
load_v(VS[3], S_NV)
I("s_waitcnt vmcnt(12)")
e("L_a_g3:")
I(f"v_add_f32 v{a2}, v{T2}, v{T2+1}")
for p in range(2, 8):
    I(f"v_add_f32 v{a2}, v{a2}, v{T2+p}")
I(f"v_cvt_pk_bf16_f32 v{a2}, v{a2}, v{a2}")
I(f"s_cmp_ge_u32 s{S_W}, 3")
I("s_cbranch_scc1 L_a_gus")
I(f"v_lshlrev_b32 v{a3}, 1, v{V_T}")
I(f"ds_write_b16 v{a3}, v{a2} offset:{L_QB}")
if "--noB2" in sys.argv:
    I(f"v_mov_b32 v{a1}, {L_FLAG}")
    I(f"v_mov_b32 v{a2}, 1")
    I("s_waitcnt lgkmcnt(0)")
    I(f"s_mov_b64 s[{S_EX}:{S_EX+1}], exec")
    I("s_mov_b64 exec, 1")
    I(f"ds_add_u32 v{a1}, v{a2} offset:8")
    unmask()
I("s_branch L_a_done")
e("L_a_gus:")
I(f"v_lshlrev_b32 v{a2}, 16, v{a2}")
I(f"v_lshlrev_b32 v{a3}, 2, v{V_T}")
I(f"v_cmp_gt_u32 vcc, 288, v{V_T}")
I(f"s_and_saveexec_b64 s[{S_EX}:{S_EX+1}], vcc")
I(f"ds_write_b32 v{a3}, v{a2} offset:{L_GUR - 768}")
unmask()
e("L_a_done:")
if "--noB2" in sys.argv:
    I(f"v_mov_b32 v{a1}, {L_FLAG}")
    e("L_a_qspin:")
    I(f"ds_read_b32 v{a3}, v{a1} offset:8")
    I("s_waitcnt lgkmcnt(0)")
    I(f"v_readfirstlane_b32 s{S_T0}, v{a3}")
    I(f"s_cmp_eq_u32 s{S_T0}, 3")
    I("s_cbranch_scc1 L_a_qok")
    I("s_sleep 1")
    I("s_branch L_a_qspin")
    e("L_a_qok:")
else:
    I("s_waitcnt lgkmcnt(0)")
    I("s_barrier")
stamp("b2")
I(f"v_lshlrev_b32 v{a1}, 4, v{V_G}")
for j in range(6):
    I(f"ds_read_b128 v[{QF+4*j}:{QF+4*j+3}], v{a1} offset:{L_QB + 64*j}")
for k in range(16):
    I(f"v_mov_b32 v{ACC+k}, 0")
I(f"v_mov_b32 v{VM}, 0xff7fffff")
I(f"v_mov_b32 v{VL}, 0")
I(f"s_mov_b32 s{S_IT}, 0")
I(f"s_add_u32 s{S_NA}, s{S_BASE}, {2*TSTRIDE}")
I(f"s_add_u32 s{S_NV}, s{S_BASE}, {4*TSTRIDE}")
I("s_waitcnt lgkmcnt(0)")

def tile(KX, VX, soff, soffv):
    I("s_waitcnt vmcnt(18)")
    x = 0 if KX == KA else 1
    for j in range(6):
        I(f"ds_read_b128 v[{KA+4*j}:{KA+4*j+3}], v{V_KRD} offset:{x*6144 + j*64}")
    I("s_waitcnt lgkmcnt(0)")
    load_k(KX, soff)
    for j in range(6):
        c = "0" if j == 0 else f"v[{D}:{D+3}]"
        I(f"v_mfma_f32_16x16x32_bf16 v[{D}:{D+3}], v[{KA+4*j}:{KA+4*j+3}], v[{QF+4*j}:{QF+4*j+3}], {c}")
    I("s_nop 7")
    t0, t1 = T2, T2 + 1
    s = [T2 + 2, T2 + 3, T2 + 4, T2 + 5]
    I(f"v_cvt_pk_bf16_f32 v{t0}, v{D}, v{D+1}")
    I(f"v_cvt_pk_bf16_f32 v{t1}, v{D+2}, v{D+3}")
    I(f"v_lshlrev_b32 v{s[0]}, 16, v{t0}")
    I(f"v_and_b32 v{s[1]}, 0xffff0000, v{t0}")
    I(f"v_lshlrev_b32 v{s[2]}, 16, v{t1}")
    I(f"v_and_b32 v{s[3]}, 0xffff0000, v{t1}")
    for r in range(4):
        I(f"v_mul_f32 v{s[r]}, s{S_SCALE}, v{s[r]}")
    I(f"v_cvt_pk_bf16_f32 v{t0}, v{s[0]}, v{s[1]}")
    I(f"v_cvt_pk_bf16_f32 v{t1}, v{s[2]}, v{s[3]}")
    I(f"v_lshlrev_b32 v{s[0]}, 16, v{t0}")
    I(f"v_and_b32 v{s[1]}, 0xffff0000, v{t0}")
    I(f"v_lshlrev_b32 v{s[2]}, 16, v{t1}")
    I(f"v_and_b32 v{s[3]}, 0xffff0000, v{t1}")
    for r in range(4):
        I(f"v_mul_f32 v{s[r]}, s{S_LOG2E}, v{s[r]}")
    mn, al = T2 + 6, T2 + 7
    I(f"v_max3_f32 v{mn}, v{s[0]}, v{s[1]}, v{s[2]}")
    I(f"v_max3_f32 v{mn}, v{mn}, v{s[3]}, v{VM}")
    I(f"v_sub_f32 v{al}, v{VM}, v{mn}")
    for r in range(4):
        I(f"v_sub_f32 v{P+r}, v{s[r]}, v{mn}")
    I(f"v_exp_f32 v{al}, v{al}")
    for r in range(4):
        I(f"v_exp_f32 v{P+r}, v{P+r}")
    I(f"v_mov_b32 v{VM}, v{mn}")
    for k in range(16):
        I(f"v_mul_f32 v{ACC+k}, v{al}, v{ACC+k}")
    I(f"v_add_f32 v{t0}, v{P}, v{P+1}")
    I(f"v_add_f32 v{t1}, v{P+2}, v{P+3}")
    I(f"v_add_f32 v{t0}, v{t0}, v{t1}")
    I(f"v_fma_f32 v{VL}, v{VL}, v{al}, v{t0}")
    pa, pb = T2 + 8, T2 + 9
    I(f"v_cndmask_b32 v{pa}, v{P}, v{P+1}, s[{S_MHI}:{S_MHI+1}]")
    I(f"v_cndmask_b32 v{pb}, v{P+2}, v{P+3}, s[{S_MHI}:{S_MHI+1}]")
    I("s_waitcnt vmcnt(18)")
    for r in range(4):
        fma_chunk(ACC, VX + 4 * r, P + r, T2 + 10)
    fma_chunk(ACC + 8, VX + 16, pa, T2 + 10)
    fma_chunk(ACC + 8, VX + 20, pb, T2 + 10)
    load_v(VX, soffv)

e("L_loop:")
for u in range(4):
    I(f"s_cmp_eq_u32 s{S_IT}, 0")
    if u < 2:
        I(f"s_mov_b32 s{S_T0}, s{S_NA}")
    else:
        I(f"s_cselect_b32 s{S_T0}, s{S_NA}, {OOB}")
    I(f"s_cselect_b32 s{S_T1}, s{S_NV}, {OOB}")
    tile(KA if u % 2 == 0 else KB, VS[u], S_T0, S_T1)
    I(f"s_add_u32 s{S_NA}, s{S_NA}, {TSTRIDE}")
    I(f"s_add_u32 s{S_NV}, s{S_NV}, {TSTRIDE}")
I(f"s_add_u32 s{S_IT}, s{S_IT}, 1")
I(f"s_cmp_lt_u32 s{S_IT}, 2")
I("s_cbranch_scc1 L_loop")
stamp("loop_end")
if WMODE == "loopend":
    load_w()

I(f"s_lshl_b32 s{S_T0}, s{S_W}, 2")
I(f"v_add_u32 v{a1}, s{S_T0}, v{V_G}")
I(f"v_mul_u32_u24 v{a1}, 1040, v{a1}")
I(f"v_lshl_add_u32 v{a2}, v{V_I}, 5, v{a1}")
I(f"ds_write_b128 v{a2}, v[{ACC}:{ACC+3}] offset:{L_PART}")
I(f"ds_write_b128 v{a2}, v[{ACC+4}:{ACC+7}] offset:{L_PART+16}")
I(f"ds_write_b128 v{a2}, v[{ACC+8}:{ACC+11}] offset:{L_PART+512}")
I(f"ds_write_b128 v{a2}, v[{ACC+12}:{ACC+15}] offset:{L_PART+528}")
I(f"v_cmp_eq_u32 vcc, 0, v{V_I}")
I(f"s_and_saveexec_b64 s[{S_EX}:{S_EX+1}], vcc")
I(f"ds_write_b64 v{a1}, v[{VM}:{VM+1}] offset:{L_PART+1024}")
unmask()
I(f"s_cmp_lg_u32 s{S_W}, {5 if '--t3w5' in sys.argv else 1}")
I("s_cbranch_scc1 L_t3_done")
I(f"v_lshlrev_b32 v{a1}, 2, v{V_LANE}")
e("L_t3_poll:")
I(f"buffer_load_dword v{a2}, v{a1}, s[{SRD_DBG}:{SRD_DBG+3}], 0 offen offset:{CNT_OFF} sc1")
I("s_waitcnt vmcnt(0)")
I(f"v_cmp_gt_u32 vcc, 8, v{a2}")
I(f"v_cmp_gt_u32 s[{S_C1}:{S_C1+1}], 32, v{V_LANE}")
I("s_nop 4")
I(f"s_and_b64 s[{S_C1}:{S_C1+1}], s[{S_C1}:{S_C1+1}], vcc")
I("s_cbranch_scc0 L_t3_done")
I("s_sleep 4")
I("s_branch L_t3_poll")
e("L_t3_done:")
I("s_waitcnt vmcnt(0) lgkmcnt(0)")
I("s_barrier")
stamp("b3")
if WMODE == "b3":
    load_w()
I(f"s_cmp_ge_u32 s{S_W}, 3")
I("s_cbranch_scc1 L_t_gu")
I(f"v_mov_b32 v{a1}, 0")
for p in range(32):
    I(f"ds_read_b64 v[{BIG+2*p}:{BIG+2*p+1}], v{a1} offset:{L_PART + p*1040 + 1024}")
I("s_waitcnt lgkmcnt(0)")
I(f"v_max3_f32 v{a2}, v{BIG}, v{BIG+2}, v{BIG+4}")
for p in range(3, 31, 2):
    I(f"v_max3_f32 v{a2}, v{a2}, v{BIG+2*p}, v{BIG+2*p+2}")
I(f"v_max_f32 v{a2}, v{a2}, v{BIG+62}")
for p in range(32):
    I(f"v_sub_f32 v{BIG+2*p}, v{BIG+2*p}, v{a2}")
for p in range(32):
    I(f"v_exp_f32 v{BIG+2*p}, v{BIG+2*p}")
I("s_nop 0")
I(f"v_mul_f32 v{a3}, v{BIG}, v{BIG+1}")
for p in range(1, 32):
    I(f"v_fmac_f32 v{a3}, v{BIG+2*p}, v{BIG+2*p+1}")
I(f"v_lshlrev_b32 v{a1}, 2, v{V_T}")
I(f"s_cmp_eq_u32 s{S_W}, 2")
I("s_cbranch_scc1 L_t2_hi")
for p in range(32):
    I(f"ds_read_b32 v{BIG+2*p+1}, v{a1} offset:{L_PART + p*1040}")
I("s_waitcnt lgkmcnt(0)")
I(f"v_mul_f32 v{a4}, v{BIG}, v{BIG+1}")
for p in range(1, 32):
    I(f"v_fmac_f32 v{a4}, v{BIG+2*p}, v{BIG+2*p+1}")
I("s_branch L_t2_pub")
e("L_t2_hi:")
for p in range(32):
    I(f"ds_read_b32 v{BIG+2*p+1}, v{a1} offset:{L_PART + p*1040}")
for p in range(32):
    I(f"ds_read_b32 v{BIG+64+p}, v{a1} offset:{L_PART + p*1040 + 256}")
I("s_waitcnt lgkmcnt(0)")
for p in range(32):
    I(f"v_add_f32 v{BIG+2*p+1}, v{BIG+2*p+1}, v{BIG+64+p}")
I(f"v_mul_f32 v{a4}, v{BIG}, v{BIG+1}")
for p in range(1, 32):
    I(f"v_fmac_f32 v{a4}, v{BIG+2*p}, v{BIG+2*p+1}")
e("L_t2_pub:")
canon(a4, a5)
I(f"v_add_u32 v{a1}, s{S_WSB}, v{a1}")
I(f"buffer_store_dword v{a4}, v{a1}, s[{SRD_WS}:{SRD_WS+3}], 0 offen offset:{OP_OFF} sc1")
canon(a2, a5)
canon(a3, a5)
I(f"v_cmp_eq_u32 vcc, 0, v{V_T}")
I(f"v_mov_b32 v{a5}, 0")
I("s_nop 0")
I(f"v_cndmask_b32 v{a5}, v{a5}, v{a2}, vcc")
I(f"v_cmp_eq_u32 vcc, 1, v{V_T}")
I("s_nop 1")
I(f"v_cndmask_b32 v{a5}, v{a5}, v{a3}, vcc")
I(f"v_cmp_gt_u32 vcc, 4, v{V_T}")
I(f"v_mov_b32 v{a6}, {OOB}")
I("s_nop 0")
I(f"v_cndmask_b32 v{a1}, v{a6}, v{a1}, vcc")
I(f"buffer_store_dword v{a5}, v{a1}, s[{SRD_WS}:{SRD_WS+3}], 0 offen offset:{OP_OFF+768} sc1")
e("L_t_gu:")
I(f"v_mov_b32 v{a6}, {OOB}")
divmod_const(a2, a3, V_T, 49, 1338)
I(f"v_lshlrev_b32 v{a2}, 17, v{a2}")
I(f"v_lshl_add_u32 v{a2}, v{a3}, 4, v{a2}")
I(f"v_cmp_gt_u32 vcc, 392, v{V_T}")
I(f"s_lshl_b32 s{S_T0}, s{S_H}, 12")
I("s_nop 0")
I(f"v_cndmask_b32 v{a2}, v{a6}, v{a2}, vcc")
if WMODE == "gather":
    I(f"s_mov_b32 s{S_T2}, s{S_T0}")
    I(f"buffer_load_dwordx4 v[{BIG}:{BIG+3}], v{a2}, s[{SRD_WS}:{SRD_WS+3}], s{S_T2} offen offset:{OP_OFF} sc1")
    load_w()
    I(f"s_mov_b32 s{S_T0}, s{S_T2}")
    I(f"s_cmp_eq_u32 s{S_W}, 7")
    I("s_cbranch_scc1 L_op_skip")
    I("s_waitcnt vmcnt(5)")
    I("s_branch L_op_chk")
else:
    I(f"s_cmp_eq_u32 s{S_W}, 7")
    I("s_cbranch_scc1 L_op_skip")
e("L_op_poll:")
I(f"buffer_load_dwordx4 v[{BIG}:{BIG+3}], v{a2}, s[{SRD_WS}:{SRD_WS+3}], s{S_T0} offen offset:{OP_OFF} sc1")
I("s_waitcnt vmcnt(0)")
e("L_op_chk:")
poll_check([BIG, BIG + 1, BIG + 2, BIG + 3], "L_op_poll" if "--fullpoll" in sys.argv else "L_op_light", "L_op_done", a4)
e("L_op_light:")
I(f"v_lshlrev_b32 v{a5}, 17, v{V_LANE}")
I(f"v_cmp_gt_u32 vcc, 8, v{V_LANE}")
I("s_nop 1")
I(f"v_cndmask_b32 v{a5}, v{a6}, v{a5}, vcc")
e("L_op_light2:")
I(f"buffer_load_dword v{a4}, v{a5}, s[{SRD_WS}:{SRD_WS+3}], s{S_T0} offen offset:{OP_OFF+768} sc1")
I("s_waitcnt vmcnt(0)")
I(f"v_cmp_eq_u32 vcc, -1, v{a4}")
I("s_nop 4")
I("s_cbranch_vccz L_op_poll")
I("s_sleep 16")
I("s_branch L_op_light2")
e("L_op_done:")
I(f"v_lshlrev_b32 v{a1}, 4, v{V_T}")
mask_lt(392)
I(f"ds_write_b128 v{a1}, v[{BIG}:{BIG+3}] offset:{L_OPR}")
unmask()
e("L_op_skip:")
I("s_waitcnt lgkmcnt(0)")
I("s_barrier")
stamp("b4")
I(f"s_cmp_gt_u32 s{S_W}, 3")
I("s_cbranch_scc1 L_t5b")
I(f"s_cmp_eq_u32 s{S_W}, 3")
I("s_cbranch_scc1 L_t5h")
I(f"v_mov_b32 v{a1}, 0")
I(f"v_lshlrev_b32 v{a5}, 2, v{V_T}")
for p in range(8):
    I(f"ds_read_b64 v[{BIG+2*p}:{BIG+2*p+1}], v{a1} offset:{L_OPR + p*784 + 768}")
for p in range(8):
    I(f"ds_read_b32 v{BIG+16+p}, v{a5} offset:{L_OPR + p*784}")
I("s_waitcnt lgkmcnt(0)")
I(f"v_max3_f32 v{a2}, v{BIG}, v{BIG+2}, v{BIG+4}")
I(f"v_max3_f32 v{a2}, v{a2}, v{BIG+6}, v{BIG+8}")
I(f"v_max3_f32 v{a2}, v{a2}, v{BIG+10}, v{BIG+12}")
I(f"v_max_f32 v{a2}, v{a2}, v{BIG+14}")
for p in range(8):
    I(f"v_sub_f32 v{BIG+2*p}, v{BIG+2*p}, v{a2}")
for p in range(8):
    I(f"v_exp_f32 v{BIG+2*p}, v{BIG+2*p}")
I("s_nop 0")
I(f"v_mul_f32 v{a3}, v{BIG}, v{BIG+1}")
I(f"v_mul_f32 v{a4}, v{BIG}, v{BIG+16}")
for p in range(1, 8):
    I(f"v_fmac_f32 v{a3}, v{BIG+2*p}, v{BIG+2*p+1}")
    I(f"v_fmac_f32 v{a4}, v{BIG+2*p}, v{BIG+16+p}")
I(f"v_rcp_f32 v{a3}, v{a3}")
I("s_nop 0")
I(f"v_mul_f32 v{a4}, v{a4}, v{a3}")
rbf(a4, a6)
I(f"ds_write_b32 v{a5}, v{a4} offset:{L_OF}")
I("s_branch L_t5b")
e("L_t5h:")
I(f"v_lshlrev_b32 v{a5}, 2, v{V_LANE}")
I(f"v_min_u32 v{a5}, 188, v{a5}")
I(f"ds_read_b32 v{a2}, v{a5} offset:{L_GUR}")
I(f"ds_read_b32 v{a3}, v{a5} offset:{L_GUR + 192}")
I("s_waitcnt lgkmcnt(0)")
I(f"v_mul_f32 v{a2}, v{a2}, v{a3}")
rbf(a2, a6)
I(f"v_cmp_gt_u32 vcc, 48, v{V_LANE}")
I(f"s_and_saveexec_b64 s[{S_EX}:{S_EX+1}], vcc")
I(f"ds_write_b32 v{a5}, v{a2} offset:{L_OF+768}")
unmask()
e("L_t5b:")
I("s_waitcnt lgkmcnt(0)")
I("s_barrier")
stamp("b5")
I(f"v_min_u32 v{a1}, 47, v{V_OW+1}")
I(f"v_lshlrev_b32 v{a1}, 2, v{a1}")
for i in range(4):
    I(f"ds_read_b32 v{BIG+i}, v{a1} offset:{L_OF + 192*i}")
I(f"ds_read_b32 v{BIG+4}, v{a1} offset:{L_OF + 768}")
I("s_waitcnt vmcnt(0) lgkmcnt(0)")
for i in range(4):
    fma_chunk(BIG + 8, WR + 4 * i, BIG + i, a2, first=(i == 0))
fma_chunk(BIG + 16, WR + 16, BIG + 4, a2, first=True)
I(f"v_lshlrev_b32 v{a1}, 6, v{V_T}")
I(f"s_mov_b64 s[{S_EX}:{S_EX+1}], exec")
I(f"s_mov_b64 exec, s[{S_M480}:{S_M480+1}]")
for k in range(4):
    I(f"ds_write_b128 v{a1}, v[{BIG+8+4*k}:{BIG+11+4*k}] offset:{L_RED + 16*k}")
unmask()
I("s_waitcnt lgkmcnt(0)")
I("s_barrier")
stamp("b6")
I(f"s_cmp_ge_u32 s{S_W}, 3")
I("s_cbranch_scc1 L_t6")
I(f"v_min_u32 v{a1}, 159, v{V_T}")
I(f"v_cmp_lt_u32 vcc, 79, v{a1}")
I(f"v_subrev_u32 v{a2}, 80, v{a1}")
I("s_nop 0")
I(f"v_cndmask_b32 v{a2}, v{a1}, v{a2}, vcc")
I(f"v_cndmask_b32 v{a3}, 0, 32, vcc")
I(f"v_lshrrev_b32 v{a4}, 3, v{a2}")
I(f"v_and_b32 v{a2}, 7, v{a2}")
I(f"v_lshl_add_u32 v{a3}, v{a4}, 6, v{a3}")
I(f"v_lshl_add_u32 v{a3}, v{a2}, 2, v{a3}")
for sl in range(48):
    I(f"ds_read_b32 v{BIG+sl}, v{a3} offset:{L_RED + sl*640}")
I("s_waitcnt lgkmcnt(0)")
for k in range(0, 48, 4):
    I(f"v_add_f32 v{BIG+k}, v{BIG+k}, v{BIG+k+1}")
    I(f"v_add_f32 v{BIG+k+2}, v{BIG+k+2}, v{BIG+k+3}")
    I(f"v_add_f32 v{BIG+k}, v{BIG+k}, v{BIG+k+2}")
for k in range(4, 48, 4):
    I(f"v_add_f32 v{BIG}, v{BIG}, v{BIG+k}")
canon(BIG, a5)
I(f"v_lshl_add_u32 v{a1}, v{V_T}, 2, s{S_WSB}")
I(f"v_cmp_gt_u32 vcc, 160, v{V_T}")
I(f"v_mov_b32 v{a6}, {OOB}")
I("s_nop 0")
I(f"v_cndmask_b32 v{a1}, v{a6}, v{a1}, vcc")
I(f"buffer_store_dword v{BIG}, v{a1}, s[{SRD_WS}:{SRD_WS+3}], 0 offen offset:{AP_OFF} sc1")
e("L_t6:")
stamp("t6")
I(f"s_cmp_lg_u32 s{S_H}, 0")
I("s_cbranch_scc1 L_fin")
I(f"s_cmp_eq_u32 s{S_W}, 7")
I("s_cbranch_scc1 L_gate")
I(f"s_cmp_ge_u32 s{S_W}, 5")
I("s_cbranch_scc1 L_fin_bar")
divmod_const(a2, a3, V_T, 40, 1639)
I(f"v_lshlrev_b32 v{a2}, 14, v{a2}")
I(f"v_lshl_add_u32 v{a2}, v{a3}, 4, v{a2}")
I(f"s_lshl_b32 s{S_T0}, s{S_S}, 17")
I(f"s_add_u32 s{S_T1}, s{S_T0}, 4096")
I(f"s_add_u32 s{S_T2}, s{S_T0}, 8192")
I(f"s_add_u32 s{S_T3}, s{S_T0}, 12288")
e("L_ap_poll:")
for k, sr in enumerate((S_T0, S_T1, S_T2, S_T3)):
    I(f"buffer_load_dwordx4 v[{BIG+4*k}:{BIG+4*k+3}], v{a2}, s[{SRD_WS}:{SRD_WS+3}], s{sr} offen offset:{AP_OFF} sc1")
I("s_waitcnt vmcnt(0)")
poll_check(list(range(BIG, BIG + 16)), "L_ap_poll", "L_ap_done", a4)
e("L_ap_light:")
I(f"v_lshlrev_b32 v{a5}, 12, v{V_LANE}")
I(f"v_cmp_gt_u32 vcc, 32, v{V_LANE}")
I(f"v_mov_b32 v{a6}, {OOB}")
I("s_nop 0")
I(f"v_cndmask_b32 v{a5}, v{a6}, v{a5}, vcc")
e("L_ap_light2:")
I(f"buffer_load_dword v{a4}, v{a5}, s[{SRD_WS}:{SRD_WS+3}], s{S_T0} offen offset:{AP_OFF} sc1")
I("s_waitcnt vmcnt(0)")
I(f"v_cmp_eq_u32 vcc, -1, v{a4}")
I("s_nop 4")
I("s_cbranch_vccz L_ap_poll")
I("s_sleep 8")
I("s_branch L_ap_light2")
e("L_ap_done:")
for k in range(4):
    I(f"v_add_f32 v{BIG+k}, v{BIG+k}, v{BIG+4+k}")
    I(f"v_add_f32 v{BIG+8+k}, v{BIG+8+k}, v{BIG+12+k}")
for k in range(4):
    I(f"v_add_f32 v{BIG+k}, v{BIG+k}, v{BIG+8+k}")
I(f"v_lshlrev_b32 v{a1}, 4, v{V_T}")
I(f"ds_write_b128 v{a1}, v[{BIG}:{BIG+3}] offset:{L_FR}")
I("s_branch L_fin_bar")
e("L_gate:")
I(f"v_lshlrev_b32 v{a1}, 5, v{V_LANE}")
I(f"buffer_load_dwordx4 v[{BIG}:{BIG+3}], v{a1}, s[{SRD_X}:{SRD_X+3}], 0 offen")
I(f"buffer_load_dwordx4 v[{BIG+4}:{BIG+7}], v{a1}, s[{SRD_X}:{SRD_X+3}], 0 offen offset:16")
I(f"buffer_load_dwordx4 v[{BIG+8}:{BIG+11}], v{a1}, s[{SRD_GW}:{SRD_GW+3}], 0 offen")
I(f"buffer_load_dwordx4 v[{BIG+12}:{BIG+15}], v{a1}, s[{SRD_GW}:{SRD_GW+3}], 0 offen offset:16")
I(f"v_mov_b32 v{a2}, 0")
I("s_waitcnt vmcnt(0)")
for k in range(8):
    I(f"v_lshlrev_b32 v{a3}, 16, v{BIG+k}")
    I(f"v_lshlrev_b32 v{a4}, 16, v{BIG+8+k}")
    I(f"v_and_b32 v{a5}, 0xffff0000, v{BIG+k}")
    I(f"v_and_b32 v{a6}, 0xffff0000, v{BIG+8+k}")
    I(f"v_mul_f32 v{a3}, v{a3}, v{a4}")
    I(f"v_mul_f32 v{a5}, v{a5}, v{a6}")
    I(f"v_cvt_pk_bf16_f32 v{a3}, v{a3}, v{a5}")
    I(f"v_lshlrev_b32 v{a4}, 16, v{a3}")
    I(f"v_and_b32 v{a5}, 0xffff0000, v{a3}")
    I(f"v_add_f32 v{a2}, v{a2}, v{a4}")
    I(f"v_add_f32 v{a2}, v{a2}, v{a5}")
I(f"v_lshlrev_b32 v{a1}, 2, v{V_LANE}")
for m in (1, 2, 4, 8, 16, 32):
    I(f"v_xor_b32 v{a3}, {4*m}, v{a1}")
    I(f"ds_bpermute_b32 v{a4}, v{a3}, v{a2}")
    I("s_waitcnt lgkmcnt(0)")
    I(f"v_add_f32 v{a2}, v{a2}, v{a4}")
rbf(a2, a6)
I(f"v_mul_f32 v{a2}, s{S_LOG2E}, v{a2}")
I(f"v_sub_f32 v{a2}, 0, v{a2}")
I(f"v_exp_f32 v{a2}, v{a2}")
I("s_nop 0")
I(f"v_add_f32 v{a2}, 1.0, v{a2}")
I(f"v_rcp_f32 v{a2}, v{a2}")
I("s_nop 0")
rbf(a2, a6)
I(f"v_mov_b32 v{a1}, 0")
I(f"ds_write_b32 v{a1}, v{a2} offset:{L_GATE}")
e("L_fin_bar:")
I("s_waitcnt lgkmcnt(0)")
I("s_barrier")
I(f"s_cmp_ge_u32 s{S_W}, 2")
I("s_cbranch_scc1 L_fin")
I(f"v_min_u32 v{a1}, 79, v{V_T}")
I(f"v_lshlrev_b32 v{a1}, 2, v{a1}")
I(f"v_mov_b32 v{a5}, 0")
for hg in range(8):
    I(f"ds_read_b32 v{BIG+hg}, v{a1} offset:{L_FR + hg*640}")
    I(f"ds_read_b32 v{BIG+8+hg}, v{a1} offset:{L_FR + hg*640 + 320}")
I(f"ds_read_b32 v{a7}, v{a5} offset:{L_GATE}")
I("s_waitcnt lgkmcnt(0)")
I(f"v_add_f32 v{a2}, v{BIG}, v{BIG+1}")
I(f"v_add_f32 v{a3}, v{BIG+8}, v{BIG+9}")
for p in range(2, 8):
    I(f"v_add_f32 v{a2}, v{a2}, v{BIG+p}")
    I(f"v_add_f32 v{a3}, v{a3}, v{BIG+8+p}")
rbf(a2, a6)
rbf(a3, a6)
I(f"v_sub_f32 v{a4}, 1.0, v{a7}")
rbf(a4, a6)
I(f"v_mul_f32 v{a2}, v{a7}, v{a2}")
I(f"v_mul_f32 v{a3}, v{a4}, v{a3}")
rbf(a2, a6)
rbf(a3, a6)
I(f"v_add_f32 v{a2}, v{a2}, v{a3}")
I(f"v_cvt_pk_bf16_f32 v{a2}, v{a2}, v{a2}")
I(f"s_mul_i32 s{S_T0}, s{S_S}, 160")
I(f"v_lshlrev_b32 v{a1}, 1, v{V_T}")
I(f"v_cmp_gt_u32 vcc, 80, v{V_T}")
I(f"v_mov_b32 v{a6}, {OOB}")
I("s_nop 0")
I(f"v_cndmask_b32 v{a1}, v{a6}, v{a1}, vcc")
I(f"buffer_store_short v{a2}, v{a1}, s[{SRD_OUT}:{SRD_OUT+3}], s{S_T0} offen")
e("L_fin:")
stamp("end")
dump_stamps()
e("L_end:")
I("s_endpgm")
e('.section .rodata,"a"')
e(".p2align 6")
e(f".amdhsa_kernel {NAME}_kernel")
e("  .amdhsa_next_free_vgpr 256")
e("  .amdhsa_next_free_sgpr 102")
e("  .amdhsa_accum_offset 256")
e("  .amdhsa_group_segment_fixed_size 0")
e("  .amdhsa_kernarg_size 104")
e("  .amdhsa_user_sgpr_count 2")
e("  .amdhsa_user_sgpr_kernarg_segment_ptr 1")
e("  .amdhsa_system_sgpr_workgroup_id_x 1")
e(".end_amdhsa_kernel")

open(OUTFILE, "w").write("\n".join(out) + "\n")
print("wrote", OUTFILE, len(out), "lines")
```

```python
import sys, re

NAME = "gated_mix__gqa_block_cached__glu_gated_bilinear__decode"
HEADER = open("cdna_kernels/%s.s.ref" % NAME).read().split("; Override launch geometry")[0]

out = []
def e(s=""):
    out.append(s)
def I(s):
    m = re.search(r"buffer_\w+.*offset:(\d+)", s)
    assert not m or int(m.group(1)) <= 4095, s
    out.append("    " + s)

NT = " nt" if "--nt" in sys.argv else ""
NTW = " nt" if "--ntw" in sys.argv else ""
STAMP = "--stamp" in sys.argv
DBGST = "--dbgstamp" in sys.argv
CNT_OFF = 128 if DBGST else 0
RR = "--rr" in sys.argv
WMODE = "b3"
SL = 2
for a_ in sys.argv:
    if a_.startswith("--sl="): SL = int(a_[5:])
for a_ in sys.argv:
    if a_.startswith("--wmode="): WMODE = a_[8:]
WSTRIDE, TSTRIDE = (6144, 49152) if RR else (49152, 6144)
OUTFILE = "cdna_kernels/%s.s" % NAME
for a in sys.argv[1:]:
    if a.startswith("--out="):
        OUTFILE = a[6:]

KV_BYTES = 100663296
WQ_BYTES = 640 * 6144 * 2
WO_BYTES = 6144 * 640 * 2
WD_BYTES = 1536 * 640 * 2
WS_BYTES = 402653184
OOB = 0x7f000000
FLAG_OFF = 2688
QP_OFF, OP_OFF, AP_OFF = 0, 1152, 2048
L_FLAG = 51200
L_QR = 0
L_GR = 15360
L_PART = 0
L_QB = 34816
L_OPR = 35328
L_GUR = 41600
L_OF = 44672
L_GATE = 45632
L_RED = 0
L_FR = 46080
L_KR = 51712
LDS_BYTES = L_KR + 16 * 6144

S_WG = 2
S_H, S_S, S_W = 3, 62, 63
SRD_K, SRD_V, SRD_WQ, SRD_WO, SRD_WD, SRD_WS, SRD_X, SRD_DBG = 4, 8, 12, 16, 20, 24, 28, 32
KA0 = 36
S_MHI = 64
S_T0, S_T1, S_T2, S_T3 = 66, 67, 68, 69
S_EX = 70
S_BASE = 72
S_NA, S_NB = 73, 74
S_IT = 75
S_SCALE, S_LOG2E = 76, 77
S_WSB = 78
S_M480 = 80
S_C1 = 82
SRD_GW, SRD_OUT = 84, 88
S_WGP, S_WUP = 92, 94
S_ST = 96
S_KL = 79
S_T4 = 100
S_NV = 101

V_T, V_LANE, V_G, V_I, V_OK, V_OV1, V_OV2 = 0, 1, 2, 3, 4, 5, 6
A = [7, 8, 9, 10, 11, 12, 13, 14, 15]
KA, VA, KB, VB = 16, 40, 64, 88
VS = [40, 64, 88, 204]
STG = 64
XR = 192
GU = 208
XG = 216
AQ = 220
AG = 228
V_SL, V_C, V_SL2, V_C2 = 236, 237, 238, 239
V_NEG = 240
QF = 112
ACC = 136
WR = 152
D = 172
P = 176
VM, VL = 180, 181
T2 = 182
V_OW = 200
V_KRD = 202
BIG = 16


def srd(dst, lo, hi, nbytes):
    I(f"s_mov_b32 s{dst}, s{lo}")
    I(f"s_and_b32 s{dst+1}, s{hi}, 0xffff")
    I(f"s_mov_b32 s{dst+2}, {nbytes}")
    I(f"s_mov_b32 s{dst+3}, 0x00020000")


def divmod_const(vq, vr, vsrc, d, magic):
    I(f"v_mul_u32_u24 v{vq}, {magic}, v{vsrc}")
    I(f"v_lshrrev_b32 v{vq}, 16, v{vq}")
    I(f"v_mul_u32_u24 v{vr}, {d}, v{vq}")
    I(f"v_sub_u32 v{vr}, v{vsrc}, v{vr}")


stamp_n = [0]
def stamp(tag):
    if not STAMP:
        return
    n = stamp_n[0]; stamp_n[0] += 1
    assert n < 13
    I(f"s_memrealtime s[{KA0+2*n}:{KA0+2*n+1}]")
    I("s_waitcnt lgkmcnt(0)")


def dump_stamps():
    if not STAMP:
        return
    if DBGST:
        I(f"s_cmp_lg_u32 s{S_WG}, 0")
        I("s_cbranch_scc1 L_end")
        I(f"s_cmp_lg_u32 s{S_W}, 0")
        I("s_cbranch_scc1 L_end")
        I(f"v_mov_b32 v252, 0")
        I(f"v_cmp_eq_u32 vcc, 0, v{V_LANE}")
        I(f"s_and_saveexec_b64 s[{S_ST}:{S_ST+1}], vcc")
        for n in range(stamp_n[0]):
            I(f"s_sub_u32 s{S_ST+2}, s{KA0+2*n}, s{KA0}")
            I(f"v_mov_b32 v250, s{S_ST+2}")
            I(f"buffer_store_dword v250, v252, s[{SRD_DBG}:{SRD_DBG+3}], 0 offen offset:{4*n}")
            I("s_nop 2")
        return
    I(f"s_lshl_b32 s{S_ST}, s{S_WG}, 3")
    I(f"s_add_u32 s{S_ST}, s{S_ST}, s{S_W}")
    I(f"s_lshl_b32 s{S_ST}, s{S_ST}, 8")
    I(f"s_add_u32 s{S_ST}, s{S_ST}, {0x1000000}")
    I(f"v_mov_b32 v252, s{S_ST}")
    I(f"v_cmp_eq_u32 vcc, 0, v{V_LANE}")
    I(f"s_and_saveexec_b64 s[{S_ST}:{S_ST+1}], vcc")
    for n in range(stamp_n[0]):
        I(f"v_mov_b32 v250, s{KA0+2*n}")
        I(f"v_mov_b32 v251, s{KA0+2*n+1}")
        I(f"buffer_store_dwordx2 v[250:251], v252, s[{SRD_WS}:{SRD_WS+3}], 0 offen offset:{8*n}")
        I("s_nop 2")


def fma_chunk(acc, data, scal, tmp, first=False):
    for j in range(4):
        I(f"v_lshlrev_b32 v{tmp}, 16, v{data+j}")
        I(f"v_and_b32 v{tmp+1}, 0xffff0000, v{data+j}")
        op = "v_mul_f32" if first else "v_fmac_f32"
        I(f"{op} v{acc+2*j}, v{scal}, v{tmp}")
        I(f"{op} v{acc+2*j+1}, v{scal}, v{tmp+1}")


def canon(v, tmp):
    I(f"v_cmp_eq_u32 vcc, -1, v{v}")
    I(f"v_mov_b32 v{tmp}, 0x7fc00000")
    I("s_nop 1")
    I(f"v_cndmask_b32 v{v}, v{v}, v{tmp}, vcc")


def rbf(v, tmp):
    I(f"v_cvt_pk_bf16_f32 v{tmp}, v{v}, v{v}")
    I(f"v_lshlrev_b32 v{v}, 16, v{tmp}")


def load_k(slot, soff):
    x = 0 if slot == KA else 1
    I(f"s_add_u32 m0, s{S_KL}, {x*6144}")
    I(f"s_add_u32 s{S_T4}, s{soff}, 4096")
    for j in range(4):
        I(f"buffer_load_dwordx4 v{V_OK}, s[{SRD_K}:{SRD_K+3}], s{soff} offen offset:{j*1024}{NT} lds")
    I(f"s_add_u32 m0, s{S_KL}, {x*6144 + 4096}")
    I("s_nop 0")
    for j in range(2):
        I(f"buffer_load_dwordx4 v{V_OK}, s[{SRD_K}:{SRD_K+3}], s{S_T4} offen offset:{j*1024}{NT} lds")


def load_v(slot, soff):
    for r in range(4):
        I(f"buffer_load_dwordx4 v[{slot+4*r}:{slot+4*r+3}], v{V_OV1}, s[{SRD_V}:{SRD_V+3}], s{soff} offen offset:{r*384}{NT}")
    for r in range(2):
        I(f"buffer_load_dwordx4 v[{slot+16+4*r}:{slot+16+4*r+3}], v{V_OV2}, s[{SRD_V}:{SRD_V+3}], s{soff} offen offset:{r*768}{NT}")


def poll_check(regs, lab_retry, lab_done, tmp):
    cur = regs[0]
    rest = list(regs[1:])
    while rest:
        if len(rest) >= 2:
            I(f"v_max3_u32 v{tmp}, v{cur}, v{rest[0]}, v{rest[1]}")
            rest = rest[2:]
        else:
            I(f"v_max_u32 v{tmp}, v{cur}, v{rest[0]}")
            rest = rest[1:]
        cur = tmp
    I(f"v_cmp_eq_u32 vcc, -1, v{cur}")
    I("s_nop 4")
    I(f"s_cbranch_vccz {lab_done}")
    I(f"s_sleep {SL}")
    I(f"s_branch {lab_retry}")


def mask_lt(n, save=S_EX):
    I(f"v_cmp_gt_u32 vcc, {n}, v{V_T}")
    I(f"s_and_saveexec_b64 s[{save}:{save+1}], vcc")


def unmask(save=S_EX):
    I(f"s_mov_b64 exec, s[{save}:{save+1}]")


e(HEADER.rstrip("\n"))
e("; Override launch geometry by editing the next line (default: block=256,")
e(f"; @launch grid=(256,1,1) block=(512,1,1) lds={LDS_BYTES}")
e('.amdgcn_target "amdgcn-amd-amdhsa--gfx950"')
e(".text")
e(f".globl {NAME}_kernel")
e(".p2align 8")
e(f".type {NAME}_kernel,@function")
e(f"{NAME}_kernel:")
I(f"s_cmp_ge_u32 s{S_WG}, 256")
I("s_cbranch_scc1 L_end")
I(f"s_load_dwordx16 s[{KA0}:{KA0+15}], s[0:1], 0")
I(f"s_load_dwordx8 s[{KA0+16}:{KA0+23}], s[0:1], 64")
I(f"s_load_dwordx2 s[{KA0+24}:{KA0+25}], s[0:1], 96")
a0, a1, a2, a3, a4, a5, a6, a7, a8 = A
I(f"v_and_b32 v{V_LANE}, 63, v{V_T}")
I(f"v_lshrrev_b32 v{a0}, 6, v{V_T}")
I(f"v_lshrrev_b32 v{V_G}, 4, v{V_LANE}")
I(f"v_and_b32 v{V_I}, 15, v{V_LANE}")
I(f"v_readfirstlane_b32 s{S_W}, v{a0}")
if "--shift" in sys.argv:
    I(f"s_xor_b32 s{S_WG}, s{S_WG}, 1")
I(f"s_and_b32 s{S_H}, s{S_WG}, 31")
I(f"s_lshr_b32 s{S_S}, s{S_WG}, 5")
I(f"s_lshl_b32 s{S_WSB}, s{S_WG}, 12")
I(f"v_mul_u32_u24 v{V_KRD}, 384, v{V_I}")
I(f"v_lshl_add_u32 v{V_KRD}, v{V_G}, 4, v{V_KRD}")
I(f"v_lshlrev_b32 v{V_OK}, 4, v{V_LANE}")
I(f"s_mul_i32 s{S_KL}, s{S_W}, 12288")
I(f"s_add_u32 s{S_KL}, s{S_KL}, {L_KR}")
I(f"v_add_u32 v{V_KRD}, s{S_KL}, v{V_KRD}")
I(f"v_mul_u32_u24 v{a1}, 1536, v{V_G}")
I(f"v_lshl_add_u32 v{V_OV1}, v{V_I}, 4, v{a1}")
I(f"v_lshrrev_b32 v{a2}, 3, v{V_I}")
I(f"v_mul_u32_u24 v{a2}, 384, v{a2}")
I(f"v_and_b32 v{a3}, 7, v{V_I}")
I(f"v_lshlrev_b32 v{a3}, 4, v{a3}")
I(f"v_add3_u32 v{V_OV2}, v{a1}, v{a2}, v{a3}")
I(f"v_add_u32 v{V_OV2}, 256, v{V_OV2}")
I(f"v_cmp_lt_u32 s[{S_MHI}:{S_MHI+1}], 7, v{V_I}")
I(f"v_cmp_gt_u32 vcc, 480, v{V_T}")
I(f"s_mov_b64 s[{S_M480}:{S_M480+1}], vcc")
I(f"s_mov_b32 s{S_SCALE}, 0x3d93cd3a")
I(f"s_mov_b32 s{S_LOG2E}, 0x3fb8aa3b")
divmod_const(V_SL, V_C, V_T, 24, 2731)
divmod_const(V_SL2, V_C2, V_T, 12, 5462)
for k in range(4):
    I(f"v_mov_b32 v{V_NEG+k}, -1")
I("s_waitcnt lgkmcnt(0)")
kp = lambda n: (KA0 + 2 * n, KA0 + 2 * n + 1)
srd(SRD_WS, *kp(12), WS_BYTES)
srd(SRD_X, *kp(0), 1280)
srd(SRD_WQ, *kp(3), WQ_BYTES)
srd(SRD_K, *kp(1), KV_BYTES)
srd(SRD_V, *kp(2), KV_BYTES)
srd(SRD_WO, *kp(4), WO_BYTES)
srd(SRD_WD, *kp(8), WD_BYTES)
srd(SRD_GW, *kp(9), 1280)
srd(SRD_OUT, *kp(10), 1280)
srd(SRD_DBG, *kp(11), 256)
I(f"s_mov_b64 s[{S_WGP}:{S_WGP+1}], s[{kp(6)[0]}:{kp(6)[1]}]")
I(f"s_mov_b64 s[{S_WUP}:{S_WUP+1}], s[{kp(7)[0]}:{kp(7)[1]}]")
stamp("start")
I(f"s_mul_i32 s{S_BASE}, s{S_H}, 3145728")
I(f"s_mul_i32 s{S_T0}, s{S_S}, 393216")
I(f"s_add_u32 s{S_BASE}, s{S_BASE}, s{S_T0}")
I(f"s_mul_i32 s{S_T0}, s{S_W}, {WSTRIDE}")
I(f"s_add_u32 s{S_BASE}, s{S_BASE}, s{S_T0}")

if "--codepf" in sys.argv:
    I(f"s_cmp_lg_u32 s{S_W}, 7")
    I("s_cbranch_scc1 L_nopf")
    I(f"s_getpc_b64 s[{S_C1}:{S_C1+1}]")
    I(f"v_lshlrev_b32 v{a0}, 4, v{V_LANE}")
    for k in range(11):
        if k % 4 == 0 and k:
            I(f"v_add_u32 v{a0}, 4096, v{a0}")
        I(f"global_load_dwordx4 v[{112+4*k}:{115+4*k}], v{a0}, s[{S_C1}:{S_C1+1}] offset:{(k%4)*1024}")
    e("L_nopf:")
I(f"v_mov_b32 v{a8}, {OOB}")
I(f"v_lshl_add_u32 v{a0}, v{V_T}, 4, s{S_WSB}")
I(f"v_cmp_gt_u32 vcc, 97, v{V_T}")
I(f"v_mov_b32 v{a2}, 0")
I(f"v_mov_b32 v{a3}, 0")
I(f"v_cndmask_b32 v{a0}, v{a8}, v{a0}, vcc")
I(f"buffer_store_dwordx4 v[{V_NEG}:{V_NEG+3}], v{a0}, s[{SRD_WS}:{SRD_WS+3}], 0 offen offset:{OP_OFF} sc1")
I(f"v_mov_b32 v{a1}, {L_FLAG}")
I(f"ds_write_b64 v{a1}, v[{a2}:{a3}]") if a2 % 2 == 0 else (I(f"ds_write_b32 v{a1}, v{a2}"), I(f"ds_write_b32 v{a1}, v{a2} offset:4"), I(f"ds_write_b32 v{a1}, v{a2} offset:8"))
I(f"s_mul_i32 s{S_T0}, s{S_S}, 160")
I(f"v_lshlrev_b32 v{a1}, 3, v{V_SL}")
I(f"v_cndmask_b32 v{a1}, v{a8}, v{a1}, s[{S_M480}:{S_M480+1}]")
I(f"buffer_load_dwordx2 v[{XR}:{XR+1}], v{a1}, s[{SRD_X}:{SRD_X+3}], s{S_T0} offen")
I(f"v_lshlrev_b32 v{a2}, 2, v{V_SL2}")
I(f"v_cndmask_b32 v{a2}, v{a8}, v{a2}, s[{S_M480}:{S_M480+1}]")
I(f"buffer_load_dword v{XG}, v{a2}, s[{SRD_X}:{SRD_X+3}], s{S_T0} offen")
I(f"v_mul_u32_u24 v{a0}, {4*12288 // 16}, v{V_SL}")
I(f"v_add_u32 v{a0}, v{a0}, v{V_C}")
I(f"v_lshlrev_b32 v{a0}, 4, v{a0}")
I(f"v_cndmask_b32 v{a0}, v{a8}, v{a0}, s[{S_M480}:{S_M480+1}]")
I(f"s_mul_i32 s{S_T0}, s{S_H}, 384")
I(f"s_mul_i32 s{S_T1}, s{S_S}, {80*12288}")
I(f"s_add_u32 s{S_T0}, s{S_T0}, s{S_T1}")
for k in range(4):
    I(f"buffer_load_dwordx4 v[{STG+4*k}:{STG+4*k+3}], v{a0}, s[{SRD_WQ}:{SRD_WQ+3}], s{S_T0} offen{NTW}")
    if k != 3:
        I(f"s_add_u32 s{S_T0}, s{S_T0}, 12288")
I(f"v_min_u32 v{a3}, 39, v{V_SL2}")
I(f"v_cmp_gt_u32 vcc, 6, v{V_C2}")
I(f"v_subrev_u32 v{a4}, 6, v{V_C2}")
I(f"v_mov_b32 v{a5}, s{S_WUP}")
I(f"v_mov_b32 v{a6}, s{S_WUP+1}")
I(f"v_cndmask_b32 v{a4}, v{a4}, v{V_C2}, vcc")
I(f"v_mov_b32 v{a0}, s{S_WGP}")
I(f"v_mov_b32 v{a1}, s{S_WGP+1}")
I(f"v_cndmask_b32 v{a5}, v{a5}, v{a0}, vcc")
I(f"v_cndmask_b32 v{a6}, v{a6}, v{a1}, vcc")
I(f"s_mul_i32 s{S_T0}, s{S_S}, {80*3072}")
I(f"s_mul_i32 s{S_T1}, s{S_H}, 96")
I(f"s_add_u32 s{S_T0}, s{S_T0}, s{S_T1}")
I(f"v_mul_u32_u24 v{a3}, 6144, v{a3}")
I(f"v_lshl_add_u32 v{a3}, v{a4}, 4, v{a3}")
I(f"v_add_u32 v{a3}, s{S_T0}, v{a3}")
I(f"v_add_co_u32 v244, vcc, v{a5}, v{a3}")
I("s_nop 1")
I(f"v_addc_co_u32 v245, vcc, 0, v{a6}, vcc")
I(f"global_load_dwordx4 v[{GU}:{GU+3}], v[244:245], off{NTW}")
I(f"global_load_dwordx4 v[{GU+4}:{GU+7}], v[244:245], off offset:3072{NTW}")
divmod_const(V_OW + 1, a3, V_T, 10, 6554)
I(f"v_mul_u32_u24 v{V_OW}, 1280, v{V_OW+1}")
I(f"v_lshl_add_u32 v{V_OW}, v{a3}, 4, v{V_OW}")
I(f"v_cndmask_b32 v{V_OW}, v{a8}, v{V_OW}, s[{S_M480}:{S_M480+1}]")
I(f"s_add_u32 s{S_NA}, s{S_BASE}, {TSTRIDE}")
I(f"s_add_u32 s{S_NB}, s{S_BASE}, {2*TSTRIDE}")
I(f"s_add_u32 s{S_NV}, s{S_BASE}, {3*TSTRIDE}")
def load_w():
    I(f"s_mul_i32 s{S_T0}, s{S_H}, {192*1280}")
    I(f"s_mul_i32 s{S_T1}, s{S_S}, 160")
    I(f"s_add_u32 s{S_T0}, s{S_T0}, s{S_T1}")
    for i in range(4):
        I(f"buffer_load_dwordx4 v[{WR+4*i}:{WR+4*i+3}], v{V_OW}, s[{SRD_WO}:{SRD_WO+3}], s{S_T0} offen{NTW}")
        if i != 3:
            I(f"s_add_u32 s{S_T0}, s{S_T0}, {48*1280}")
    I(f"s_mul_i32 s{S_T0}, s{S_H}, {48*1280}")
    I(f"s_add_u32 s{S_T0}, s{S_T0}, s{S_T1}")
    I(f"buffer_load_dwordx4 v[{WR+16}:{WR+19}], v{V_OW}, s[{SRD_WD}:{SRD_WD+3}], s{S_T0} offen{NTW}")
if "--early" in sys.argv:
    I(f"s_cmp_lt_u32 s{S_W}, 5")
    I("s_cbranch_scc1 L_late")
    load_k(KA, S_BASE)
    load_v(VS[0], S_BASE)
    I("s_waitcnt vmcnt(12)")
    I("s_branch L_late2")
    e("L_late:")
    I("s_waitcnt vmcnt(0)")
    load_k(KA, S_BASE)
    e("L_late2:")
else:
    I("s_waitcnt vmcnt(0)")
    load_k(KA, S_BASE)
for k in range(4):
    xs = XR + k // 2
    if k % 2 == 0:
        I(f"v_lshlrev_b32 v{a1}, 16, v{xs}")
    else:
        I(f"v_and_b32 v{a1}, 0xffff0000, v{xs}")
    fma_chunk(AQ, STG + 4 * k, a1, a2, first=(k == 0))
I(f"v_lshlrev_b32 v{a1}, 16, v{XG}")
fma_chunk(AG, GU, a1, a2, first=True)
I(f"v_and_b32 v{a1}, 0xffff0000, v{XG}")
fma_chunk(AG, GU + 4, a1, a2)
I(f"v_mul_u32_u24 v{a1}, 768, v{V_SL}")
I(f"v_lshl_add_u32 v{a1}, v{V_C}, 5, v{a1}")
I(f"v_mul_u32_u24 v{a2}, 384, v{V_SL2}")
I(f"v_lshl_add_u32 v{a2}, v{V_C2}, 5, v{a2}")
I(f"s_mov_b64 s[{S_EX}:{S_EX+1}], exec")
I(f"s_mov_b64 exec, s[{S_M480}:{S_M480+1}]")
I(f"ds_write_b128 v{a1}, v[{AQ}:{AQ+3}] offset:{L_QR}")
I(f"ds_write_b128 v{a1}, v[{AQ+4}:{AQ+7}] offset:{L_QR+16}")
I(f"ds_write_b128 v{a2}, v[{AG}:{AG+3}] offset:{L_GR}")
I(f"ds_write_b128 v{a2}, v[{AG+4}:{AG+7}] offset:{L_GR+16}")
unmask()
I("s_waitcnt lgkmcnt(0)")
I("s_barrier")
stamp("b1")
I(f"s_cmp_lt_u32 s{S_W}, 5")
I("s_cbranch_scc1 L_a_wave")
if "--early" not in sys.argv:
    load_v(VS[0], S_BASE)
load_k(KB, S_NA)
load_v(VS[1], S_NA)
load_v(VS[2], S_NB)
load_v(VS[3], S_NV)
I("s_branch L_a_done")
e("L_a_wave:")
qregs = [T2 + sl if sl < 18 else 244 + sl - 18 for sl in range(20)]
I(f"v_lshlrev_b32 v{a1}, 2, v{V_T}")
I(f"s_cmp_ge_u32 s{S_W}, 3")
I("s_cbranch_scc1 L_a_notq")
for sl in range(20):
    I(f"ds_read_b32 v{qregs[sl]}, v{a1} offset:{L_QR + sl*768}")
I("s_waitcnt lgkmcnt(0)")
I(f"v_add_f32 v{a2}, v{qregs[0]}, v{qregs[1]}")
for r in qregs[2:]:
    I(f"v_add_f32 v{a2}, v{a2}, v{r}")
I("s_branch L_a_pub")
e("L_a_notq:")
I(f"v_subrev_u32 v{a3}, 768, v{a1}")
I(f"v_min_u32 v{a3}, 380, v{a3}")
for half in range(2):
    for sl in range(20):
        I(f"ds_read_b32 v{qregs[sl]}, v{a3} offset:{L_GR + (half*20+sl)*384}")
    I("s_waitcnt lgkmcnt(0)")
    if half == 0:
        I(f"v_add_f32 v{a2}, v{qregs[0]}, v{qregs[1]}")
        rest = qregs[2:]
    else:
        rest = qregs
    for r in rest:
        I(f"v_add_f32 v{a2}, v{a2}, v{r}")
e("L_a_pub:")
I(f"v_cmp_gt_u32 vcc, 288, v{V_T}")
I(f"v_add_u32 v{a3}, s{S_WSB}, v{a1}")
I("s_nop 0")
I(f"v_cndmask_b32 v{a3}, v{a8}, v{a3}, vcc")
I(f"v_cndmask_b32 v{a5}, v{a8}, v{a1}, vcc")
I(f"buffer_store_dword v{a2}, v{a3}, s[{SRD_WS}:{SRD_WS+3}], 0 offen offset:{QP_OFF} sc1")
I(f"v_mov_b32 v{a1}, {L_FLAG}")
I(f"v_mov_b32 v{a2}, 1")
I(f"s_lshl_b32 s{S_T1}, s{S_H}, 2")
I(f"v_mov_b32 v{a4}, s{S_T1}")
I("s_waitcnt vmcnt(0)")
stamp("ack")
I(f"v_cmp_eq_u32 vcc, 0, v{V_LANE}")
I(f"s_and_saveexec_b64 s[{S_EX}:{S_EX+1}], vcc")
I(f"ds_add_rtn_u32 v{a3}, v{a1}, v{a2}")
I("s_waitcnt lgkmcnt(0)")
I(f"v_readfirstlane_b32 s{S_T0}, v{a3}")
I(f"s_cmp_lg_u32 s{S_T0}, 4")
I("s_cbranch_scc1 L_a_noatom")
I(f"v_mov_b32 v{a3}, 1")
I(f"buffer_atomic_add v{a3}, v{a4}, s[{SRD_DBG}:{SRD_DBG+3}], 0 offen offset:{CNT_OFF} sc0 sc1")
I("s_waitcnt vmcnt(0)")
I(f"v_readfirstlane_b32 s{S_T0}, v{a3}")
I(f"s_cmp_lg_u32 s{S_T0}, 7")
I("s_cbranch_scc1 L_a_noatom")
I(f"s_mov_b64 exec, 0xff")
I(f"s_lshl_b32 s{S_T0}, s{S_H}, 12")
I(f"v_lshlrev_b32 v{a3}, 17, v{V_LANE}")
I(f"buffer_store_dword v{a2}, v{a3}, s[{SRD_WS}:{SRD_WS+3}], s{S_T0} offen offset:{FLAG_OFF} sc1")
e("L_a_noatom:")
unmask()
I(f"s_cmp_lg_u32 s{S_W}, 0")
I("s_cbranch_scc1 L_a_others")
I(f"v_mov_b32 v{a4}, s{S_WSB}")
e("L_a_gpoll:")
I(f"buffer_load_dword v{a3}, v{a4}, s[{SRD_WS}:{SRD_WS+3}], 0 offen offset:{FLAG_OFF} sc1")
I("s_waitcnt vmcnt(0)")
I(f"v_readfirstlane_b32 s{S_T0}, v{a3}")
I(f"s_cmp_eq_u32 s{S_T0}, 1")
I("s_cbranch_scc1 L_a_gok")
I("s_sleep 2")
I("s_branch L_a_gpoll")
e("L_a_gok:")
I(f"ds_write_b32 v{a1}, v{a2} offset:4")
I("s_branch L_a_gather")
e("L_a_others:")
load_v(VS[0], S_BASE)
load_k(KB, S_NA)
load_v(VS[1], S_NA)
e("L_a_lspin:")
I(f"ds_read_b32 v{a3}, v{a1} offset:4")
I("s_waitcnt lgkmcnt(0)")
I(f"v_readfirstlane_b32 s{S_T0}, v{a3}")
I(f"s_cmp_lg_u32 s{S_T0}, 0")
I("s_cbranch_scc1 L_a_gather")
I("s_sleep 1")
I("s_branch L_a_lspin")
e("L_a_gather:")
stamp("flag")
I(f"s_lshl_b32 s{S_T0}, s{S_H}, 12")
for p in range(8):
    I(f"buffer_load_dword v{T2+p}, v{a5}, s[{SRD_WS}:{SRD_WS+3}], s{S_T0} offen offset:{QP_OFF} sc1")
    if p != 7:
        I(f"s_add_u32 s{S_T0}, s{S_T0}, {32*4096}")
I(f"s_cmp_lg_u32 s{S_W}, 0")
I("s_cbranch_scc1 L_a_g2")
load_v(VS[0], S_BASE)
load_k(KB, S_NA)
load_v(VS[1], S_NA)
load_v(VS[2], S_NB)
load_v(VS[3], S_NV)
I("s_waitcnt vmcnt(30)")
I("s_branch L_a_g3")
e("L_a_g2:")
load_v(VS[2], S_NB)
load_v(VS[3], S_NV)
I("s_waitcnt vmcnt(12)")
e("L_a_g3:")
I(f"v_add_f32 v{a2}, v{T2}, v{T2+1}")
for p in range(2, 8):
    I(f"v_add_f32 v{a2}, v{a2}, v{T2+p}")
I(f"v_cvt_pk_bf16_f32 v{a2}, v{a2}, v{a2}")
I(f"s_cmp_ge_u32 s{S_W}, 3")
I("s_cbranch_scc1 L_a_gus")
I(f"v_lshlrev_b32 v{a3}, 1, v{V_T}")
I(f"ds_write_b16 v{a3}, v{a2} offset:{L_QB}")
if "--noB2" in sys.argv:
    I(f"v_mov_b32 v{a1}, {L_FLAG}")
    I(f"v_mov_b32 v{a2}, 1")
    I("s_waitcnt lgkmcnt(0)")
    I(f"s_mov_b64 s[{S_EX}:{S_EX+1}], exec")
    I("s_mov_b64 exec, 1")
    I(f"ds_add_u32 v{a1}, v{a2} offset:8")
    unmask()
I("s_branch L_a_done")
e("L_a_gus:")
I(f"v_lshlrev_b32 v{a2}, 16, v{a2}")
I(f"v_lshlrev_b32 v{a3}, 2, v{V_T}")
I(f"v_cmp_gt_u32 vcc, 288, v{V_T}")
I(f"s_and_saveexec_b64 s[{S_EX}:{S_EX+1}], vcc")
I(f"ds_write_b32 v{a3}, v{a2} offset:{L_GUR - 768}")
unmask()
e("L_a_done:")
if "--noB2" in sys.argv:
    I(f"v_mov_b32 v{a1}, {L_FLAG}")
    e("L_a_qspin:")
    I(f"ds_read_b32 v{a3}, v{a1} offset:8")
    I("s_waitcnt lgkmcnt(0)")
    I(f"v_readfirstlane_b32 s{S_T0}, v{a3}")
    I(f"s_cmp_eq_u32 s{S_T0}, 3")
    I("s_cbranch_scc1 L_a_qok")
    I("s_sleep 1")
    I("s_branch L_a_qspin")
    e("L_a_qok:")
else:
    I("s_waitcnt lgkmcnt(0)")
    I("s_barrier")
stamp("b2")
I(f"v_lshlrev_b32 v{a1}, 4, v{V_G}")
for j in range(6):
    I(f"ds_read_b128 v[{QF+4*j}:{QF+4*j+3}], v{a1} offset:{L_QB + 64*j}")
for k in range(16):
    I(f"v_mov_b32 v{ACC+k}, 0")
I(f"v_mov_b32 v{VM}, 0xff7fffff")
I(f"v_mov_b32 v{VL}, 0")
I(f"s_mov_b32 s{S_IT}, 0")
I(f"s_add_u32 s{S_NA}, s{S_BASE}, {2*TSTRIDE}")
I(f"s_add_u32 s{S_NV}, s{S_BASE}, {4*TSTRIDE}")
I("s_waitcnt lgkmcnt(0)")

def tile(KX, VX, soff, soffv):
    I("s_waitcnt vmcnt(18)")
    x = 0 if KX == KA else 1
    for j in range(6):
        I(f"ds_read_b128 v[{KA+4*j}:{KA+4*j+3}], v{V_KRD} offset:{x*6144 + j*64}")
    I("s_waitcnt lgkmcnt(0)")
    load_k(KX, soff)
    for j in range(6):
        c = "0" if j == 0 else f"v[{D}:{D+3}]"
        I(f"v_mfma_f32_16x16x32_bf16 v[{D}:{D+3}], v[{KA+4*j}:{KA+4*j+3}], v[{QF+4*j}:{QF+4*j+3}], {c}")
    I("s_nop 7")
    t0, t1 = T2, T2 + 1
    s = [T2 + 2, T2 + 3, T2 + 4, T2 + 5]
    I(f"v_cvt_pk_bf16_f32 v{t0}, v{D}, v{D+1}")
    I(f"v_cvt_pk_bf16_f32 v{t1}, v{D+2}, v{D+3}")
    I(f"v_lshlrev_b32 v{s[0]}, 16, v{t0}")
    I(f"v_and_b32 v{s[1]}, 0xffff0000, v{t0}")
    I(f"v_lshlrev_b32 v{s[2]}, 16, v{t1}")
    I(f"v_and_b32 v{s[3]}, 0xffff0000, v{t1}")
    for r in range(4):
        I(f"v_mul_f32 v{s[r]}, s{S_SCALE}, v{s[r]}")
    I(f"v_cvt_pk_bf16_f32 v{t0}, v{s[0]}, v{s[1]}")
    I(f"v_cvt_pk_bf16_f32 v{t1}, v{s[2]}, v{s[3]}")
    I(f"v_lshlrev_b32 v{s[0]}, 16, v{t0}")
    I(f"v_and_b32 v{s[1]}, 0xffff0000, v{t0}")
    I(f"v_lshlrev_b32 v{s[2]}, 16, v{t1}")
    I(f"v_and_b32 v{s[3]}, 0xffff0000, v{t1}")
    for r in range(4):
        I(f"v_mul_f32 v{s[r]}, s{S_LOG2E}, v{s[r]}")
    mn, al = T2 + 6, T2 + 7
    I(f"v_max3_f32 v{mn}, v{s[0]}, v{s[1]}, v{s[2]}")
    I(f"v_max3_f32 v{mn}, v{mn}, v{s[3]}, v{VM}")
    I(f"v_sub_f32 v{al}, v{VM}, v{mn}")
    for r in range(4):
        I(f"v_sub_f32 v{P+r}, v{s[r]}, v{mn}")
    I(f"v_exp_f32 v{al}, v{al}")
    for r in range(4):
        I(f"v_exp_f32 v{P+r}, v{P+r}")
    I(f"v_mov_b32 v{VM}, v{mn}")
    for k in range(16):
        I(f"v_mul_f32 v{ACC+k}, v{al}, v{ACC+k}")
    I(f"v_add_f32 v{t0}, v{P}, v{P+1}")
    I(f"v_add_f32 v{t1}, v{P+2}, v{P+3}")
    I(f"v_add_f32 v{t0}, v{t0}, v{t1}")
    I(f"v_fma_f32 v{VL}, v{VL}, v{al}, v{t0}")
    pa, pb = T2 + 8, T2 + 9
    I(f"v_cndmask_b32 v{pa}, v{P}, v{P+1}, s[{S_MHI}:{S_MHI+1}]")
    I(f"v_cndmask_b32 v{pb}, v{P+2}, v{P+3}, s[{S_MHI}:{S_MHI+1}]")
    I("s_waitcnt vmcnt(18)")
    for r in range(4):
        fma_chunk(ACC, VX + 4 * r, P + r, T2 + 10)
    fma_chunk(ACC + 8, VX + 16, pa, T2 + 10)
    fma_chunk(ACC + 8, VX + 20, pb, T2 + 10)
    load_v(VX, soffv)

e("L_loop:")
for u in range(4):
    I(f"s_cmp_eq_u32 s{S_IT}, 0")
    if u < 2:
        I(f"s_mov_b32 s{S_T0}, s{S_NA}")
    else:
        I(f"s_cselect_b32 s{S_T0}, s{S_NA}, {OOB}")
    I(f"s_cselect_b32 s{S_T1}, s{S_NV}, {OOB}")
    tile(KA if u % 2 == 0 else KB, VS[u], S_T0, S_T1)
    I(f"s_add_u32 s{S_NA}, s{S_NA}, {TSTRIDE}")
    I(f"s_add_u32 s{S_NV}, s{S_NV}, {TSTRIDE}")
I(f"s_add_u32 s{S_IT}, s{S_IT}, 1")
I(f"s_cmp_lt_u32 s{S_IT}, 2")
I("s_cbranch_scc1 L_loop")
stamp("loop_end")
if WMODE == "loopend":
    load_w()

def t2_half(p0, tag):
    I(f"v_mov_b32 v{a1}, 0")
    for p in range(16):
        I(f"ds_read_b64 v[{BIG+2*p}:{BIG+2*p+1}], v{a1} offset:{L_PART + (p0+p)*1040 + 1024}")
    I(f"v_lshlrev_b32 v{a1}, 2, v{V_T}")
    for p in range(16):
        I(f"ds_read_b32 v{BIG+32+p}, v{a1} offset:{L_PART + (p0+p)*1040}")
    I(f"s_cmp_lg_u32 s{S_W}, 2")
    I(f"s_cbranch_scc1 L_t2h_{tag}")
    for p in range(16):
        I(f"ds_read_b32 v{BIG+48+p}, v{a1} offset:{L_PART + (p0+p)*1040 + 256}")
    I("s_waitcnt lgkmcnt(0)")
    for p in range(16):
        I(f"v_add_f32 v{BIG+32+p}, v{BIG+32+p}, v{BIG+48+p}")
    e(f"L_t2h_{tag}:")
    I("s_waitcnt lgkmcnt(0)")
    I(f"v_max3_f32 v{a2}, v{BIG}, v{BIG+2}, v{BIG+4}")
    for p in range(3, 15, 2):
        I(f"v_max3_f32 v{a2}, v{a2}, v{BIG+2*p}, v{BIG+2*p+2}")
    I(f"v_max_f32 v{a2}, v{a2}, v{BIG+30}")
    for p in range(16):
        I(f"v_sub_f32 v{BIG+2*p}, v{BIG+2*p}, v{a2}")
    for p in range(16):
        I(f"v_exp_f32 v{BIG+2*p}, v{BIG+2*p}")
    I("s_nop 0")
    I(f"v_mul_f32 v{a3}, v{BIG}, v{BIG+1}")
    I(f"v_mul_f32 v{a4}, v{BIG}, v{BIG+32}")
    for p in range(1, 16):
        I(f"v_fmac_f32 v{a3}, v{BIG+2*p}, v{BIG+2*p+1}")
        I(f"v_fmac_f32 v{a4}, v{BIG+2*p}, v{BIG+32+p}")


I(f"s_lshl_b32 s{S_T0}, s{S_W}, 2")
I(f"v_add_u32 v{a1}, s{S_T0}, v{V_G}")
I(f"v_mul_u32_u24 v{a1}, 1040, v{a1}")
I(f"v_lshl_add_u32 v{a2}, v{V_I}, 5, v{a1}")
I(f"ds_write_b128 v{a2}, v[{ACC}:{ACC+3}] offset:{L_PART}")
I(f"ds_write_b128 v{a2}, v[{ACC+4}:{ACC+7}] offset:{L_PART+16}")
I(f"ds_write_b128 v{a2}, v[{ACC+8}:{ACC+11}] offset:{L_PART+512}")
I(f"ds_write_b128 v{a2}, v[{ACC+12}:{ACC+15}] offset:{L_PART+528}")
I(f"v_cmp_eq_u32 vcc, 0, v{V_I}")
I(f"s_and_saveexec_b64 s[{S_EX}:{S_EX+1}], vcc")
I(f"ds_write_b64 v{a1}, v[{VM}:{VM+1}] offset:{L_PART+1024}")
unmask()
I(f"s_cmp_lg_u32 s{S_W}, {5 if '--t3w5' in sys.argv else 1}")
I("s_cbranch_scc1 L_t3_done")
I(f"v_lshlrev_b32 v{a1}, 2, v{V_LANE}")
e("L_t3_poll:")
I(f"buffer_load_dword v{a2}, v{a1}, s[{SRD_DBG}:{SRD_DBG+3}], 0 offen offset:{CNT_OFF} sc1")
I("s_waitcnt vmcnt(0)")
I(f"v_cmp_gt_u32 vcc, 8, v{a2}")
I(f"v_cmp_gt_u32 s[{S_C1}:{S_C1+1}], 32, v{V_LANE}")
I("s_nop 4")
I(f"s_and_b64 s[{S_C1}:{S_C1+1}], s[{S_C1}:{S_C1+1}], vcc")
I("s_cbranch_scc0 L_t3_done")
I("s_sleep 4")
I("s_branch L_t3_poll")
e("L_t3_done:")
if "--t2half" in sys.argv:
    I(f"s_cmp_ge_u32 s{S_W}, 4")
    I("s_cbranch_scc1 L_h_done")
    I(f"v_mov_b32 v{a1}, {L_FLAG}")
    I(f"v_mov_b32 v{a2}, 1")
    I("s_waitcnt vmcnt(0) lgkmcnt(0)")
    I(f"s_mov_b64 s[{S_EX}:{S_EX+1}], exec")
    I("s_mov_b64 exec, 1")
    I(f"ds_add_u32 v{a1}, v{a2} offset:8")
    unmask()
    I(f"s_cmp_eq_u32 s{S_W}, 3")
    I("s_cbranch_scc1 L_h_done")
    e("L_h_spin:")
    I(f"ds_read_b32 v{a3}, v{a1} offset:8")
    I("s_waitcnt lgkmcnt(0)")
    I(f"v_readfirstlane_b32 s{S_T0}, v{a3}")
    I(f"s_cmp_eq_u32 s{S_T0}, 4")
    I("s_cbranch_scc1 L_h_go")
    I("s_sleep 4")
    I("s_branch L_h_spin")
    e("L_h_go:")
    t2_half(0, "a")
    I(f"v_mov_b32 v182, v{a2}")
    I(f"v_mov_b32 v183, v{a3}")
    I(f"v_mov_b32 v184, v{a4}")
    e("L_h_done:")
I("s_waitcnt vmcnt(0) lgkmcnt(0)")
I("s_barrier")
stamp("b3")
if WMODE == "b3":
    load_w()
I(f"s_cmp_ge_u32 s{S_W}, 3")
I("s_cbranch_scc1 L_t_gu")
if "--t2half" in sys.argv:
    t2_half(16, "b")
    I(f"v_max_f32 v{a5}, v{a2}, v182")
    I(f"v_sub_f32 v{a6}, v{a2}, v{a5}")
    I(f"v_sub_f32 v{a7}, v182, v{a5}")
    I(f"v_exp_f32 v{a6}, v{a6}")
    I(f"v_exp_f32 v{a7}, v{a7}")
    I(f"v_mov_b32 v{a2}, v{a5}")
    I(f"v_mul_f32 v{a3}, v{a3}, v{a6}")
    I(f"v_mul_f32 v{a4}, v{a4}, v{a6}")
    I(f"v_fmac_f32 v{a3}, v183, v{a7}")
    I(f"v_fmac_f32 v{a4}, v184, v{a7}")
else:
    I(f"v_mov_b32 v{a1}, 0")
    for p in range(32):
        I(f"ds_read_b64 v[{BIG+2*p}:{BIG+2*p+1}], v{a1} offset:{L_PART + p*1040 + 1024}")
    I("s_waitcnt lgkmcnt(0)")
    I(f"v_max3_f32 v{a2}, v{BIG}, v{BIG+2}, v{BIG+4}")
    for p in range(3, 31, 2):
        I(f"v_max3_f32 v{a2}, v{a2}, v{BIG+2*p}, v{BIG+2*p+2}")
    I(f"v_max_f32 v{a2}, v{a2}, v{BIG+62}")
    for p in range(32):
        I(f"v_sub_f32 v{BIG+2*p}, v{BIG+2*p}, v{a2}")
    for p in range(32):
        I(f"v_exp_f32 v{BIG+2*p}, v{BIG+2*p}")
    I("s_nop 0")
    I(f"v_mul_f32 v{a3}, v{BIG}, v{BIG+1}")
    for p in range(1, 32):
        I(f"v_fmac_f32 v{a3}, v{BIG+2*p}, v{BIG+2*p+1}")
    I(f"v_lshlrev_b32 v{a1}, 2, v{V_T}")
    I(f"s_cmp_eq_u32 s{S_W}, 2")
    I("s_cbranch_scc1 L_t2_hi")
    for p in range(32):
        I(f"ds_read_b32 v{BIG+2*p+1}, v{a1} offset:{L_PART + p*1040}")
    I("s_waitcnt lgkmcnt(0)")
    I(f"v_mul_f32 v{a4}, v{BIG}, v{BIG+1}")
    for p in range(1, 32):
        I(f"v_fmac_f32 v{a4}, v{BIG+2*p}, v{BIG+2*p+1}")
    I("s_branch L_t2_pub")
    e("L_t2_hi:")
    for p in range(32):
        I(f"ds_read_b32 v{BIG+2*p+1}, v{a1} offset:{L_PART + p*1040}")
    for p in range(32):
        I(f"ds_read_b32 v{BIG+64+p}, v{a1} offset:{L_PART + p*1040 + 256}")
    I("s_waitcnt lgkmcnt(0)")
    for p in range(32):
        I(f"v_add_f32 v{BIG+2*p+1}, v{BIG+2*p+1}, v{BIG+64+p}")
    I(f"v_mul_f32 v{a4}, v{BIG}, v{BIG+1}")
    for p in range(1, 32):
        I(f"v_fmac_f32 v{a4}, v{BIG+2*p}, v{BIG+2*p+1}")
e("L_t2_pub:")
canon(a4, a5)
I(f"v_add_u32 v{a1}, s{S_WSB}, v{a1}")
I(f"buffer_store_dword v{a4}, v{a1}, s[{SRD_WS}:{SRD_WS+3}], 0 offen offset:{OP_OFF} sc1")
canon(a2, a5)
canon(a3, a5)
I(f"v_cmp_eq_u32 vcc, 0, v{V_T}")
I(f"v_mov_b32 v{a5}, 0")
I("s_nop 0")
I(f"v_cndmask_b32 v{a5}, v{a5}, v{a2}, vcc")
I(f"v_cmp_eq_u32 vcc, 1, v{V_T}")
I("s_nop 1")
I(f"v_cndmask_b32 v{a5}, v{a5}, v{a3}, vcc")
I(f"v_cmp_gt_u32 vcc, 4, v{V_T}")
I(f"v_mov_b32 v{a6}, {OOB}")
I("s_nop 0")
I(f"v_cndmask_b32 v{a1}, v{a6}, v{a1}, vcc")
I(f"buffer_store_dword v{a5}, v{a1}, s[{SRD_WS}:{SRD_WS+3}], 0 offen offset:{OP_OFF+768} sc1")
e("L_t_gu:")
I(f"v_mov_b32 v{a6}, {OOB}")
if "--direct" in sys.argv:
    I(f"s_cmp_gt_u32 s{S_W}, 3")
    I("s_cbranch_scc1 L_t5b")
    I(f"s_cmp_eq_u32 s{S_W}, 3")
    I("s_cbranch_scc1 L_t5h")
    I(f"v_lshlrev_b32 v{a5}, 2, v{V_T}")
    I(f"v_mov_b32 v{a1}, 0")
    e("L_op_poll:")
    I(f"s_lshl_b32 s{S_T0}, s{S_H}, 12")
    for p in range(8):
        I(f"buffer_load_dword v{BIG+16+p}, v{a5}, s[{SRD_WS}:{SRD_WS+3}], s{S_T0} offen offset:{OP_OFF} sc1")
        I(f"buffer_load_dwordx2 v[{BIG+2*p}:{BIG+2*p+1}], v{a1}, s[{SRD_WS}:{SRD_WS+3}], s{S_T0} offen offset:{OP_OFF+768} sc1")
        if p != 7:
            I(f"s_add_u32 s{S_T0}, s{S_T0}, {32*4096}")
    I("s_waitcnt vmcnt(0)")
    poll_check(list(range(BIG, BIG + 24)), "L_op_poll", "L_op_done", a4)
    e("L_op_done:")
    stamp("b4")
else:
    divmod_const(a2, a3, V_T, 49, 1338)
    I(f"v_lshlrev_b32 v{a2}, 17, v{a2}")
    I(f"v_lshl_add_u32 v{a2}, v{a3}, 4, v{a2}")
    I(f"v_cmp_gt_u32 vcc, 392, v{V_T}")
    I(f"s_lshl_b32 s{S_T0}, s{S_H}, 12")
    I("s_nop 0")
    I(f"v_cndmask_b32 v{a2}, v{a6}, v{a2}, vcc")
    if WMODE == "gather":
        I(f"s_mov_b32 s{S_T2}, s{S_T0}")
        I(f"buffer_load_dwordx4 v[{BIG}:{BIG+3}], v{a2}, s[{SRD_WS}:{SRD_WS+3}], s{S_T2} offen offset:{OP_OFF} sc1")
        load_w()
        I(f"s_mov_b32 s{S_T0}, s{S_T2}")
        I(f"s_cmp_eq_u32 s{S_W}, 7")
        I("s_cbranch_scc1 L_op_skip")
        I("s_waitcnt vmcnt(5)")
        I("s_branch L_op_chk")
    else:
        I(f"s_cmp_eq_u32 s{S_W}, 7")
        I("s_cbranch_scc1 L_op_skip")
    e("L_op_poll:")
    I(f"buffer_load_dwordx4 v[{BIG}:{BIG+3}], v{a2}, s[{SRD_WS}:{SRD_WS+3}], s{S_T0} offen offset:{OP_OFF} sc1")
    I("s_waitcnt vmcnt(0)")
    e("L_op_chk:")
    poll_check([BIG, BIG + 1, BIG + 2, BIG + 3], "L_op_poll" if "--fullpoll" in sys.argv else "L_op_light", "L_op_done", a4)
    e("L_op_light:")
    I(f"v_lshlrev_b32 v{a5}, 17, v{V_LANE}")
    I(f"v_cmp_gt_u32 vcc, 8, v{V_LANE}")
    I("s_nop 1")
    I(f"v_cndmask_b32 v{a5}, v{a6}, v{a5}, vcc")
    e("L_op_light2:")
    I(f"buffer_load_dword v{a4}, v{a5}, s[{SRD_WS}:{SRD_WS+3}], s{S_T0} offen offset:{OP_OFF+768} sc1")
    I("s_waitcnt vmcnt(0)")
    I(f"v_cmp_eq_u32 vcc, -1, v{a4}")
    I("s_nop 4")
    I("s_cbranch_vccz L_op_poll")
    I("s_sleep 16")
    I("s_branch L_op_light2")
    e("L_op_done:")
    I(f"v_lshlrev_b32 v{a1}, 4, v{V_T}")
    mask_lt(392)
    I(f"ds_write_b128 v{a1}, v[{BIG}:{BIG+3}] offset:{L_OPR}")
    unmask()
    e("L_op_skip:")
    I("s_waitcnt lgkmcnt(0)")
    I("s_barrier")
    stamp("b4")
    I(f"s_cmp_gt_u32 s{S_W}, 3")
    I("s_cbranch_scc1 L_t5b")
    I(f"s_cmp_eq_u32 s{S_W}, 3")
    I("s_cbranch_scc1 L_t5h")
    I(f"v_mov_b32 v{a1}, 0")
    I(f"v_lshlrev_b32 v{a5}, 2, v{V_T}")
    for p in range(8):
        I(f"ds_read_b64 v[{BIG+2*p}:{BIG+2*p+1}], v{a1} offset:{L_OPR + p*784 + 768}")
    for p in range(8):
        I(f"ds_read_b32 v{BIG+16+p}, v{a5} offset:{L_OPR + p*784}")
    I("s_waitcnt lgkmcnt(0)")
I(f"v_max3_f32 v{a2}, v{BIG}, v{BIG+2}, v{BIG+4}")
I(f"v_max3_f32 v{a2}, v{a2}, v{BIG+6}, v{BIG+8}")
I(f"v_max3_f32 v{a2}, v{a2}, v{BIG+10}, v{BIG+12}")
I(f"v_max_f32 v{a2}, v{a2}, v{BIG+14}")
for p in range(8):
    I(f"v_sub_f32 v{BIG+2*p}, v{BIG+2*p}, v{a2}")
for p in range(8):
    I(f"v_exp_f32 v{BIG+2*p}, v{BIG+2*p}")
I("s_nop 0")
I(f"v_mul_f32 v{a3}, v{BIG}, v{BIG+1}")
I(f"v_mul_f32 v{a4}, v{BIG}, v{BIG+16}")
for p in range(1, 8):
    I(f"v_fmac_f32 v{a3}, v{BIG+2*p}, v{BIG+2*p+1}")
    I(f"v_fmac_f32 v{a4}, v{BIG+2*p}, v{BIG+16+p}")
I(f"v_rcp_f32 v{a3}, v{a3}")
I("s_nop 0")
I(f"v_mul_f32 v{a4}, v{a4}, v{a3}")
rbf(a4, a6)
I(f"ds_write_b32 v{a5}, v{a4} offset:{L_OF}")
I("s_branch L_t5b")
e("L_t5h:")
I(f"v_lshlrev_b32 v{a5}, 2, v{V_LANE}")
I(f"v_min_u32 v{a5}, 188, v{a5}")
I(f"ds_read_b32 v{a2}, v{a5} offset:{L_GUR}")
I(f"ds_read_b32 v{a3}, v{a5} offset:{L_GUR + 192}")
I("s_waitcnt lgkmcnt(0)")
I(f"v_mul_f32 v{a2}, v{a2}, v{a3}")
rbf(a2, a6)
I(f"v_cmp_gt_u32 vcc, 48, v{V_LANE}")
I(f"s_and_saveexec_b64 s[{S_EX}:{S_EX+1}], vcc")
I(f"ds_write_b32 v{a5}, v{a2} offset:{L_OF+768}")
unmask()
e("L_t5b:")
I("s_waitcnt lgkmcnt(0)")
I("s_barrier")
stamp("b5")
I(f"v_min_u32 v{a1}, 47, v{V_OW+1}")
I(f"v_lshlrev_b32 v{a1}, 2, v{a1}")
for i in range(4):
    I(f"ds_read_b32 v{BIG+i}, v{a1} offset:{L_OF + 192*i}")
I(f"ds_read_b32 v{BIG+4}, v{a1} offset:{L_OF + 768}")
I("s_waitcnt vmcnt(0) lgkmcnt(0)")
for i in range(4):
    fma_chunk(BIG + 8, WR + 4 * i, BIG + i, a2, first=(i == 0))
fma_chunk(BIG + 16, WR + 16, BIG + 4, a2, first=True)
I(f"v_lshlrev_b32 v{a1}, 6, v{V_T}")
I(f"s_mov_b64 s[{S_EX}:{S_EX+1}], exec")
I(f"s_mov_b64 exec, s[{S_M480}:{S_M480+1}]")
for k in range(4):
    I(f"ds_write_b128 v{a1}, v[{BIG+8+4*k}:{BIG+11+4*k}] offset:{L_RED + 16*k}")
unmask()
I("s_waitcnt lgkmcnt(0)")
I("s_barrier")
stamp("b6")
I(f"s_cmp_ge_u32 s{S_W}, 3")
I("s_cbranch_scc1 L_t6")
I(f"v_min_u32 v{a1}, 159, v{V_T}")
I(f"v_cmp_lt_u32 vcc, 79, v{a1}")
I(f"v_subrev_u32 v{a2}, 80, v{a1}")
I("s_nop 0")
I(f"v_cndmask_b32 v{a2}, v{a1}, v{a2}, vcc")
I(f"v_cndmask_b32 v{a3}, 0, 32, vcc")
I(f"v_lshrrev_b32 v{a4}, 3, v{a2}")
I(f"v_and_b32 v{a2}, 7, v{a2}")
I(f"v_lshl_add_u32 v{a3}, v{a4}, 6, v{a3}")
I(f"v_lshl_add_u32 v{a3}, v{a2}, 2, v{a3}")
for sl in range(48):
    I(f"ds_read_b32 v{BIG+sl}, v{a3} offset:{L_RED + sl*640}")
I("s_waitcnt lgkmcnt(0)")
for k in range(0, 48, 4):
    I(f"v_add_f32 v{BIG+k}, v{BIG+k}, v{BIG+k+1}")
    I(f"v_add_f32 v{BIG+k+2}, v{BIG+k+2}, v{BIG+k+3}")
    I(f"v_add_f32 v{BIG+k}, v{BIG+k}, v{BIG+k+2}")
for k in range(4, 48, 4):
    I(f"v_add_f32 v{BIG}, v{BIG}, v{BIG+k}")
canon(BIG, a5)
I(f"v_lshl_add_u32 v{a1}, v{V_T}, 2, s{S_WSB}")
I(f"v_cmp_gt_u32 vcc, 160, v{V_T}")
I(f"v_mov_b32 v{a6}, {OOB}")
I("s_nop 0")
I(f"v_cndmask_b32 v{a1}, v{a6}, v{a1}, vcc")
I(f"buffer_store_dword v{BIG}, v{a1}, s[{SRD_WS}:{SRD_WS+3}], 0 offen offset:{AP_OFF} sc1")
e("L_t6:")
stamp("t6")
I(f"s_cmp_lg_u32 s{S_H}, 0")
I("s_cbranch_scc1 L_fin")
I(f"s_cmp_eq_u32 s{S_W}, 7")
I("s_cbranch_scc1 L_gate")
I(f"s_cmp_ge_u32 s{S_W}, 5")
I("s_cbranch_scc1 L_fin_bar")
divmod_const(a2, a3, V_T, 40, 1639)
I(f"v_lshlrev_b32 v{a2}, 14, v{a2}")
I(f"v_lshl_add_u32 v{a2}, v{a3}, 4, v{a2}")
I(f"s_lshl_b32 s{S_T0}, s{S_S}, 17")
I(f"s_add_u32 s{S_T1}, s{S_T0}, 4096")
I(f"s_add_u32 s{S_T2}, s{S_T0}, 8192")
I(f"s_add_u32 s{S_T3}, s{S_T0}, 12288")
e("L_ap_poll:")
for k, sr in enumerate((S_T0, S_T1, S_T2, S_T3)):
    I(f"buffer_load_dwordx4 v[{BIG+4*k}:{BIG+4*k+3}], v{a2}, s[{SRD_WS}:{SRD_WS+3}], s{sr} offen offset:{AP_OFF} sc1")
I("s_waitcnt vmcnt(0)")
poll_check(list(range(BIG, BIG + 16)), "L_ap_poll", "L_ap_done", a4)
e("L_ap_light:")
I(f"v_lshlrev_b32 v{a5}, 12, v{V_LANE}")
I(f"v_cmp_gt_u32 vcc, 32, v{V_LANE}")
I(f"v_mov_b32 v{a6}, {OOB}")
I("s_nop 0")
I(f"v_cndmask_b32 v{a5}, v{a6}, v{a5}, vcc")
e("L_ap_light2:")
I(f"buffer_load_dword v{a4}, v{a5}, s[{SRD_WS}:{SRD_WS+3}], s{S_T0} offen offset:{AP_OFF} sc1")
I("s_waitcnt vmcnt(0)")
I(f"v_cmp_eq_u32 vcc, -1, v{a4}")
I("s_nop 4")
I("s_cbranch_vccz L_ap_poll")
I("s_sleep 8")
I("s_branch L_ap_light2")
e("L_ap_done:")
for k in range(4):
    I(f"v_add_f32 v{BIG+k}, v{BIG+k}, v{BIG+4+k}")
    I(f"v_add_f32 v{BIG+8+k}, v{BIG+8+k}, v{BIG+12+k}")
for k in range(4):
    I(f"v_add_f32 v{BIG+k}, v{BIG+k}, v{BIG+8+k}")
I(f"v_lshlrev_b32 v{a1}, 4, v{V_T}")
I(f"ds_write_b128 v{a1}, v[{BIG}:{BIG+3}] offset:{L_FR}")
I("s_branch L_fin_bar")
e("L_gate:")
I(f"v_lshlrev_b32 v{a1}, 5, v{V_LANE}")
I(f"buffer_load_dwordx4 v[{BIG}:{BIG+3}], v{a1}, s[{SRD_X}:{SRD_X+3}], 0 offen")
I(f"buffer_load_dwordx4 v[{BIG+4}:{BIG+7}], v{a1}, s[{SRD_X}:{SRD_X+3}], 0 offen offset:16")
I(f"buffer_load_dwordx4 v[{BIG+8}:{BIG+11}], v{a1}, s[{SRD_GW}:{SRD_GW+3}], 0 offen")
I(f"buffer_load_dwordx4 v[{BIG+12}:{BIG+15}], v{a1}, s[{SRD_GW}:{SRD_GW+3}], 0 offen offset:16")
I(f"v_mov_b32 v{a2}, 0")
I("s_waitcnt vmcnt(0)")
for k in range(8):
    I(f"v_lshlrev_b32 v{a3}, 16, v{BIG+k}")
    I(f"v_lshlrev_b32 v{a4}, 16, v{BIG+8+k}")
    I(f"v_and_b32 v{a5}, 0xffff0000, v{BIG+k}")
    I(f"v_and_b32 v{a6}, 0xffff0000, v{BIG+8+k}")
    I(f"v_mul_f32 v{a3}, v{a3}, v{a4}")
    I(f"v_mul_f32 v{a5}, v{a5}, v{a6}")
    I(f"v_cvt_pk_bf16_f32 v{a3}, v{a3}, v{a5}")
    I(f"v_lshlrev_b32 v{a4}, 16, v{a3}")
    I(f"v_and_b32 v{a5}, 0xffff0000, v{a3}")
    I(f"v_add_f32 v{a2}, v{a2}, v{a4}")
    I(f"v_add_f32 v{a2}, v{a2}, v{a5}")
I(f"v_lshlrev_b32 v{a1}, 2, v{V_LANE}")
for m in (1, 2, 4, 8, 16, 32):
    I(f"v_xor_b32 v{a3}, {4*m}, v{a1}")
    I(f"ds_bpermute_b32 v{a4}, v{a3}, v{a2}")
    I("s_waitcnt lgkmcnt(0)")
    I(f"v_add_f32 v{a2}, v{a2}, v{a4}")
rbf(a2, a6)
I(f"v_mul_f32 v{a2}, s{S_LOG2E}, v{a2}")
I(f"v_sub_f32 v{a2}, 0, v{a2}")
I(f"v_exp_f32 v{a2}, v{a2}")
I("s_nop 0")
I(f"v_add_f32 v{a2}, 1.0, v{a2}")
I(f"v_rcp_f32 v{a2}, v{a2}")
I("s_nop 0")
rbf(a2, a6)
I(f"v_mov_b32 v{a1}, 0")
I(f"ds_write_b32 v{a1}, v{a2} offset:{L_GATE}")
e("L_fin_bar:")
I("s_waitcnt lgkmcnt(0)")
I("s_barrier")
I(f"s_cmp_ge_u32 s{S_W}, 2")
I("s_cbranch_scc1 L_fin")
I(f"v_min_u32 v{a1}, 79, v{V_T}")
I(f"v_lshlrev_b32 v{a1}, 2, v{a1}")
I(f"v_mov_b32 v{a5}, 0")
for hg in range(8):
    I(f"ds_read_b32 v{BIG+hg}, v{a1} offset:{L_FR + hg*640}")
    I(f"ds_read_b32 v{BIG+8+hg}, v{a1} offset:{L_FR + hg*640 + 320}")
I(f"ds_read_b32 v{a7}, v{a5} offset:{L_GATE}")
I("s_waitcnt lgkmcnt(0)")
I(f"v_add_f32 v{a2}, v{BIG}, v{BIG+1}")
I(f"v_add_f32 v{a3}, v{BIG+8}, v{BIG+9}")
for p in range(2, 8):
    I(f"v_add_f32 v{a2}, v{a2}, v{BIG+p}")
    I(f"v_add_f32 v{a3}, v{a3}, v{BIG+8+p}")
rbf(a2, a6)
rbf(a3, a6)
I(f"v_sub_f32 v{a4}, 1.0, v{a7}")
rbf(a4, a6)
I(f"v_mul_f32 v{a2}, v{a7}, v{a2}")
I(f"v_mul_f32 v{a3}, v{a4}, v{a3}")
rbf(a2, a6)
rbf(a3, a6)
I(f"v_add_f32 v{a2}, v{a2}, v{a3}")
I(f"v_cvt_pk_bf16_f32 v{a2}, v{a2}, v{a2}")
I(f"s_mul_i32 s{S_T0}, s{S_S}, 160")
I(f"v_lshlrev_b32 v{a1}, 1, v{V_T}")
I(f"v_cmp_gt_u32 vcc, 80, v{V_T}")
I(f"v_mov_b32 v{a6}, {OOB}")
I("s_nop 0")
I(f"v_cndmask_b32 v{a1}, v{a6}, v{a1}, vcc")
I(f"buffer_store_short v{a2}, v{a1}, s[{SRD_OUT}:{SRD_OUT+3}], s{S_T0} offen")
e("L_fin:")
stamp("end")
dump_stamps()
e("L_end:")
I("s_endpgm")
e('.section .rodata,"a"')
e(".p2align 6")
e(f".amdhsa_kernel {NAME}_kernel")
e("  .amdhsa_next_free_vgpr 256")
e("  .amdhsa_next_free_sgpr 102")
e("  .amdhsa_accum_offset 256")
e("  .amdhsa_group_segment_fixed_size 0")
e("  .amdhsa_kernarg_size 104")
e("  .amdhsa_user_sgpr_count 2")
e("  .amdhsa_user_sgpr_kernarg_segment_ptr 1")
e("  .amdhsa_system_sgpr_workgroup_id_x 1")
e(".end_amdhsa_kernel")

open(OUTFILE, "w").write("\n".join(out) + "\n")
print("wrote", OUTFILE, len(out), "lines")
```
